```python
import torch

def _softmax(x, axis=-1):
    return torch.softmax(x, dim=axis)
def _gelu(x):
    return torch.nn.functional.gelu(x, approximate="tanh")
def _silu(x):
    return torch.nn.functional.silu(x)
def _sigmoid(x):
    return torch.sigmoid(x)
def _layernorm(x, axis=-1, eps=1e-5):
    m = x.mean(dim=axis, keepdim=True)
    v = x.var(dim=axis, keepdim=True, unbiased=False)
    return (x - m) / torch.sqrt(v + eps)
def _scatter_add(tgt, idx, src, axis=0):
    return tgt.clone().index_add_(axis, idx, src)
def _segment_sum(src, seg, n):
    out = torch.zeros((n,) + src.shape[1:], dtype=src.dtype)
    return out.index_add_(0, seg, src)
def _pad(x, pw):
    flat = tuple(v for pair in reversed(pw) for v in pair)
    return torch.nn.functional.pad(x, flat)

kernel_name = 'concat_heads__sliding_local_dilated__linear_attn_block__prompt'

def setup_inputs():

    _w = (lambda a: (lambda t: t.to(torch.bfloat16) if t.is_floating_point() else t)(torch.as_tensor(a)))
    def _A_setup():
        B, S, D = 1, 2048, 640
        return {
            "x": _w((lambda *s: torch.randn(*s, dtype=torch.bfloat16) * 0.2)(B, S, D)),
            "wqkv": _w((lambda *s: torch.randn(*s, dtype=torch.bfloat16) * 0.2)(D, 3 * D)),
            "wo": _w((lambda *s: torch.randn(*s, dtype=torch.bfloat16) * 0.05)(D, D)),
        }
    _A_in = _A_setup()

    def _B_setup():
        B, S, D = 1, 2048, 640
        return {
            "x": _w((lambda *s: torch.randn(*s, dtype=torch.bfloat16) * 0.05)(B, S, D)),
            "wqkv": _w((lambda *s: torch.randn(*s, dtype=torch.bfloat16) * 1.6)(D, 3 * D)),
            "wo": _w((lambda *s: torch.randn(*s, dtype=torch.bfloat16) * 0.8)(D, D)),
        }
    _B_in = _B_setup()

    return {
        "A_x": _A_in["x"],
        "A_wqkv": _A_in["wqkv"],
        "A_wo": _A_in["wo"],
        "B_x": _B_in["x"],
        "B_wqkv": _B_in["wqkv"],
        "B_wo": _B_in["wo"],
    }

def reference(A_x, A_wqkv, A_wo, B_x, B_wqkv, B_wo):
    def _A_ref(x, wqkv, wo):
        B, S, D = x.shape
        H = 32; Dh = D // H
        W, dil = 8, 2
        qkv = (lambda x, *d: x.permute(*d))((x @ wqkv).reshape(B, S, 3, H, Dh), 2, 0, 3, 1, 4)
        q, k, v = qkv[0], qkv[1], qkv[2]
        scale = Dh ** -0.5
        pos = torch.arange(S)
        off = torch.arange(W) * dil
        idx = pos[:, None] - off[None, :]
        mask = idx >= 0
        idx_c = torch.where(mask, idx, 0).reshape(-1)
        kg = k[:, :, idx_c, :].reshape(B, H, S, W, Dh)
        vg = v[:, :, idx_c, :].reshape(B, H, S, W, Dh)
        logits = torch.einsum("bhsd,bhswd->bhsw", q, kg) * scale
        logits = torch.where(mask[None, None, :, :], logits, -1e9)
        attn = _softmax(logits, axis=-1)
        o = torch.einsum("bhsw,bhswd->bhsd", attn, vg)
        return (lambda x, *d: x.permute(*d))(o, 0, 2, 1, 3).reshape(B, S, D) @ wo

    def _B_ref(x, wqkv, wo):
        B, S, D = x.shape
        H = 32; Dh = D // H
        qkv = (lambda x, *d: x.permute(*d))((x @ wqkv).reshape(B, S, 3, H, Dh), 2, 0, 3, 1, 4)
        q, k, v = qkv[0], qkv[1], qkv[2]
        phi = lambda t: torch.where(t > 0, t + 1, torch.exp(t)) + 1e-6
        pq, pk = phi(q), phi(k)
        kv = torch.einsum("bhsd,bhse->bhde", pk, v)
        z = torch.einsum("bhsd->bhd", pk)
        num = torch.einsum("bhqd,bhde->bhqe", pq, kv)
        den = torch.einsum("bhqd,bhd->bhq", pq, z)[..., None] + 1e-6
        o = num / den
        return (lambda x, *d: x.permute(*d))(o, 0, 2, 1, 3).reshape(B, S, D) @ wo

    a = _A_ref(A_x, A_wqkv, A_wo)
    b = _B_ref(B_x, B_wqkv, B_wo)
    return torch.concatenate([a, b], axis=-1)
```

```python
import re
from contextlib import contextmanager

_RE_RANGE = re.compile(r'^([vas])\[(\d+):(\d+)\]$')
_RE_ONE = re.compile(r'^([vas])(\d+)$')
SPECIAL = {
    'vcc': [('s', 106), ('s', 107)], 'vcc_lo': [('s', 106)], 'vcc_hi': [('s', 107)],
    'exec': [('s', 126), ('s', 127)], 'exec_lo': [('s', 126)], 'exec_hi': [('s', 127)],
    'm0': [('s', 124)],
}
TRANS = ('v_exp_f32', 'v_log_f32', 'v_rcp_f32', 'v_rsq_f32', 'v_sqrt_f32', 'v_sin_f32', 'v_cos_f32',
         'v_rcp_iflag_f32')
RMW = ('v_fmac_f32', 'v_mac_f32', 'v_pk_fmac_f16', 'v_dot2c_f32_bf16', 'v_fmac_f32_e32', 'v_fmac_f32_e64')
SALU_NODST = ('s_cmp', 's_waitcnt', 's_branch', 's_cbranch', 's_barrier', 's_nop', 's_sleep', 's_setprio',
              's_endpgm', 's_bitcmp', 's_sethalt', 's_setreg')


def regs_of(tok):
    tok = tok.strip()
    if tok.startswith('-') and len(tok) > 1 and tok[1] in 'vas|':
        tok = tok[1:]
    if tok.startswith('|') and tok.endswith('|'):
        tok = tok[1:-1]
    if tok in SPECIAL:
        return list(SPECIAL[tok])
    m = _RE_RANGE.match(tok)
    if m:
        return [(m.group(1), i) for i in range(int(m.group(2)), int(m.group(3)) + 1)]
    m = _RE_ONE.match(tok)
    if m:
        return [(m.group(1), int(m.group(2)))]
    return []


def mfma_passes(mn):
    if '4x4x4' in mn:
        return 2
    if '16x16' in mn:
        return 4
    if '32x32' in mn:
        return 8
    raise ValueError(mn)


IDX = {2: 0, 4: 1, 8: 2, 16: 3}


class Rec:
    __slots__ = ('kind', 'mn', 'wr', 'rd', 'pos', 'passes', 'srcc', 'srcab', 'wide', 'lds', 'dpp', 'opsel')


class Asm:
    def __init__(self):
        self.out = []
        self.hist = []
        self.pos = 0
        self.vm = []
        self.lg = []
        self.smem = []
        self.nbytes = 0
        self.stats = {}

    def raw(self, s):
        self.out.append(s)

    def comment(self, s):
        self.out.append('  ; ' + s)

    def parse(self, text):
        t = text.split(';')[0].strip()
        sp = t.split(None, 1)
        mn = sp[0]
        rest = sp[1] if len(sp) > 1 else ''
        rest = re.sub(r'\b(op_sel_hi|neg_lo|neg_hi):\[[0-9,]*\]', '', rest).strip()
        parts = [p.strip() for p in rest.split(',')] if rest else []
        mods = []
        if parts:
            last = parts[-1].split()
            if last:
                parts[-1] = last[0]
                mods = last[1:]
        r = Rec()
        r.mn = mn
        r.wr, r.rd = set(), set()
        r.passes = 0
        r.srcc, r.srcab = set(), set()
        r.wide = False
        r.lds = False
        r.dpp = any(m.startswith(('row_', 'quad_perm', 'wave_', 'row_newbcast')) for m in mods) or '_dpp' in mn
        r.opsel = any(m.startswith(('op_sel', 'dst_sel')) for m in mods) or '_sdwa' in mn
        ops = [regs_of(p) for p in parts]
        if mn.startswith('v_mfma'):
            r.kind = 'mfma'
            r.passes = mfma_passes(mn)
            r.wr = set(ops[0])
            r.srcab = set(ops[1]) | set(ops[2])
            r.srcc = set(ops[3])
            r.rd = r.srcab | r.srcc
        elif mn.startswith('v_'):
            r.kind = 'valu'
            base = mn.replace('_e32', '').replace('_e64', '')
            if base.startswith('v_cmpx'):
                r.wr = set(SPECIAL['exec'])
                for o in ops:
                    r.rd |= set(o)
            elif base.startswith('v_permlane') and 'swap' in base:
                r.wr = set(ops[0]) | set(ops[1])
                r.rd = set(r.wr)
            elif base in ('v_add_co_u32', 'v_sub_co_u32', 'v_subrev_co_u32', 'v_addc_co_u32', 'v_subb_co_u32'):
                r.wr = set(ops[0]) | set(ops[1])
                for o in ops[2:]:
                    r.rd |= set(o)
            elif base == 'v_nop':
                pass
            else:
                r.wr = set(ops[0])
                for o in ops[1:]:
                    r.rd |= set(o)
                if base in RMW or base == 'v_writelane_b32' or r.opsel or r.dpp:
                    r.rd |= set(ops[0])
                if base == 'v_cndmask_b32' and len(ops) == 3:
                    r.rd |= set(SPECIAL['vcc'])
        elif mn.startswith('ds_'):
            r.kind = 'ds'
            if mn.startswith(('ds_read', 'ds_bpermute', 'ds_permute', 'ds_swizzle')) or '_rtn' in mn:
                r.wr = set(ops[0])
                for o in ops[1:]:
                    r.rd |= set(o)
            else:
                for o in ops:
                    r.rd |= set(o)
        elif mn.startswith(('buffer_', 'global_')):
            r.kind = 'vmem'
            r.lds = 'lds' in mods
            isload = '_load' in mn
            ret_atomic = '_atomic' in mn and 'sc0' in mods
            if isload and not r.lds:
                r.wr = set(ops[0])
                for o in ops[1:]:
                    r.rd |= set(o)
            elif ret_atomic and mn.startswith('buffer_'):
                r.wr = set(ops[0])
                for o in ops:
                    r.rd |= set(o)
            elif ret_atomic:
                r.wr = set(ops[0])
                for o in ops[1:]:
                    r.rd |= set(o)
            else:
                for o in ops:
                    r.rd |= set(o)
                if r.lds:
                    r.rd |= set(SPECIAL['m0'])
                if '_store' in mn and ('x3' in mn or 'x4' in mn):
                    r.wide = True
                    r.srcc = set(ops[0] if mn.startswith('buffer_') else ops[1])
        elif mn.startswith('s_load') or mn.startswith('s_memtime') or mn.startswith('s_memrealtime') \
                or mn.startswith('s_buffer_load'):
            r.kind = 'smem'
            r.wr = set(ops[0])
            for o in ops[1:]:
                r.rd |= set(o)
        elif mn.startswith('s_'):
            r.kind = 'salu'
            if mn.startswith(SALU_NODST):
                for o in ops:
                    r.rd |= set(o)
            else:
                r.wr = set(ops[0])
                for o in ops[1:]:
                    r.rd |= set(o)
                if 'saveexec' in mn:
                    r.wr |= set(SPECIAL['exec'])
                    r.rd |= set(SPECIAL['exec'])
        else:
            raise ValueError('unknown instr ' + text)
        return r

    @staticmethod
    def need(p, c):
        n = 0
        if p.kind == 'valu':
            wv = {x for x in p.wr if x[0] != 's'}
            ws = {x for x in p.wr if x[0] == 's'}
            if c.kind == 'mfma':
                if wv & c.rd:
                    n = max(n, 2)
                if ws & set(SPECIAL['exec']):
                    n = max(n, 4)
            if c.kind == 'valu':
                if ws & c.rd:
                    n = max(n, 4 if c.mn.startswith(('v_readlane', 'v_writelane')) else 2)
                if ws & set(SPECIAL['exec']):
                    if c.dpp:
                        n = max(n, 5)
                    if c.mn.startswith(('v_readlane', 'v_readfirstlane', 'v_writelane', 'v_permlane')):
                        n = max(n, 4)
                if wv & c.rd:
                    if c.mn.startswith(('v_readlane', 'v_readfirstlane')):
                        n = max(n, 1)
                    if c.dpp or c.mn.startswith('v_permlane'):
                        n = max(n, 2)
                if p.opsel and wv & (c.rd | c.wr):
                    n = max(n, 1)
            if p.mn.replace('_e32', '').replace('_e64', '') in TRANS and wv & c.rd:
                n = max(n, 1)
            if c.kind == 'vmem' and ws & c.rd:
                n = max(n, 5)
            if c.kind in ('salu', 'smem') and ws & c.rd:
                n = max(n, 1)
        elif p.kind == 'mfma':
            i = IDX[p.passes]
            if c.kind == 'mfma':
                if p.wr & c.srcab:
                    n = max(n, (5, 8, 12, 20)[i])
                if p.wr & c.srcc:
                    if p.wr == c.srcc and p.passes == c.passes:
                        n = max(n, (2, 0, 0, 0)[i])
                    else:
                        n = max(n, (4, 6, 10, 18)[i])
                elif p.wr & c.wr:
                    n = max(n, (5, 8, 12, 20)[i])
            elif c.kind in ('valu', 'ds', 'vmem'):
                if p.wr & (c.rd | c.wr):
                    n = max(n, (5, 8, 12, 20)[i])
                if p.srcc & c.wr:
                    n = max(n, (1, 3, 7, 15)[i])
        elif p.kind == 'salu':
            if ('s', 124) in p.wr and c.kind == 'vmem' and c.lds:
                n = max(n, 1)
        elif p.kind == 'vmem':
            if p.wide and p.srcc & c.wr:
                n = max(n, 2)
        return n

    def _nop(self, n):
        while n > 0:
            k = min(n, 16)
            self.out.append(f'  s_nop {k - 1}')
            self.pos += k
            self.nbytes += 4
            self.stats['nop_states'] = self.stats.get('nop_states', 0) + k
            n -= k

    def _emit_wait(self, vm=None, lg=None):
        s = []
        if vm is not None:
            assert 0 <= vm <= 63
            s.append(f'vmcnt({vm})')
            del self.vm[:max(0, len(self.vm) - vm)]
        if lg is not None:
            assert 0 <= lg <= 15
            s.append(f'lgkmcnt({lg})')
            del self.lg[:max(0, len(self.lg) - lg)]
            if lg == 0:
                self.smem = []
        if s:
            self.out.append('  s_waitcnt ' + ' '.join(s))
            self.pos += 1
            self.nbytes += 4
            self.stats['waits'] = self.stats.get('waits', 0) + 1

    def _auto_wait(self, touched):
        vm = lg = None
        for i in range(len(self.vm) - 1, -1, -1):
            if self.vm[i][1] & touched:
                vm = min(len(self.vm) - 1 - i, 63)
                break
        for i in range(len(self.lg) - 1, -1, -1):
            if self.lg[i][1] & touched:
                lg = min(len(self.lg) - 1 - i, 15)
                break
        if self.smem:
            if any(r in touched for r in self.smem):
                lg = 0
            elif lg is not None:
                lg = 0
        self._emit_wait(vm, lg)

    def __call__(self, text, tag=None):
        r = self.parse(text)
        self._auto_wait(r.rd | r.wr)
        if r.kind == 'vmem' and len(self.vm) >= 63:
            self._emit_wait(vm=62)
        n = 0
        for p in self.hist:
            d = self.pos - p.pos - 1
            if d < 20:
                n = max(n, self.need(p, r) - d)
        self._nop(n)
        r.pos = self.pos
        self.out.append('  ' + text)
        if r.mn == 's_nop':
            self.pos += int(text.split()[1]) + 1
        else:
            self.pos += 1
        self.nbytes += 4 if (r.kind == 'salu' and not re.search(r'0x[0-9a-f]+|\b\d{3,}\b', text)) else 8
        self.stats[r.kind] = self.stats.get(r.kind, 0) + 1
        self.hist.append(r)
        if len(self.hist) > 24:
            self.hist.pop(0)
        if r.kind == 'vmem':
            self.vm.append((tag, set(r.wr)))
            assert len(self.vm) <= 63, 'too many outstanding vmem ops'
        elif r.kind == 'ds':
            self.lg.append((tag, set(r.wr)))
        elif r.kind == 'smem':
            self.smem += list(r.wr) + [('x', 0)]
        return r

    def wait_tag(self, tag):
        for i in range(len(self.vm) - 1, -1, -1):
            if self.vm[i][0] == tag:
                self._emit_wait(vm=len(self.vm) - 1 - i)
                return

    def wait_vm(self, n=0):
        if len(self.vm) > n:
            self._emit_wait(vm=n)

    def wait_lg(self, n=0):
        if self.smem:
            self._emit_wait(lg=0)
        elif len(self.lg) > n:
            self._emit_wait(lg=min(n, 15))

    def force_wait(self, vm=None, lg=None):
        self._emit_wait(vm, lg)

    def flush_hazards(self):
        n = 0
        for p in self.hist:
            d = self.pos - p.pos - 1
            if p.kind == 'mfma':
                m = (5, 8, 12, 20)[IDX[p.passes]]
            elif p.kind == 'valu':
                m = 5 if any(x[0] == 's' for x in p.wr) else 2
            elif p.kind == 'vmem' and p.wide:
                m = 2
            elif p.kind == 'salu' and ('s', 124) in p.wr:
                m = 1
            else:
                m = 0
            n = max(n, m - d)
        self._nop(n)

    def label(self, name):
        self.flush_hazards()
        self.out.append(name + ':')

    @contextmanager
    def extra(self):
        svm, slg, ssm = list(self.vm), list(self.lg), list(self.smem)
        yield
        new_vm = [x for x in self.vm if x not in svm and x[1]]
        new_lg = [x for x in self.lg if x not in slg and x[1]]
        assert not new_vm and not new_lg, 'unwaited register loads at end of extra block'
        assert len(self.smem) <= len(ssm), 'unwaited smem at end of extra block'
        self.vm, self.lg, self.smem = svm, slg, ssm

    def text(self):
        return '\n'.join(self.out) + '\n'
```

```python
import sys
from asmgen import Asm

opt = dict(dist=6, nbuf=8, dmagap=2, pre=1, barf=14, init=2, prof=0, rot=1)
for a in sys.argv[1:]:
    k, v = a.split('=')
    opt[k] = int(v)

NAME = "concat_heads__sliding_local_dilated__linear_attn_block__prompt_kernel"
SLOT = 20544
XBASE = 5 * SLOT
KVB = XBASE
PRT = XBASE
KVF = XBASE + 32768
WS_O, WS_H, WS_K, WS_F, WS_P = 0, 0x500000, 0x600000, 0x700000, 0x800000
SPIN = 1 << 14
LOG2E = 0x3FB8AA3B
SCL = 0x3EA52B5C
EPS = 0x358637BD
NEG = 0xF149F2CA

g = Asm()
def br(text):
    g.flush_hazards()
    g(text)
g.raw("; @launch grid=(256,1,1) block=(256,1,1) lds=163840")
g.raw('.amdgcn_target "amdgcn-amd-amdhsa--gfx950"')
g.raw(f".text\n.globl {NAME}\n.p2align 8\n.type {NAME},@function\n{NAME}:")

nstamp = [0]
def stamp():
    if opt['prof']:
        k = nstamp[0]; nstamp[0] += 1
        g("s_memtime s[88:89]")
        g.wait_lg(0)
        g("s_sub_u32 s88, s88, s90")
        g(f"v_writelane_b32 v5, s88, {k}")

if opt['prof']:
    g("s_memrealtime s[92:93]")
    g("s_memtime s[90:91]")
g("s_cmp_ge_u32 s2, 256")
br("s_cbranch_scc1 L_end")
g("s_and_b32 s3, s2, 7")
g("s_lshr_b32 s4, s2, 3")
g("s_lshr_b32 s28, s3, 2")
g("s_mul_i32 s5, s28, 24")
g("s_add_u32 s6, s0, s5")
g("s_addc_u32 s7, s1, 0")
g("s_load_dwordx4 s[64:67], s[6:7], 0")
g("s_load_dwordx2 s[68:69], s[6:7], 16")
g("s_load_dwordx4 s[72:75], s[0:1], 48")
g("s_load_dwordx2 s[76:77], s[0:1], 64")
g("s_and_b32 s3, s3, 3")
g("s_lshl_b32 s3, s3, 2")
g("s_lshr_b32 s5, s4, 3")
g("s_add_u32 s29, s3, s5")
g("s_and_b32 s30, s4, 7")
g("s_add_u32 s78, s30, s5")
g("s_cmp_ge_u32 s78, 5")
g("s_cselect_b32 s3, 5, 0")
g("s_sub_u32 s78, s78, s3")
g("s_cmp_ge_u32 s78, 5")
g("s_cselect_b32 s3, 5, 0")
g("s_sub_u32 s78, s78, s3")
if not opt['rot']:
    g("s_mov_b32 s78, 0")
g("v_and_b32 v1, 63, v0")
g("v_lshrrev_b32 v2, 6, v0")
g("v_and_b32 v3, 15, v0")
g("v_readfirstlane_b32 s31, v2")
g("v_bfe_u32 v4, v0, 4, 2")
g("v_lshrrev_b32 v6, 3, v1")
g("v_mul_u32_u24 v6, 2560, v6")
g("v_and_b32 v7, 7, v1")
g("v_and_b32 v23, 1, v4")
g("v_xor_b32 v7, v7, v23")
g("v_lshl_add_u32 v40, v7, 4, v6")
g("v_add_u32 v41, 256, v40")
g("v_xor_b32 v7, 4, v7")
g("v_lshl_add_u32 v42, v7, 4, v6")
g(f"v_add_u32 v42, {16*1280-2048}, v42")
g("v_add_u32 v43, 256, v42")
for i in range(5):
    g(f"v_add_u32 v6, {64*i}, v1")
    g("v_mul_u32_u24 v7, 3277, v6")
    g("v_lshrrev_b32 v7, 16, v7")
    g("v_mul_u32_u24 v23, 20, v7")
    g("v_sub_u32 v6, v6, v23")
    g("v_cmp_le_u32 vcc, 10, v6")
    g("v_cndmask_b32 v23, 0, 1, vcc")
    g("v_mul_u32_u24 v24, 10, v23")
    g("v_sub_u32 v6, v6, v24")
    g("v_lshlrev_b32 v6, 4, v6")
    comp = 1024 * (i & 3)
    if comp:
        g(f"v_subrev_u32 v6, {comp}, v6")
    g(f"v_mul_u32_u24 v24, 3840, v7")
    g(f"v_add_u32 v{8+i}, v24, v6")
    g(f"v_mul_u32_u24 v25, 1280, v23")
    g(f"v_add_u32 v{8+i}, v{8+i}, v25")
    g(f"v_lshl_add_u32 v7, v23, 6, v7")
    g(f"v_mul_u32_u24 v24, 3840, v7")
    g(f"v_add_u32 v{13+i}, v24, v6")
g("s_lshl_b32 s3, s29, 7")
g("s_lshl_b32 s4, s31, 5")
g("s_add_u32 s48, s3, s4")
g("s_mul_i32 s32, s48, 1280")
g("s_mul_i32 s4, s30, 160")
g("s_mul_i32 s5, s31, 61440")
g("s_add_u32 s34, s5, s4")
g("s_add_u32 s33, s34, 1280")
g("s_mul_i32 s5, s31, 40960")
g("s_add_u32 s35, s5, s4")
g("s_add_u32 s4, s31, 1")
g("s_lshr_b32 s4, s4, 1")
g("s_lshl_b32 s4, s4, 5")
g("s_mul_i32 s45, s31, 5120")
g("s_add_u32 s36, s4, s45")
g("s_mul_i32 s79, s31, 12288")
g(f"s_add_u32 s79, s79, {XBASE}")
for u in range(5):
    g(f"s_add_u32 s{80+u}, s78, {u}")
    g(f"s_cmp_ge_u32 s{80+u}, 5")
    g("s_cselect_b32 s3, 5, 0")
    g(f"s_sub_u32 s{80+u}, s{80+u}, s3")
g.wait_lg(0)
for base, lo, n in ((8, 64, 2621440), (12, 66, 2457600), (16, 68, 819200), (20, 72, 5242880),
                    (24, 76, 1 << 24), (40, 74, 256)):
    g(f"s_mov_b32 s{base}, s{lo}")
    g(f"s_mov_b32 s{base+1}, s{lo+1}")
    g(f"s_mov_b32 s{base+2}, {n}")
    g(f"s_mov_b32 s{base+3}, 0x00020000")

nv = [0]
_call = g.__call__

def dma_ops(st):
    if st < 10:
        srd, vb, sb, u, mul, add = "s[12:15]", 8, "s33", st // 2, 128 * 3840, (st % 2) * 64 * 3840
    elif st < 15:
        srd, vb, sb, u, mul, add = "s[12:15]", 13, "s34", st - 10, 128 * 3840, 0
    sl = st % 5
    def mk(i):
        def f():
            if st < 15:
                if i == 0:
                    g(f"s_mul_i32 s37, s{80+u}, {mul}")
                    g(f"s_add_u32 s37, s37, {sb}")
                    if add:
                        g(f"s_add_u32 s37, s37, {add}")
                g(f"s_add_u32 m0, s36, {sl*SLOT + (4096 if i == 4 else 0)}")
                off = 1024 * (i & 3)
                g(f"buffer_load_dwordx4 v{vb+i}, {srd}, s37 offen offset:{off} lds", tag=('w', st))
            else:
                uu = st - 15
                if i == 0:
                    g(f"s_add_u32 s37, s35, {uu*128*1280}")
                g(f"s_add_u32 m0, s45, {uu*20480 + (4096 if i == 4 else 0)}")
                off = 1024 * (i & 3)
                g(f"buffer_load_dwordx4 v{18+i}, s[16:19], s37 offen offset:{off} lds", tag=('w', st))
            nv[0] += 1
        f.tag = ('w', st)
        return f
    return [mk(i) for i in range(5)]

def xreg(B, s, p):
    b = ((B * 2 + s) * 2 + p) * 4
    return f"a[{b}:{b+3}]"

def xregs(B):
    return {('a', i) for i in range(B * 16, B * 16 + 16)}

def x_ops(B):
    def mk(i):
        def f():
            if i == 0:
                if B >= 3:
                    g._auto_wait(xregs(B - 3))
                g(f"s_lshl_b32 s38, s{80+B//2}, 8")
                g(f"s_add_u32 s38, s38, s32")
                if B % 2:
                    g(f"s_add_u32 s38, s38, 128")
            g(f"s_add_u32 m0, s79, {(B%3)*4096}")
            g(f"buffer_load_dwordx4 v{40+i}, s[8:11], s38 offen offset:{1024*i} lds", tag=('x', B))
            nv[0] += 1
        f.tag = ('x', B)
        return f
    return [mk(i) for i in range(4)]

def x_read(B):
    for s in range(2):
        for p in range(2):
            g(f"ds_read_b128 {xreg(B,s,p)}, v{44+s} offset:{(B%3)*4096+1024*p}")

queue = []
for st in range(5):
    if st < 3:
        for f in x_ops(st):
            f() if st < opt['init'] else queue.append(f)
    for f in dma_ops(st):
        f() if st < opt['init'] else queue.append(f)
    if st == 0:
        if opt['pre']:
            g("s_getpc_b64 s[86:87]")
            g.raw("L_pc0:")
            g("s_lshr_b32 s3, s2, 3")
            g("s_and_b32 s3, s3, 7")
            g("s_lshl_b32 s3, s3, 12")
            g("v_lshlrev_b32 v6, 4, v0")
            g("v_add_u32 v6, s3, v6")
            g("v_min_u32 v6, L_end-L_pc0-16, v6")
            g("global_load_dwordx4 v[32:35], v6, s[86:87]")
        g("s_cmp_lg_u32 s2, 0")
        br("s_cbranch_scc1 L_notag")
        g("s_cmp_lg_u32 s31, 0")
        br("s_cbranch_scc1 L_notag")
        with g.extra():
            g("s_memrealtime s[4:5]")
            g.wait_lg(0)
            g("s_or_b32 s4, s4, 1")
            g("v_mov_b32 v6, s4")
            g("v_mov_b32 v7, 0")
            g("s_mov_b64 exec, 1")
            g("buffer_store_dword v6, v7, s[40:43], 0 offen sc1")
            g("s_mov_b64 exec, -1")
        g.label("L_notag")
        g("v_bfe_u32 v49, v0, 2, 2")
        g("v_and_b32 v50, 3, v0")
        g("v_mul_u32_u24 v6, 320, v49")
        g("v_mul_u32_u24 v7, 40, v50")
        g("v_add_u32 v6, v6, v7")
        g("v_mul_u32_u24 v7, 5120, v4")
        g("v_add_u32 v6, v6, v7")
        g("v_add_u32 v7, 1, v4")
        g("v_lshrrev_b32 v7, 1, v7")
        g("v_lshl_add_u32 v26, v7, 5, v6")
        g(f"v_add_u32 v27, {3*SLOT}, v26")
        g("v_lshrrev_b32 v6, 3, v3")
        g("v_lshlrev_b32 v6, 4, v6")
        g("v_and_b32 v7, 7, v3")
        g("v_add_u32 v6, v6, v7")
        g("v_lshlrev_b32 v6, 7, v6")
        g("v_lshrrev_b32 v7, 1, v3")
        g("v_and_b32 v7, 5, v7")
        g("v_lshlrev_b32 v23, 1, v4")
        g("v_xor_b32 v7, v7, v23")
        g("v_lshl_add_u32 v6, v7, 4, v6")
        g("v_add_u32 v44, s79, v6")
        g("v_xor_b32 v45, 16, v44")

for i in range(5):
    g(f"v_add_u32 v6, {64*i}, v1")
    g("v_mul_u32_u24 v7, 6554, v6")
    g("v_lshrrev_b32 v7, 16, v7")
    g("v_mul_u32_u24 v23, 10, v7")
    g("v_sub_u32 v6, v6, v23")
    g("v_lshlrev_b32 v6, 4, v6")
    comp = 1024 * (i & 3)
    if comp:
        g(f"v_subrev_u32 v6, {comp}, v6")
    g("v_mul_u32_u24 v7, 1280, v7")
    g(f"v_add_u32 v{18+i}, v7, v6")
g("v_mul_u32_u24 v6, 160, v49")
g("v_mul_u32_u24 v7, 40, v50")
g("v_add_u32 v6, v6, v7")
g("v_mul_u32_u24 v7, 3200, v4")
g("v_add_u32 v28, v6, v7")
g("v_add_u32 v29, 51200, v28")
g("v_lshrrev_b32 v7, 1, v4")
g("v_mul_u32_u24 v7, 12800, v7")
g("v_add_u32 v6, v6, v7")
g("v_and_b32 v7, 1, v4")
g("v_mul_u32_u24 v7, 3200, v7")
g("v_add_u32 v30, v6, v7")
g("v_add_u32 v31, 51200, v30")
g("v_lshlrev_b32 v46, 4, v1")
g("s_and_b32 s3, s30, 1")
g("s_lshl_b32 s3, s3, 9")
g("v_and_b32 v6, 1, v4")
g("v_lshlrev_b32 v6, 8, v6")
g("v_lshl_add_u32 v6, v3, 4, v6")
g("v_lshrrev_b32 v7, 1, v4")
g("v_lshl_add_u32 v6, v7, 3, v6")
g("v_add_u32 v47, s3, v6")
g("v_mul_u32_u24 v6, 5120, v3")
g("v_mul_u32_u24 v7, 40, v4")
g("v_add_u32 v48, v6, v7")
g("s_lshl_b32 s3, s31, 5")
g(f"s_add_u32 s3, s3, {KVB}")
g("v_mul_u32_u24 v6, 20, v49")
g("v_add_u32 v6, v6, v50")
g("v_mul_u32_u24 v6, 288, v6")
g("v_lshl_add_u32 v6, v4, 3, v6")
g("v_add_u32 v37, s3, v6")
g("v_add_u32 v37, 16, v37")
g("v_mul_u32_u24 v7, 20, v4")
g("v_add_u32 v6, v7, v49")
g("v_mul_u32_u24 v6, 288, v6")
g("v_lshl_add_u32 v6, v50, 3, v6")
g("v_add_u32 v38, s3, v6")
g("v_add_u32 v6, v7, v50")
g("v_mul_u32_u24 v6, 288, v6")
g("v_lshl_add_u32 v6, v49, 3, v6")
g("v_add_u32 v39, s3, v6")
g("v_add_u32 v39, 23040, v39")
g("s_lshl_b32 s3, s28, 4")
g("s_add_u32 s3, s3, s29")
g("s_lshl_b32 s3, s3, 2")
g("s_add_u32 s3, s3, s31")
g("s_mul_i32 s44, s3, 40960")
g("s_lshl_b32 s49, s3, 7")
g(f"s_add_u32 s49, s49, {WS_F}")
g("s_lshl_b32 s3, s29, 3")
g("s_add_u32 s3, s3, s30")
g("s_lshl_b32 s4, s3, 7")
g(f"s_add_u32 s4, s4, {WS_F+0x4000}")
g("s_mul_i32 s50, s3, 5120")
g(f"s_add_u32 s50, s50, {WS_H}")
g("s_lshl_b32 s5, s30, 8")
g("s_lshl_b32 s6, s29, 4")
g("s_add_u32 s5, s5, s6")
g("s_lshl_b32 s6, s31, 2")
g("s_add_u32 s5, s5, s6")
g(f"s_add_u32 s5, s5, {WS_F+0x8000}")
g("s_cmp_eq_u32 s28, 0")
g("s_cselect_b32 s47, s4, s5")
g("s_cmp_eq_u32 s31, 3")
g("s_cselect_b32 s51, 1, 0")
g("s_or_b32 s51, s51, s28")

frags = []
for st in range(15):
    for f in range(20):
        if st < 10:
            s, sec, t = f // 10, (f // 5) % 2, f % 5
            B = st
        else:
            sec, s, t = f // 10, (f // 5) % 2, f % 5
            B = 2 * (st - 10) + sec
        frags.append((st, f, s, sec, t, B))

NB = opt['nbuf']
def wreg(i):
    return 160 + 4 * (i % NB)

def issue_read(i):
    st, f, s, sec, t, B = frags[i]
    sl = st % 5
    va = "v26" if sl < 3 else "v27"
    imm = (sl % 3) * SLOT + s * 2560 + sec * 160 + 8 * t
    b = wreg(i)
    g(f"ds_read_b64_tr_b16 a[{b}:{b+1}], {va} offset:{imm}")
    g(f"ds_read_b64_tr_b16 a[{b+2}:{b+3}], {va} offset:{imm+1280}")

D = opt['dist']
first = {}
def need(tag):
    while any(getattr(f, 'tag', None) == tag for f in queue):
        queue.pop(0)()
    g.wait_tag(tag)

mark = [0]
lab = [0]
def spin_wait(load, test, what):
    n = lab[0]; lab[0] += 1
    g(f"s_mov_b32 s46, {SPIN}")
    g.label(f"L_spin{n}")
    with g.extra():
        load()
        g.force_wait(vm=0)
        test()
        br(f"s_cbranch_scc1 L_spun{n}")
        g("s_sleep 1")
        g("s_sub_u32 s46, s46, 1")
        g("s_cmp_lg_u32 s46, 0")
        br(f"s_cbranch_scc1 L_spin{n}")
    g.label(f"L_spun{n}")

def run_phase(lo, hi, sid):
    st0 = frags[lo][0]
    need(('w', st0))
    if sid == 0:
        need(('x', 0))
        x_read(0)
        queue.extend(x_ops(3))
    g("s_barrier")
    stamp()
    for i in range(lo, lo + D):
        issue_read(i)
    for i in range(lo, hi):
        st, f, s, sec, t, B = frags[i]
        last = (i + 20 - f) >= hi
        if f == opt['barf']:
            if not last:
                need(('w', st + 1))
                if sid == 0:
                    need(('x', st + 1))
            if st == 11:
                g.force_wait(vm=min(63, min(len(g.vm), nv[0] - mark[0])))
                g("s_cmp_eq_u32 s51, 0")
                br("s_cbranch_scc1 L_nof1")
                with g.extra():
                    g("v_mov_b32 v6, s39")
                    g("v_mov_b32 v7, 0")
                    g("s_mov_b64 exec, 1")
                    g("buffer_store_dword v6, v7, s[24:27], s47 offen sc1")
                    g("s_mov_b64 exec, -1")
                g.label("L_nof1")
            g("s_barrier")
            if opt['prof'] > 1:
                stamp()
            if sid == 0 and not last:
                x_read(st + 1)
            if st >= 1:
                queue.extend(dma_ops(st + 4))
            if sid == 0 and st + 4 < 10:
                queue.extend(x_ops(st + 4))
            if st == 6:
                g("v_mov_b32 v7, 0")
                g("buffer_load_dword v36, v7, s[40:43], 0 offen sc1")
                nv[0] += 1
        b = wreg(i)
        for p in range(2):
            if st < 10:
                acc = 64 + ((sec * 5 + t) * 2 + p) * 4
            else:
                acc = 144 + (t * 2 + p) * 4
            key = (sid, acc)
            c = f"v[{acc}:{acc+3}]" if key in first else "0"
            first[key] = 1
            if st < 10:
                g(f"v_mfma_f32_16x16x32_bf16 v[{acc}:{acc+3}], {xreg(B,s,p)}, a[{b}:{b+3}], {c}")
            else:
                g(f"v_mfma_f32_16x16x32_bf16 v[{acc}:{acc+3}], a[{b}:{b+3}], {xreg(B,s,p)}, {c}")
            if p == 0 and i + D < hi:
                issue_read(i + D)
            if p == 1 and queue and (i % opt['dmagap'] == 0 or len(queue) > 9):
                queue.pop(0)()
    while queue:
        queue.pop(0)()

def phi(regs, tmp):
    for r, t in zip(regs, tmp):
        g(f"v_mul_f32 v{t}, s52, v{r}")
    for r, t in zip(regs, tmp):
        g(f"v_exp_f32_e64 v{t}, v{t} clamp")
        g(f"v_max_f32 v{r}, 0, v{r}")
    for r, t in zip(regs, tmp):
        g(f"v_add_f32 v{r}, v{r}, v{t}")
    for r, t in zip(regs, tmp):
        g(f"v_add_f32 v{r}, s53, v{r}")

run_phase(0, 200, 0)
stamp()
g("v_readfirstlane_b32 s39, v36")
g("s_cmp_lg_u32 s39, 0")
br("s_cbranch_scc1 L_havetag")
def _ld():
    g("v_mov_b32 v7, 0")
    g("buffer_load_dword v36, v7, s[40:43], 0 offen sc1")
def _tst():
    g("v_readfirstlane_b32 s39, v36")
    g("s_cmp_lg_u32 s39, 0")
spin_wait(_ld, _tst, "tag")
g.label("L_havetag")
g(f"s_mov_b32 s52, 0x{LOG2E:08x}")
g(f"s_mov_b32 s53, 0x{EPS:08x}")
g("s_cmp_eq_u32 s28, 1")
br("s_cbranch_scc1 L_m1b")
with g.extra():
    for sec in range(2):
        for t in range(5):
            idx = sec * 5 + t
            for p in range(2):
                a = 64 + (idx * 2 + p) * 4
                d = 184 + idx * 4 + 2 * p
                g(f"v_cvt_pk_bf16_f32 v{d}, v{a}, v{a+1}")
                g(f"v_cvt_pk_bf16_f32 v{d+1}, v{a+2}, v{a+3}")
            for p in range(2):
                d = 184 + idx * 4 + 2 * p
                g(f"ds_write_b64 v37, v[{d}:{d+1}] offset:{sec*23040+t*1152+p*144}")
    g("s_cmp_lg_u32 s31, 3")
    br("s_cbranch_scc1 L_nohalo")
    g("s_add_u32 s3, s50, 2560")
    g("v_subrev_u32 v6, 512, v46")
    g("s_mov_b32 exec_lo, 0")
    for idx in range(10):
        d = 184 + idx * 4
        g(f"buffer_store_dwordx4 v[{d}:{d+3}], v6, s[24:27], {'s50' if idx < 5 else 's3'} offen offset:{(idx%5)*512} sc1")
    g("s_mov_b32 exec_lo, -1")
    g.label("L_nohalo")
    g.force_wait(lg=0)
    br("s_branch L_m1done")
g.label("L_m1b")
with g.extra():
    phi(list(range(64, 104)), list(range(184, 224)))
    for sec in range(2):
        for t in range(5):
            idx = sec * 5 + t
            for p in range(2):
                a = 64 + (idx * 2 + p) * 4
                d = 184 + idx * 4 + 2 * p
                g(f"v_cvt_pk_bf16_f32 v{d}, v{a}, v{a+1}")
                g(f"v_cvt_pk_bf16_f32 v{d+1}, v{a+2}, v{a+3}")
    for r in range(4):
        g(f"v_mov_b32 v{224+r}, 0x3f803f80")
    g("s_lshl_b32 s3, s31, 13")
    g(f"s_add_u32 s3, s3, {PRT}")
    g("v_lshl_add_u32 v6, v4, 2, v50")
    g("v_lshlrev_b32 v6, 4, v6")
    g("v_add_u32 v6, s3, v6")
    def dreg(T):
        return f"a[{192+4*T}:{195+4*T}]" if T < 16 else f"v[{64+4*(T-16)}:{67+4*(T-16)}]"
    for t in range(5):
        for t2 in range(6):
            T = t * 6 + t2
            bsrc = f"v[{204+4*t2}:{207+4*t2}]"
            g(f"v_mfma_f32_16x16x32_bf16 {dreg(T)}, v[{184+4*t}:{187+4*t}], {bsrc}, 0")
    g("s_mov_b32 exec_lo, 0x00f0000f")
    g("s_mov_b32 exec_hi, 0xf0000f00")
    for T in range(30):
        g(f"ds_write_b128 v6, {dreg(T)} offset:{T*256}")
    g("s_mov_b64 exec, -1")
    g.force_wait(lg=0)
    g("s_barrier")
    g("v_lshlrev_b32 v7, 4, v0")
    g(f"v_add_u32 v6, {PRT}, v7")
    for it in range(2):
        for w2 in range(4):
            d = 64 + (it * 4 + w2) * 4
            g(f"ds_read_b128 v[{d}:{d+3}], v6 offset:{w2*8192+it*4096}")
    g("s_lshl_b32 s3, s30, 4")
    g("s_add_u32 s3, s3, s29")
    g("s_lshl_b32 s3, s3, 13")
    g(f"s_add_u32 s3, s3, {WS_K}")
    g("s_add_u32 s4, s3, 4096")
    for it in range(2):
        d = 64 + it * 16
        for r in range(4):
            g(f"v_add_f32 v{d+r}, v{d+r}, v{d+4+r}")
            g(f"v_add_f32 v{d+8+r}, v{d+8+r}, v{d+12+r}")
        for r in range(4):
            g(f"v_add_f32 v{d+r}, v{d+r}, v{d+8+r}")
        g(f"buffer_store_dwordx4 v[{d}:{d+3}], v7, s[24:27], {'s3' if it == 0 else 's4'} offen sc1")
g.label("L_m1done")
mark[0] = nv[0]
stamp()
run_phase(200, 300, 1)
g("s_barrier")
for f in dma_ops(19):
    f()
stamp()
g("s_cmp_eq_u32 s28, 1")
br("s_cbranch_scc1 L_m2b")
with g.extra():
    g("s_cmp_lg_u32 s31, 0")
    br("s_cbranch_scc1 L_halodone")
    g("v_subrev_u32 v23, 32, v37")
    g("s_cmp_lg_u32 s29, 0")
    br("s_cbranch_scc1 L_haloget")
    for r in range(40):
        g(f"v_mov_b32 v{64+r}, 0")
    br("s_branch L_haloput")
    g.label("L_haloget")
    g("s_sub_u32 s4, s47, 1024")
    def _ld():
        g("v_mov_b32 v7, 0")
        g("buffer_load_dword v36, v7, s[24:27], s4 offen sc1")
    def _tst():
        g("v_readfirstlane_b32 s3, v36")
        g("s_cmp_eq_u32 s3, s39")
    spin_wait(_ld, _tst, "halo")
    g("s_sub_u32 s3, s50, 40960")
    g("s_add_u32 s4, s3, 2560")
    g("v_subrev_u32 v6, 512, v46")
    g("s_mov_b32 exec_lo, 0")
    for idx in range(10):
        d = 64 + idx * 4
        g(f"buffer_load_dwordx4 v[{d}:{d+3}], v6, s[24:27], {'s3' if idx < 5 else 's4'} offen offset:{(idx%5)*512} sc1")
    g.force_wait(vm=0)
    g("s_mov_b32 exec_lo, -1")
    g.label("L_haloput")
    g("s_mov_b32 exec_lo, 0")
    for sec in range(2):
        for t in range(5):
            idx = sec * 5 + t
            for p in range(2):
                d = 64 + idx * 4 + 2 * p
                g(f"ds_write_b64 v23, v[{d}:{d+1}] offset:{sec*23040+t*1152+p*144}")
    g("s_mov_b32 exec_lo, -1")
    g.force_wait(lg=0)
    g.label("L_halodone")
    def kreg(p, c, t):
        b = ((p * 3 + c) * 5 + t) * 2
        return f"a[{b}:{b+1}]"
    def vreg(p, c, t):
        b = 60 + ((p * 3 + c) * 5 + t) * 2
        return f"a[{b}:{b+1}]"
    for t in range(5):
        for p in range(2):
            for c in range(3):
                g(f"ds_read_b64_tr_b16 {kreg(p,c,t)}, v38 offset:{t*1152+p*144+16-8*c}")
    for t in range(5):
        for p in range(2):
            a = 144 + (t * 2 + p) * 4
            d = 184 + (p * 5 + t) * 2
            g(f"v_cvt_pk_bf16_f32 v{d}, v{a}, v{a+1}")
            g(f"v_cvt_pk_bf16_f32 v{d+1}, v{a+2}, v{a+3}")
    g("s_or_b32 s3, s29, s31")
    g("s_cmp_eq_u32 s3, 0")
    g("s_cselect_b32 s4, 0, 64")
    g(f"v_mov_b32 v6, 0x{NEG:08x}")
    g("v_lshlrev_b32 v7, 2, v49")
    g("v_add_u32 v7, s4, v7")
    for c in range(3):
        for r in range(4):
            d = 52 + c * 4 + r
            if c == 0:
                g(f"v_cmp_le_u32 vcc, {r}, v50")
                g(f"v_cndmask_b32 v{d}, v6, 0, vcc")
            elif c == 1:
                g(f"v_cmp_le_u32 vcc, {4-r}, v7")
                g(f"v_cndmask_b32 v{d}, v6, 0, vcc")
            else:
                g(f"v_cmp_le_u32 vcc, {8-r}, v7")
                g(f"v_cndmask_b32 v{d}, v6, 0, vcc")
                g(f"v_cmp_gt_u32 vcc, {r}, v50")
                g(f"v_cndmask_b32 v{d}, v6, v{d}, vcc")
    g("v_mov_b32 v240, 0x3f803f80")
    g("v_mov_b32 v241, 0x3f803f80")
    g(f"s_mov_b32 s4, 0x{SCL:08x}")
    for t in range(5):
        for p in range(2):
            for c in range(3):
                g(f"ds_read_b64 {vreg(p,c,t)}, v39 offset:{t*1152+p*144+16-8*c}")
    for t in range(5):
        for p in range(2):
            for c in range(3):
                s = 204 + (p * 3 + c) * 4
                q = 184 + (p * 5 + t) * 2
                cc = f"v[{52+4*c}:{55+4*c}]" if t == 0 else f"v[{s}:{s+3}]"
                g(f"v_mfma_f32_4x4x4_16b_bf16 v[{s}:{s+3}], {kreg(p,c,t)}, v[{q}:{q+1}], {cc}")
    for p in range(2):
        s = 204 + p * 12
        m = 242 + p * 4
        for k in range(4):
            g(f"v_max3_f32 v{m+k}, v{s+3*k}, v{s+3*k+1}, v{s+3*k+2}")
        g(f"v_max3_f32 v{m}, v{m}, v{m+1}, v{m+2}")
        g(f"v_max_f32 v{m}, v{m}, v{m+3}")
        g(f"v_mul_f32 v{m}, s4, v{m}")
    for p in range(2):
        s = 204 + p * 12
        m = 242 + p * 4
        for k in range(12):
            g(f"v_fma_f32 v{s+k}, v{s+k}, s4, -v{m}")
        for k in range(12):
            g(f"v_exp_f32 v{s+k}, v{s+k}")
    for p in range(2):
        s = 204 + p * 12
        for k in range(6):
            g(f"v_cvt_pk_bf16_f32 v{228+p*6+k}, v{s+2*k}, v{s+2*k+1}")
    for c in range(3):
        for p in range(2):
            pr = 228 + (p * 3 + c) * 2
            for t in range(6):
                o = 64 + (p * 6 + t) * 4
                a = vreg(p, c, t) if t < 5 else "v[240:241]"
                cc = "0" if c == 0 else f"v[{o}:{o+3}]"
                g(f"v_mfma_f32_4x4x4_16b_bf16 v[{o}:{o+3}], {a}, v[{pr}:{pr+1}], {cc}")
    br("s_branch L_m2done")
g.label("L_m2b")
with g.extra():
    g("s_lshl_b32 s4, s30, 8")
    g(f"s_add_u32 s4, s4, {WS_F+0x8000}")
    g("v_lshlrev_b32 v7, 2, v1")
    def _ld():
        g("buffer_load_dword v36, v7, s[24:27], s4 offen sc1")
    def _tst():
        g("v_cmp_eq_u32 vcc, s39, v36")
        g("s_cmp_eq_u64 vcc, -1")
    spin_wait(_ld, _tst, "kv")
    g("v_lshlrev_b32 v7, 4, v0")
    g("v_add_u32 v6, 4096, v7")
    g("s_lshl_b32 s3, s30, 17")
    g(f"s_add_u32 s3, s3, {WS_K}")
    for m2 in range(16):
        g(f"buffer_load_dwordx4 v[{64+4*m2}:{67+4*m2}], v7, s[24:27], s3 offen sc1")
        g(f"buffer_load_dwordx4 v[{184+4*m2}:{187+4*m2}], v6, s[24:27], s3 offen sc1")
        if m2 < 15:
            g("s_add_u32 s3, s3, 8192")
    qr = list(range(144, 184))
    for h in range(0, 40, 16):
        phi(qr[h:h+16], list(range(128, 144)))
    for t in range(5):
        for p in range(2):
            a = 144 + (t * 2 + p) * 4
            g(f"v_cvt_pk_bf16_f32 v{a}, v{a}, v{a+1}")
            g(f"v_cvt_pk_bf16_f32 v{a+1}, v{a+2}, v{a+3}")
    for it, b0 in enumerate((64, 184)):
        step = 1
        while step < 16:
            for m2 in range(0, 16, 2 * step):
                for r in range(4):
                    g(f"v_add_f32 v{b0+4*m2+r}, v{b0+4*m2+r}, v{b0+4*(m2+step)+r}")
            step *= 2
        g(f"v_cvt_pk_bf16_f32 v{b0}, v{b0}, v{b0+1}")
        g(f"v_cvt_pk_bf16_f32 v{b0+1}, v{b0+2}, v{b0+3}")
    g("v_lshlrev_b32 v6, 3, v0")
    g(f"v_add_u32 v6, {KVF}, v6")
    g("ds_write_b64 v6, v[64:65]")
    g("ds_write_b64 v6, v[184:185] offset:2048")
    g("v_lshl_add_u32 v7, v4, 2, v50")
    g("v_lshlrev_b32 v7, 3, v7")
    g(f"v_add_u32 v7, {KVF}, v7")
    g.force_wait(lg=0)
    g("s_barrier")
    for T in range(30):
        g(f"ds_read_b64 a[{2*T}:{2*T+1}], v7 offset:{T*128}")
    for t in range(5):
        for t2 in range(6):
            T = t * 6 + t2
            for p in range(2):
                o = 64 + (p * 6 + t2) * 4
                q = 144 + (t * 2 + p) * 4
                cc = "0" if t == 0 else f"v[{o}:{o+3}]"
                g(f"v_mfma_f32_4x4x4_16b_bf16 v[{o}:{o+3}], a[{2*T}:{2*T+1}], v[{q}:{q+1}], {cc}")
    for p in range(2):
        o = 64 + (p * 6 + 5) * 4
        g(f"v_add_f32 v{o}, s53, v{o}")
g.label("L_m2done")
for p in range(2):
    o = 64 + (p * 6 + 5) * 4
    g(f"v_rcp_f32 v{o}, v{o}")
for p in range(2):
    dn = 64 + (p * 6 + 5) * 4
    for t in range(5):
        o = 64 + (p * 6 + t) * 4
        for r in range(4):
            g(f"v_mul_f32 v{o+r}, v{o+r}, v{dn}")
        d = 112 + p * 10 + 2 * t
        g(f"v_cvt_pk_bf16_f32 v{d}, v{o}, v{o+1}")
        g(f"v_cvt_pk_bf16_f32 v{d+1}, v{o+2}, v{o+3}")
g("s_lshr_b32 s3, s30, 1")
g("s_mul_i32 s3, s3, 10240")
g("s_add_u32 s3, s3, s44")
g("s_add_u32 s4, s3, 8192")
g("s_and_b32 s5, s30, 1")
g("s_lshl_b32 s5, s5, 12")
g("s_add_u32 s3, s3, s5")
for p in range(2):
    d = 112 + p * 10
    g(f"buffer_store_dwordx4 v[{d}:{d+3}], v46, s[24:27], s3 offen offset:{p*1024} sc1", tag='o')
    g(f"buffer_store_dwordx4 v[{d+4}:{d+7}], v46, s[24:27], s3 offen offset:{2048+p*1024} sc1", tag='o')
    g(f"buffer_store_dwordx2 v[{d+8}:{d+9}], v47, s[24:27], s4 offen offset:{p*1024} sc1", tag='o')
g("s_lshl_b32 s3, s30, 2")
g("s_add_u32 s3, s3, s49")
g("v_mov_b32 v6, s39")
g("v_mov_b32 v7, 0")
g.force_wait(vm=0)
g("s_mov_b64 exec, 1")
g("buffer_store_dword v6, v7, s[24:27], s3 offen sc1")
g("s_mov_b64 exec, -1")
stamp()
g("s_barrier")
p3 = []
for ks in range(20):
    for t in range(5):
        p3.append((ks, t))
def p3_read(i):
    ks, t = p3[i]
    j, q = ks // 5, ks % 5
    b = wreg(i)
    if q < 4:
        va = "v28" if j < 2 else "v29"
        imm = (160 * (j & 1) + (0, 8, 80, 88)[q]) * 160 + 8 * t
        d2 = 640
    else:
        va = "v30" if j < 2 else "v31"
        imm = (160 * (j & 1) + 16) * 160 + 8 * t
        d2 = 6400
    g(f"ds_read_b64_tr_b16 a[{b}:{b+1}], {va} offset:{imm}")
    g(f"ds_read_b64_tr_b16 a[{b+2}:{b+3}], {va} offset:{imm+d2}")
for i in range(D):
    p3_read(i)
g("v_lshlrev_b32 v7, 2, v1")
g("v_min_u32 v7, 28, v7")
def _ld():
    g("buffer_load_dword v36, v7, s[24:27], s49 offen sc1")
def _tst():
    g("v_cmp_eq_u32 vcc, s39, v36")
    g("s_cmp_eq_u64 vcc, -1")
spin_wait(_ld, _tst, "o")
g.force_wait(vm=0)
stamp()
g("s_mov_b32 s3, s44")
for k in range(40):
    g(f"buffer_load_dwordx4 a[{4*k}:{4*k+3}], v46, s[24:27], s3 offen offset:{(k%4)*1024} sc1")
    if k % 4 == 3 and k < 39:
        g("s_add_u32 s3, s3, 4096")
for i in range(100):
    ks, t = p3[i]
    b = wreg(i)
    for p in range(2):
        acc = 144 + (t * 2 + p) * 4
        c = "0" if ks == 0 else f"v[{acc}:{acc+3}]"
        o = (ks * 2 + p) * 4
        g(f"v_mfma_f32_16x16x32_bf16 v[{acc}:{acc+3}], a[{b}:{b+3}], a[{o}:{o+3}], {c}")
        if p == 0 and i + D < 100:
            p3_read(i + D)
stamp()
g("s_mul_i32 s3, s48, 2560")
g("s_mul_i32 s4, s28, 1280")
g("s_add_u32 s3, s3, s4")
g("s_mul_i32 s4, s30, 160")
g("s_add_u32 s3, s3, s4")
for p in range(2):
    for t in range(5):
        a = 144 + (t * 2 + p) * 4
        d = 112 + p * 10 + 2 * t
        g(f"v_cvt_pk_bf16_f32 v{d}, v{a}, v{a+1}")
        g(f"v_cvt_pk_bf16_f32 v{d+1}, v{a+2}, v{a+3}")
    d = 112 + p * 10
    g(f"buffer_store_dwordx4 v[{d}:{d+3}], v48, s[20:23], s3 offen offset:{p*2560}")
    g(f"buffer_store_dwordx4 v[{d+4}:{d+7}], v48, s[20:23], s3 offen offset:{p*2560+16}")
    g(f"buffer_store_dwordx2 v[{d+8}:{d+9}], v48, s[20:23], s3 offen offset:{p*2560+32}")
if opt['prof']:
    g.force_wait(vm=0)
    stamp()
    g("s_memrealtime s[88:89]")
    g.wait_lg(0)
    g("v_writelane_b32 v5, s92, 62")
    g("v_writelane_b32 v5, s88, 63")
    g("s_lshl_b32 s3, s2, 2")
    g("s_add_u32 s3, s3, s31")
    g("s_lshl_b32 s3, s3, 8")
    g(f"s_add_u32 s3, s3, {WS_P}")
    g("v_lshlrev_b32 v6, 2, v1")
    g("buffer_store_dword v5, v6, s[24:27], s3 offen")
g.label("L_end")
g("s_endpgm")
g.raw(f""".section .rodata,"a"
.p2align 6
.amdhsa_kernel {NAME}
  .amdhsa_next_free_vgpr 512
  .amdhsa_next_free_sgpr 96
  .amdhsa_accum_offset 256
  .amdhsa_group_segment_fixed_size 0
  .amdhsa_kernarg_size 72
  .amdhsa_user_sgpr_count 2
  .amdhsa_user_sgpr_kernarg_segment_ptr 1
  .amdhsa_system_sgpr_workgroup_id_x 1
.end_amdhsa_kernel""")
sys.stdout.write(g.text())
sys.stderr.write(f"bytes~{g.nbytes} stats={g.stats}\n")
```

```python
import sys
from asmgen import Asm

opt = dict(dist=6, nbuf=8, dmagap=2, pre=1, barf=14, init=2, prof=0, rot=1, fst=12, cf=4)
for a in sys.argv[1:]:
    k, v = a.split('=')
    opt[k] = int(v)

NAME = "concat_heads__sliding_local_dilated__linear_attn_block__prompt_kernel"
SLOT = 20544
XBASE = 5 * SLOT
KVB = XBASE
PRT = XBASE
KVF = XBASE + 32768
WS_O, WS_H, WS_K, WS_F, WS_P = 0, 0x500000, 0x600000, 0x700000, 0x800000
SPIN = 1 << 14
LOG2E = 0x3FB8AA3B
SCL = 0x3EA52B5C
EPS = 0x358637BD
NEG = 0xF149F2CA

g = Asm()
def br(text):
    g.flush_hazards()
    g(text)
g.raw("; @launch grid=(256,1,1) block=(256,1,1) lds=163840")
g.raw('.amdgcn_target "amdgcn-amd-amdhsa--gfx950"')
g.raw(f".text\n.globl {NAME}\n.p2align 8\n.type {NAME},@function\n{NAME}:")

nstamp = [0]
def stamp():
    if opt['prof']:
        k = nstamp[0]; nstamp[0] += 1
        g("s_memtime s[88:89]")
        g.wait_lg(0)
        g("s_sub_u32 s88, s88, s90")
        g(f"v_writelane_b32 v5, s88, {k}")

if opt['prof']:
    g("s_memrealtime s[92:93]")
    g("s_memtime s[90:91]")
g("s_cmp_ge_u32 s2, 256")
br("s_cbranch_scc1 L_end")
g("s_and_b32 s3, s2, 7")
g("s_lshr_b32 s4, s2, 3")
g("s_lshr_b32 s28, s3, 2")
g("s_mul_i32 s5, s28, 24")
g("s_add_u32 s6, s0, s5")
g("s_addc_u32 s7, s1, 0")
g("s_load_dwordx4 s[64:67], s[6:7], 0")
g("s_load_dwordx2 s[68:69], s[6:7], 16")
g("s_load_dwordx4 s[72:75], s[0:1], 48")
g("s_load_dwordx2 s[76:77], s[0:1], 64")
g("s_and_b32 s3, s3, 3")
g("s_lshl_b32 s3, s3, 2")
g("s_lshr_b32 s5, s4, 3")
g("s_add_u32 s29, s3, s5")
g("s_and_b32 s30, s4, 7")
g("s_add_u32 s78, s30, s5")
g("s_cmp_ge_u32 s78, 5")
g("s_cselect_b32 s3, 5, 0")
g("s_sub_u32 s78, s78, s3")
g("s_cmp_ge_u32 s78, 5")
g("s_cselect_b32 s3, 5, 0")
g("s_sub_u32 s78, s78, s3")
if not opt['rot']:
    g("s_mov_b32 s78, 0")
g("v_and_b32 v1, 63, v0")
g("v_lshrrev_b32 v2, 6, v0")
g("v_and_b32 v3, 15, v0")
g("v_readfirstlane_b32 s31, v2")
g("v_bfe_u32 v4, v0, 4, 2")
g("v_lshrrev_b32 v6, 3, v1")
g("v_mul_u32_u24 v6, 2560, v6")
g("v_and_b32 v7, 7, v1")
g("v_and_b32 v23, 1, v4")
g("v_xor_b32 v7, v7, v23")
g("v_lshl_add_u32 v40, v7, 4, v6")
g("v_add_u32 v41, 256, v40")
g("v_xor_b32 v7, 4, v7")
g("v_lshl_add_u32 v42, v7, 4, v6")
g(f"v_add_u32 v42, {16*1280-2048}, v42")
g("v_add_u32 v43, 256, v42")
for i in range(5):
    g(f"v_add_u32 v6, {64*i}, v1")
    g("v_mul_u32_u24 v7, 3277, v6")
    g("v_lshrrev_b32 v7, 16, v7")
    g("v_mul_u32_u24 v23, 20, v7")
    g("v_sub_u32 v6, v6, v23")
    g("v_cmp_le_u32 vcc, 10, v6")
    g("v_cndmask_b32 v23, 0, 1, vcc")
    g("v_mul_u32_u24 v24, 10, v23")
    g("v_sub_u32 v6, v6, v24")
    g("v_lshlrev_b32 v6, 4, v6")
    comp = 1024 * (i & 3)
    if comp:
        g(f"v_subrev_u32 v6, {comp}, v6")
    g(f"v_mul_u32_u24 v24, 3840, v7")
    g(f"v_add_u32 v{8+i}, v24, v6")
    g(f"v_mul_u32_u24 v25, 1280, v23")
    g(f"v_add_u32 v{8+i}, v{8+i}, v25")
    g(f"v_lshl_add_u32 v7, v23, 6, v7")
    g(f"v_mul_u32_u24 v24, 3840, v7")
    g(f"v_add_u32 v{13+i}, v24, v6")
g("s_lshl_b32 s3, s29, 7")
g("s_lshl_b32 s4, s31, 5")
g("s_add_u32 s48, s3, s4")
g("s_mul_i32 s32, s48, 1280")
g("s_mul_i32 s4, s30, 160")
g("s_mul_i32 s5, s31, 61440")
g("s_add_u32 s34, s5, s4")
g("s_add_u32 s33, s34, 1280")
g("s_mul_i32 s5, s31, 40960")
g("s_add_u32 s35, s5, s4")
g("s_add_u32 s4, s31, 1")
g("s_lshr_b32 s4, s4, 1")
g("s_lshl_b32 s4, s4, 5")
g("s_mul_i32 s45, s31, 5120")
g("s_add_u32 s36, s4, s45")
g("s_mul_i32 s79, s31, 12288")
g(f"s_add_u32 s79, s79, {XBASE}")
for u in range(5):
    g(f"s_add_u32 s{80+u}, s78, {u}")
    g(f"s_cmp_ge_u32 s{80+u}, 5")
    g("s_cselect_b32 s3, 5, 0")
    g(f"s_sub_u32 s{80+u}, s{80+u}, s3")
g.wait_lg(0)
for base, lo, n in ((8, 64, 2621440), (12, 66, 2457600), (16, 68, 819200), (20, 72, 5242880),
                    (24, 76, 1 << 24), (40, 74, 256)):
    g(f"s_mov_b32 s{base}, s{lo}")
    g(f"s_mov_b32 s{base+1}, s{lo+1}")
    g(f"s_mov_b32 s{base+2}, {n}")
    g(f"s_mov_b32 s{base+3}, 0x00020000")

nv = [0]
_call = g.__call__

def dma_ops(st):
    if st < 10:
        srd, vb, sb, u, mul, add = "s[12:15]", 8, "s33", st // 2, 128 * 3840, (st % 2) * 64 * 3840
    elif st < 15:
        srd, vb, sb, u, mul, add = "s[12:15]", 13, "s34", st - 10, 128 * 3840, 0
    sl = st % 5
    def mk(i):
        def f():
            if st < 15:
                if i == 0:
                    g(f"s_mul_i32 s37, s{80+u}, {mul}")
                    g(f"s_add_u32 s37, s37, {sb}")
                    if add:
                        g(f"s_add_u32 s37, s37, {add}")
                g(f"s_add_u32 m0, s36, {sl*SLOT + (4096 if i == 4 else 0)}")
                off = 1024 * (i & 3)
                g(f"buffer_load_dwordx4 v{vb+i}, {srd}, s37 offen offset:{off} lds", tag=('w', st))
            else:
                uu = st - 15
                if i == 0:
                    g(f"s_add_u32 s37, s35, {uu*128*1280}")
                g(f"s_add_u32 m0, s45, {uu*20480 + (4096 if i == 4 else 0)}")
                off = 1024 * (i & 3)
                g(f"buffer_load_dwordx4 v{18+i}, s[16:19], s37 offen offset:{off} lds", tag=('w', st))
            nv[0] += 1
        f.tag = ('w', st)
        return f
    return [mk(i) for i in range(5)]

def xreg(B, s, p):
    b = ((B * 2 + s) * 2 + p) * 4
    return f"a[{b}:{b+3}]"

def xregs(B):
    return {('a', i) for i in range(B * 16, B * 16 + 16)}

def x_ops(B):
    def mk(i):
        def f():
            if i == 0:
                if B >= 3:
                    g._auto_wait(xregs(B - 3))
                g(f"s_lshl_b32 s38, s{80+B//2}, 8")
                g(f"s_add_u32 s38, s38, s32")
                if B % 2:
                    g(f"s_add_u32 s38, s38, 128")
            g(f"s_add_u32 m0, s79, {(B%3)*4096}")
            g(f"buffer_load_dwordx4 v{40+i}, s[8:11], s38 offen offset:{1024*i} lds", tag=('x', B))
            nv[0] += 1
        f.tag = ('x', B)
        return f
    return [mk(i) for i in range(4)]

def x_read(B):
    for s in range(2):
        for p in range(2):
            g(f"ds_read_b128 {xreg(B,s,p)}, v{44+s} offset:{(B%3)*4096+1024*p}")

queue = []
for st in range(5):
    if st < 3:
        for f in x_ops(st):
            f() if st < opt['init'] else queue.append(f)
    for f in dma_ops(st):
        f() if st < opt['init'] else queue.append(f)
    if st == 0:
        if opt['pre']:
            g("s_getpc_b64 s[86:87]")
            g.raw("L_pc0:")
            g("s_lshr_b32 s3, s2, 3")
            g("s_and_b32 s3, s3, 7")
            g("s_lshl_b32 s3, s3, 12")
            g("v_lshlrev_b32 v6, 4, v0")
            g("v_add_u32 v6, s3, v6")
            g("v_min_u32 v6, L_end-L_pc0-16, v6")
            g("global_load_dwordx4 v[32:35], v6, s[86:87]")
        g("s_cmp_lg_u32 s2, 0")
        br("s_cbranch_scc1 L_notag")
        g("s_cmp_lg_u32 s31, 0")
        br("s_cbranch_scc1 L_notag")
        with g.extra():
            g("s_memrealtime s[4:5]")
            g.wait_lg(0)
            g("s_or_b32 s4, s4, 1")
            g("v_mov_b32 v6, s4")
            g("v_mov_b32 v7, 0")
            g("s_mov_b64 exec, 1")
            g("buffer_store_dword v6, v7, s[40:43], 0 offen sc1")
            g("s_mov_b64 exec, -1")
        g.label("L_notag")
        g("v_bfe_u32 v49, v0, 2, 2")
        g("v_and_b32 v50, 3, v0")
        g("v_mul_u32_u24 v6, 320, v49")
        g("v_mul_u32_u24 v7, 40, v50")
        g("v_add_u32 v6, v6, v7")
        g("v_mul_u32_u24 v7, 5120, v4")
        g("v_add_u32 v6, v6, v7")
        g("v_add_u32 v7, 1, v4")
        g("v_lshrrev_b32 v7, 1, v7")
        g("v_lshl_add_u32 v26, v7, 5, v6")
        g(f"v_add_u32 v27, {3*SLOT}, v26")
        g("v_lshrrev_b32 v6, 3, v3")
        g("v_lshlrev_b32 v6, 4, v6")
        g("v_and_b32 v7, 7, v3")
        g("v_add_u32 v6, v6, v7")
        g("v_lshlrev_b32 v6, 7, v6")
        g("v_lshrrev_b32 v7, 1, v3")
        g("v_and_b32 v7, 5, v7")
        g("v_lshlrev_b32 v23, 1, v4")
        g("v_xor_b32 v7, v7, v23")
        g("v_lshl_add_u32 v6, v7, 4, v6")
        g("v_add_u32 v44, s79, v6")
        g("v_xor_b32 v45, 16, v44")

g("s_lshl_b32 s54, s30, 13")
g(f"s_add_u32 s54, s54, {WS_K}")
g("s_lshl_b32 s55, s30, 7")
g("s_lshl_b32 s3, s31, 2")
g("s_add_u32 s55, s55, s3")
g(f"s_add_u32 s55, s55, {WS_F+0xA000}")
g("s_xor_b32 s3, s28, 1")
g("s_or_b32 s56, s3, s29")
g("v_lshlrev_b32 v51, 2, v0")
g("s_cmp_lg_u32 s56, 0")
br("s_cbranch_scc1 L_nozero")
with g.extra():
    g("v_mov_b32 v6, 0")
    g("s_add_u32 s3, s54, 4096")
    for k in range(8):
        g(f"buffer_store_dword v6, v51, s[24:27], {'s54' if k < 4 else 's3'} offen offset:{(k%4)*1024} sc1")
g.label("L_nozero")
for i in range(5):
    g(f"v_add_u32 v6, {64*i}, v1")
    g("v_mul_u32_u24 v7, 6554, v6")
    g("v_lshrrev_b32 v7, 16, v7")
    g("v_mul_u32_u24 v23, 10, v7")
    g("v_sub_u32 v6, v6, v23")
    g("v_lshlrev_b32 v6, 4, v6")
    comp = 1024 * (i & 3)
    if comp:
        g(f"v_subrev_u32 v6, {comp}, v6")
    g("v_mul_u32_u24 v7, 1280, v7")
    g(f"v_add_u32 v{18+i}, v7, v6")
g("v_mul_u32_u24 v6, 160, v49")
g("v_mul_u32_u24 v7, 40, v50")
g("v_add_u32 v6, v6, v7")
g("v_mul_u32_u24 v7, 3200, v4")
g("v_add_u32 v28, v6, v7")
g("v_add_u32 v29, 51200, v28")
g("v_lshrrev_b32 v7, 1, v4")
g("v_mul_u32_u24 v7, 12800, v7")
g("v_add_u32 v6, v6, v7")
g("v_and_b32 v7, 1, v4")
g("v_mul_u32_u24 v7, 3200, v7")
g("v_add_u32 v30, v6, v7")
g("v_add_u32 v31, 51200, v30")
g("v_lshlrev_b32 v46, 4, v1")
g("s_and_b32 s3, s30, 1")
g("s_lshl_b32 s3, s3, 9")
g("v_and_b32 v6, 1, v4")
g("v_lshlrev_b32 v6, 8, v6")
g("v_lshl_add_u32 v6, v3, 4, v6")
g("v_lshrrev_b32 v7, 1, v4")
g("v_lshl_add_u32 v6, v7, 3, v6")
g("v_add_u32 v47, s3, v6")
g("v_mul_u32_u24 v6, 5120, v3")
g("v_mul_u32_u24 v7, 40, v4")
g("v_add_u32 v48, v6, v7")
g("s_lshl_b32 s3, s31, 5")
g(f"s_add_u32 s3, s3, {KVB}")
g("v_mul_u32_u24 v6, 20, v49")
g("v_add_u32 v6, v6, v50")
g("v_mul_u32_u24 v6, 288, v6")
g("v_lshl_add_u32 v6, v4, 3, v6")
g("v_add_u32 v37, s3, v6")
g("v_add_u32 v37, 16, v37")
g("v_mul_u32_u24 v7, 20, v4")
g("v_add_u32 v6, v7, v49")
g("v_mul_u32_u24 v6, 288, v6")
g("v_lshl_add_u32 v6, v50, 3, v6")
g("v_add_u32 v38, s3, v6")
g("v_add_u32 v6, v7, v50")
g("v_mul_u32_u24 v6, 288, v6")
g("v_lshl_add_u32 v6, v49, 3, v6")
g("v_add_u32 v39, s3, v6")
g("v_add_u32 v39, 23040, v39")
g("s_lshl_b32 s3, s28, 4")
g("s_add_u32 s3, s3, s29")
g("s_lshl_b32 s3, s3, 2")
g("s_add_u32 s3, s3, s31")
g("s_mul_i32 s44, s3, 40960")
g("s_lshl_b32 s49, s3, 7")
g(f"s_add_u32 s49, s49, {WS_F}")
g("s_lshl_b32 s3, s29, 3")
g("s_add_u32 s3, s3, s30")
g("s_lshl_b32 s4, s3, 7")
g(f"s_add_u32 s4, s4, {WS_F+0x4000}")
g("s_mul_i32 s50, s3, 5120")
g(f"s_add_u32 s50, s50, {WS_H}")
g("s_lshl_b32 s5, s30, 8")
g("s_lshl_b32 s6, s29, 4")
g("s_add_u32 s5, s5, s6")
g("s_lshl_b32 s6, s31, 2")
g("s_add_u32 s5, s5, s6")
g(f"s_add_u32 s5, s5, {WS_F+0x8000}")
g("s_cmp_eq_u32 s28, 0")
g("s_cselect_b32 s47, s4, s5")
g("s_cmp_eq_u32 s31, 3")
g("s_cselect_b32 s51, 1, 0")
g("s_or_b32 s51, s51, s28")

frags = []
for st in range(15):
    for f in range(20):
        if st < 10:
            s, sec, t = f // 10, (f // 5) % 2, f % 5
            B = st
        else:
            sec, s, t = f // 10, (f // 5) % 2, f % 5
            B = 2 * (st - 10) + sec
        frags.append((st, f, s, sec, t, B))

NB = opt['nbuf']
def wreg(i):
    return 160 + 4 * (i % NB)

def issue_read(i):
    st, f, s, sec, t, B = frags[i]
    sl = st % 5
    va = "v26" if sl < 3 else "v27"
    imm = (sl % 3) * SLOT + s * 2560 + sec * 160 + 8 * t
    b = wreg(i)
    g(f"ds_read_b64_tr_b16 a[{b}:{b+1}], {va} offset:{imm}")
    g(f"ds_read_b64_tr_b16 a[{b+2}:{b+3}], {va} offset:{imm+1280}")

D = opt['dist']
first = {}
def need(tag):
    while any(getattr(f, 'tag', None) == tag for f in queue):
        queue.pop(0)()
    g.wait_tag(tag)

mark = [0]
lab = [0]
def spin_wait(load, test, what):
    n = lab[0]; lab[0] += 1
    g(f"s_mov_b32 s46, {SPIN}")
    g.label(f"L_spin{n}")
    with g.extra():
        load()
        g.force_wait(vm=0)
        test()
        br(f"s_cbranch_scc1 L_spun{n}")
        g("s_sleep 1")
        g("s_sub_u32 s46, s46, 1")
        g("s_cmp_lg_u32 s46, 0")
        br(f"s_cbranch_scc1 L_spin{n}")
    g.label(f"L_spun{n}")

def run_phase(lo, hi, sid):
    st0 = frags[lo][0]
    need(('w', st0))
    if sid == 0:
        need(('x', 0))
        x_read(0)
        queue.extend(x_ops(3))
    g("s_barrier")
    stamp()
    for i in range(lo, lo + D):
        issue_read(i)
    for i in range(lo, hi):
        st, f, s, sec, t, B = frags[i]
        last = (i + 20 - f) >= hi
        if f == opt['barf']:
            if not last:
                need(('w', st + 1))
                if sid == 0:
                    need(('x', st + 1))
            if st == 4:
                g("v_readfirstlane_b32 s39, v36")
                g("s_cmp_lg_u32 s39, 0")
                br("s_cbranch_scc1 L_havetag")
                def _ld():
                    g("v_mov_b32 v7, 0")
                    g("buffer_load_dword v36, v7, s[40:43], 0 offen sc1")
                def _tst():
                    g("v_readfirstlane_b32 s39, v36")
                    g("s_cmp_lg_u32 s39, 0")
                spin_wait(_ld, _tst, "tag")
                g.label("L_havetag")
                g("s_cmp_lg_u32 s56, 0")
                br("s_cbranch_scc1 L_nozf")
                with g.extra():
                    g("v_mov_b32 v6, s39")
                    g("v_mov_b32 v7, 0")
                    g("s_mov_b64 exec, 1")
                    g("buffer_store_dword v6, v7, s[24:27], s55 offen sc1")
                    g("s_mov_b64 exec, -1")
                g.label("L_nozf")
            if st == opt['fst']:
                g.force_wait(vm=min(63, min(len(g.vm), nv[0] - mark[0])))
                g("s_cmp_eq_u32 s51, 0")
                br("s_cbranch_scc1 L_nof1")
                with g.extra():
                    g("v_mov_b32 v6, s39")
                    g("v_mov_b32 v7, 0")
                    g("s_mov_b64 exec, 1")
                    g("buffer_store_dword v6, v7, s[24:27], s47 offen sc1")
                    g("s_mov_b64 exec, -1")
                g.label("L_nof1")
            g("s_barrier")
            if opt['prof'] > 1:
                stamp()
            if sid == 0 and not last:
                x_read(st + 1)
            if st == 1:
                g("v_mov_b32 v7, 0")
                g("buffer_load_dword v36, v7, s[40:43], 0 offen sc1")
                nv[0] += 1
            if st == 8:
                g("v_mov_b32 v7, 0")
                g("buffer_load_dword v36, v7, s[24:27], s55 offen sc1")
                nv[0] += 1
            if st >= 1:
                queue.extend(dma_ops(st + 4))
            if sid == 0 and st + 4 < 10:
                queue.extend(x_ops(st + 4))
        if st == 14 and f == opt['cf']:
            g("buffer_load_dword v36, v25, s[24:27], s57 offen sc1")
            nv[0] += 1
        b = wreg(i)
        for p in range(2):
            if st < 10:
                acc = 64 + ((sec * 5 + t) * 2 + p) * 4
            else:
                acc = 144 + (t * 2 + p) * 4
            key = (sid, acc)
            c = f"v[{acc}:{acc+3}]" if key in first else "0"
            first[key] = 1
            if st < 10:
                g(f"v_mfma_f32_16x16x32_bf16 v[{acc}:{acc+3}], {xreg(B,s,p)}, a[{b}:{b+3}], {c}")
            else:
                g(f"v_mfma_f32_16x16x32_bf16 v[{acc}:{acc+3}], a[{b}:{b+3}], {xreg(B,s,p)}, {c}")
            if p == 0 and i + D < hi:
                issue_read(i + D)
            if p == 1 and queue and (i % opt['dmagap'] == 0 or len(queue) > 9):
                queue.pop(0)()
    while queue:
        queue.pop(0)()

def phi(regs, tmp):
    for r, t in zip(regs, tmp):
        g(f"v_mul_f32 v{t}, s52, v{r}")
    for r, t in zip(regs, tmp):
        g(f"v_exp_f32_e64 v{t}, v{t} clamp")
        g(f"v_max_f32 v{r}, 0, v{r}")
    for r, t in zip(regs, tmp):
        g(f"v_add_f32 v{r}, v{r}, v{t}")
    for r, t in zip(regs, tmp):
        g(f"v_add_f32 v{r}, s53, v{r}")

run_phase(0, 200, 0)
stamp()
g("s_sub_u32 s3, s47, 1024")
g("s_lshl_b32 s4, s30, 8")
g(f"s_add_u32 s4, s4, {WS_F+0x8000}")
g("s_cmp_eq_u32 s28, 0")
g("s_cselect_b32 s57, s3, s4")
g("v_lshlrev_b32 v25, 2, v1")
g("v_mul_u32_u24 v25, s28, v25")
g(f"s_mov_b32 s52, 0x{LOG2E:08x}")
g(f"s_mov_b32 s53, 0x{EPS:08x}")
g("s_cmp_eq_u32 s28, 1")
br("s_cbranch_scc1 L_m1b")
with g.extra():
    for sec in range(2):
        for t in range(5):
            idx = sec * 5 + t
            for p in range(2):
                a = 64 + (idx * 2 + p) * 4
                d = 184 + idx * 4 + 2 * p
                g(f"v_cvt_pk_bf16_f32 v{d}, v{a}, v{a+1}")
                g(f"v_cvt_pk_bf16_f32 v{d+1}, v{a+2}, v{a+3}")
            for p in range(2):
                d = 184 + idx * 4 + 2 * p
                g(f"ds_write_b64 v37, v[{d}:{d+1}] offset:{sec*23040+t*1152+p*144}")
    g("s_cmp_lg_u32 s31, 3")
    br("s_cbranch_scc1 L_nohalo")
    g("s_add_u32 s3, s50, 2560")
    g("v_subrev_u32 v6, 512, v46")
    g("s_mov_b32 exec_lo, 0")
    for idx in range(10):
        d = 184 + idx * 4
        g(f"buffer_store_dwordx4 v[{d}:{d+3}], v6, s[24:27], {'s50' if idx < 5 else 's3'} offen offset:{(idx%5)*512} sc1")
    g("s_mov_b32 exec_lo, -1")
    g.label("L_nohalo")
    g.force_wait(lg=0)
    br("s_branch L_m1done")
g.label("L_m1b")
with g.extra():
    phi(list(range(64, 104)), list(range(184, 224)))
    for sec in range(2):
        for t in range(5):
            idx = sec * 5 + t
            for p in range(2):
                a = 64 + (idx * 2 + p) * 4
                d = 184 + idx * 4 + 2 * p
                g(f"v_cvt_pk_bf16_f32 v{d}, v{a}, v{a+1}")
                g(f"v_cvt_pk_bf16_f32 v{d+1}, v{a+2}, v{a+3}")
    for r in range(4):
        g(f"v_mov_b32 v{224+r}, 0x3f803f80")
    g("s_lshl_b32 s3, s31, 13")
    g(f"s_add_u32 s3, s3, {PRT}")
    g("v_lshl_add_u32 v6, v4, 2, v50")
    g("v_lshlrev_b32 v6, 4, v6")
    g("v_add_u32 v6, s3, v6")
    def dreg(T):
        return f"a[{192+4*T}:{195+4*T}]" if T < 16 else f"v[{64+4*(T-16)}:{67+4*(T-16)}]"
    for t in range(5):
        for t2 in range(6):
            T = t * 6 + t2
            bsrc = f"v[{204+4*t2}:{207+4*t2}]"
            g(f"v_mfma_f32_16x16x32_bf16 {dreg(T)}, v[{184+4*t}:{187+4*t}], {bsrc}, 0")
    g("s_mov_b32 exec_lo, 0x00f0000f")
    g("s_mov_b32 exec_hi, 0xf0000f00")
    for T in range(30):
        g(f"ds_write_b128 v6, {dreg(T)} offset:{T*256}")
    g("s_mov_b64 exec, -1")
    g.force_wait(lg=0)
    g("s_barrier")
    g("v_lshlrev_b32 v7, 4, v0")
    g(f"v_add_u32 v6, {PRT}, v7")
    for it in range(2):
        for w2 in range(4):
            d = 64 + (it * 4 + w2) * 4
            g(f"ds_read_b128 v[{d}:{d+3}], v6 offset:{w2*8192+it*4096}")
    g("v_readfirstlane_b32 s3, v36")
    g("s_cmp_eq_u32 s3, s39")
    br("s_cbranch_scc1 L_zok")
    def _ld():
        g("v_mov_b32 v7, 0")
        g("buffer_load_dword v36, v7, s[24:27], s55 offen sc1")
    def _tst():
        g("v_readfirstlane_b32 s3, v36")
        g("s_cmp_eq_u32 s3, s39")
    spin_wait(_ld, _tst, "zero")
    g.label("L_zok")
    g("s_add_u32 s4, s54, 4096")
    for it in range(2):
        d = 64 + it * 16
        for r in range(4):
            g(f"v_add_f32 v{d+r}, v{d+r}, v{d+4+r}")
            g(f"v_add_f32 v{d+8+r}, v{d+8+r}, v{d+12+r}")
        for r in range(4):
            g(f"v_add_f32 v{d+r}, v{d+r}, v{d+8+r}")
        for r in range(4):
            k = r * 2 + it
            g(f"buffer_atomic_add_f32 v{d+r}, v51, s[24:27], {'s54' if k < 4 else 's4'} offen offset:{(k%4)*1024} sc1")
g.label("L_m1done")
mark[0] = nv[0]
stamp()
run_phase(200, 300, 1)
g("s_barrier")
for f in dma_ops(19):
    f()
stamp()
g("s_cmp_eq_u32 s28, 1")
br("s_cbranch_scc1 L_m2b")
with g.extra():
    g("s_cmp_lg_u32 s31, 0")
    br("s_cbranch_scc1 L_halo1")
    g("s_cmp_lg_u32 s29, 0")
    br("s_cbranch_scc1 L_haloget")
    for r in range(40):
        g(f"v_mov_b32 v{64+r}, 0")
    br("s_branch L_halo1")
    g.label("L_haloget")
    g("v_readfirstlane_b32 s3, v36")
    g("s_cmp_eq_u32 s3, s39")
    br("s_cbranch_scc1 L_hok")
    def _ld():
        g("buffer_load_dword v36, v25, s[24:27], s57 offen sc1")
    def _tst():
        g("v_readfirstlane_b32 s3, v36")
        g("s_cmp_eq_u32 s3, s39")
    spin_wait(_ld, _tst, "halo")
    g.label("L_hok")
    g("s_sub_u32 s3, s50, 40960")
    g("s_add_u32 s4, s3, 2560")
    g("v_subrev_u32 v6, 512, v46")
    g("s_mov_b32 exec_lo, 0")
    for idx in range(10):
        d = 64 + idx * 4
        g.raw(f"  buffer_load_dwordx4 v[{d}:{d+3}], v6, s[24:27], {'s3' if idx < 5 else 's4'} offen offset:{(idx%5)*512} sc1")
    g("s_mov_b32 exec_lo, -1")
    g.label("L_halo1")
    for t in range(5):
        for p in range(2):
            a = 144 + (t * 2 + p) * 4
            d = 184 + (p * 5 + t) * 2
            g(f"v_cvt_pk_bf16_f32 v{d}, v{a}, v{a+1}")
            g(f"v_cvt_pk_bf16_f32 v{d+1}, v{a+2}, v{a+3}")
    g("s_or_b32 s3, s29, s31")
    g("s_cmp_eq_u32 s3, 0")
    g("s_cselect_b32 s4, 0, 64")
    g(f"v_mov_b32 v6, 0x{NEG:08x}")
    g("v_lshlrev_b32 v7, 2, v49")
    g("v_add_u32 v7, s4, v7")
    for c in range(3):
        for r in range(4):
            d = 52 + c * 4 + r
            if c == 0:
                g(f"v_cmp_le_u32 vcc, {r}, v50")
                g(f"v_cndmask_b32 v{d}, v6, 0, vcc")
            elif c == 1:
                g(f"v_cmp_le_u32 vcc, {4-r}, v7")
                g(f"v_cndmask_b32 v{d}, v6, 0, vcc")
            else:
                g(f"v_cmp_le_u32 vcc, {8-r}, v7")
                g(f"v_cndmask_b32 v{d}, v6, 0, vcc")
                g(f"v_cmp_gt_u32 vcc, {r}, v50")
                g(f"v_cndmask_b32 v{d}, v6, v{d}, vcc")
    g("v_mov_b32 v240, 0x3f803f80")
    g("v_mov_b32 v241, 0x3f803f80")
    g(f"s_mov_b32 s4, 0x{SCL:08x}")
    g("s_cmp_lg_u32 s31, 0")
    br("s_cbranch_scc1 L_halodone")
    g("v_subrev_u32 v23, 32, v37")
    g.force_wait(vm=0)
    g("s_mov_b32 exec_lo, 0")
    for sec in range(2):
        for t in range(5):
            idx = sec * 5 + t
            for p in range(2):
                d = 64 + idx * 4 + 2 * p
                g(f"ds_write_b64 v23, v[{d}:{d+1}] offset:{sec*23040+t*1152+p*144}")
    g("s_mov_b32 exec_lo, -1")
    g.force_wait(lg=0)
    g.label("L_halodone")
    def kreg(p, c, t):
        b = ((p * 3 + c) * 5 + t) * 2
        return f"a[{b}:{b+1}]"
    def vreg(p, c, t):
        b = 60 + ((p * 3 + c) * 5 + t) * 2
        return f"a[{b}:{b+1}]"
    for t in range(5):
        for p in range(2):
            for c in range(3):
                g(f"ds_read_b64_tr_b16 {kreg(p,c,t)}, v38 offset:{t*1152+p*144+16-8*c}")
    for t in range(5):
        for p in range(2):
            for c in range(3):
                g(f"ds_read_b64 {vreg(p,c,t)}, v39 offset:{t*1152+p*144+16-8*c}")
    for t in range(5):
        for p in range(2):
            for c in range(3):
                s = 204 + (p * 3 + c) * 4
                q = 184 + (p * 5 + t) * 2
                cc = f"v[{52+4*c}:{55+4*c}]" if t == 0 else f"v[{s}:{s+3}]"
                g(f"v_mfma_f32_4x4x4_16b_bf16 v[{s}:{s+3}], {kreg(p,c,t)}, v[{q}:{q+1}], {cc}")
    for p in range(2):
        s = 204 + p * 12
        m = 242 + p * 4
        for k in range(4):
            g(f"v_max3_f32 v{m+k}, v{s+3*k}, v{s+3*k+1}, v{s+3*k+2}")
        g(f"v_max3_f32 v{m}, v{m}, v{m+1}, v{m+2}")
        g(f"v_max_f32 v{m}, v{m}, v{m+3}")
        g(f"v_mul_f32 v{m}, s4, v{m}")
    for p in range(2):
        s = 204 + p * 12
        m = 242 + p * 4
        for k in range(12):
            g(f"v_fma_f32 v{s+k}, v{s+k}, s4, -v{m}")
        for k in range(12):
            g(f"v_exp_f32 v{s+k}, v{s+k}")
    for p in range(2):
        s = 204 + p * 12
        for k in range(6):
            g(f"v_cvt_pk_bf16_f32 v{228+p*6+k}, v{s+2*k}, v{s+2*k+1}")
    for c in range(3):
        for p in range(2):
            pr = 228 + (p * 3 + c) * 2
            for t in range(6):
                o = 64 + (p * 6 + t) * 4
                a = vreg(p, c, t) if t < 5 else "v[240:241]"
                cc = "0" if c == 0 else f"v[{o}:{o+3}]"
                g(f"v_mfma_f32_4x4x4_16b_bf16 v[{o}:{o+3}], {a}, v[{pr}:{pr+1}], {cc}")
    br("s_branch L_m2done")
g.label("L_m2b")
with g.extra():
    g("v_cmp_eq_u32 vcc, s39, v36")
    g("s_cmp_eq_u64 vcc, -1")
    br("s_cbranch_scc1 L_kok")
    def _ld():
        g("buffer_load_dword v36, v25, s[24:27], s57 offen sc1")
    def _tst():
        g("v_cmp_eq_u32 vcc, s39, v36")
        g("s_cmp_eq_u64 vcc, -1")
    spin_wait(_ld, _tst, "kv")
    g.label("L_kok")
    g("s_add_u32 s4, s54, 4096")
    for it, b0 in enumerate((64, 184)):
        for r in range(4):
            k = r * 2 + it
            g(f"buffer_load_dword v{b0+r}, v51, s[24:27], {'s54' if k < 4 else 's4'} offen offset:{(k%4)*1024} sc1")
    qr = list(range(144, 184))
    for h in range(0, 40, 16):
        phi(qr[h:h+16], list(range(128, 144)))
    for t in range(5):
        for p in range(2):
            a = 144 + (t * 2 + p) * 4
            g(f"v_cvt_pk_bf16_f32 v{a}, v{a}, v{a+1}")
            g(f"v_cvt_pk_bf16_f32 v{a+1}, v{a+2}, v{a+3}")
    for it, b0 in enumerate((64, 184)):
        g(f"v_cvt_pk_bf16_f32 v{b0}, v{b0}, v{b0+1}")
        g(f"v_cvt_pk_bf16_f32 v{b0+1}, v{b0+2}, v{b0+3}")
    g("v_lshlrev_b32 v6, 3, v0")
    g(f"v_add_u32 v6, {KVF}, v6")
    g("ds_write_b64 v6, v[64:65]")
    g("ds_write_b64 v6, v[184:185] offset:2048")
    g("v_lshl_add_u32 v7, v4, 2, v50")
    g("v_lshlrev_b32 v7, 3, v7")
    g(f"v_add_u32 v7, {KVF}, v7")
    g.force_wait(lg=0)
    g("s_barrier")
    for T in range(30):
        g(f"ds_read_b64 a[{2*T}:{2*T+1}], v7 offset:{T*128}")
    for t in range(5):
        for t2 in range(6):
            T = t * 6 + t2
            for p in range(2):
                o = 64 + (p * 6 + t2) * 4
                q = 144 + (t * 2 + p) * 4
                cc = "0" if t == 0 else f"v[{o}:{o+3}]"
                g(f"v_mfma_f32_4x4x4_16b_bf16 v[{o}:{o+3}], a[{2*T}:{2*T+1}], v[{q}:{q+1}], {cc}")
    for p in range(2):
        o = 64 + (p * 6 + 5) * 4
        g(f"v_add_f32 v{o}, s53, v{o}")
g.label("L_m2done")
for p in range(2):
    o = 64 + (p * 6 + 5) * 4
    g(f"v_rcp_f32 v{o}, v{o}")
for p in range(2):
    dn = 64 + (p * 6 + 5) * 4
    for t in range(5):
        o = 64 + (p * 6 + t) * 4
        for r in range(4):
            g(f"v_mul_f32 v{o+r}, v{o+r}, v{dn}")
        d = 112 + p * 10 + 2 * t
        g(f"v_cvt_pk_bf16_f32 v{d}, v{o}, v{o+1}")
        g(f"v_cvt_pk_bf16_f32 v{d+1}, v{o+2}, v{o+3}")
g("s_lshr_b32 s3, s30, 1")
g("s_mul_i32 s3, s3, 10240")
g("s_add_u32 s3, s3, s44")
g("s_add_u32 s4, s3, 8192")
g("s_and_b32 s5, s30, 1")
g("s_lshl_b32 s5, s5, 12")
g("s_add_u32 s3, s3, s5")
for p in range(2):
    d = 112 + p * 10
    g(f"buffer_store_dwordx4 v[{d}:{d+3}], v46, s[24:27], s3 offen offset:{p*1024} sc1", tag='o')
    g(f"buffer_store_dwordx4 v[{d+4}:{d+7}], v46, s[24:27], s3 offen offset:{2048+p*1024} sc1", tag='o')
    g(f"buffer_store_dwordx2 v[{d+8}:{d+9}], v47, s[24:27], s4 offen offset:{p*1024} sc1", tag='o')
g("s_lshl_b32 s3, s30, 2")
g("s_add_u32 s3, s3, s49")
g("v_mov_b32 v6, s39")
g("v_mov_b32 v7, 0")
g.force_wait(vm=0)
g("s_mov_b64 exec, 1")
g("buffer_store_dword v6, v7, s[24:27], s3 offen sc1")
g("s_mov_b64 exec, -1")
stamp()
g("s_barrier")
p3 = []
for ks in range(20):
    for t in range(5):
        p3.append((ks, t))
def p3_read(i):
    ks, t = p3[i]
    j, q = ks // 5, ks % 5
    b = wreg(i)
    if q < 4:
        va = "v28" if j < 2 else "v29"
        imm = (160 * (j & 1) + (0, 8, 80, 88)[q]) * 160 + 8 * t
        d2 = 640
    else:
        va = "v30" if j < 2 else "v31"
        imm = (160 * (j & 1) + 16) * 160 + 8 * t
        d2 = 6400
    g(f"ds_read_b64_tr_b16 a[{b}:{b+1}], {va} offset:{imm}")
    g(f"ds_read_b64_tr_b16 a[{b+2}:{b+3}], {va} offset:{imm+d2}")
for i in range(D):
    p3_read(i)
g("v_lshlrev_b32 v7, 2, v1")
g("v_min_u32 v7, 28, v7")
def _ld():
    g("buffer_load_dword v36, v7, s[24:27], s49 offen sc1")
def _tst():
    g("v_cmp_eq_u32 vcc, s39, v36")
    g("s_cmp_eq_u64 vcc, -1")
spin_wait(_ld, _tst, "o")
g.force_wait(vm=0)
stamp()
g("s_mov_b32 s3, s44")
for k in range(40):
    g(f"buffer_load_dwordx4 a[{4*k}:{4*k+3}], v46, s[24:27], s3 offen offset:{(k%4)*1024} sc1")
    if k % 4 == 3 and k < 39:
        g("s_add_u32 s3, s3, 4096")
for i in range(100):
    ks, t = p3[i]
    b = wreg(i)
    for p in range(2):
        acc = 144 + (t * 2 + p) * 4
        c = "0" if ks == 0 else f"v[{acc}:{acc+3}]"
        o = (ks * 2 + p) * 4
        g(f"v_mfma_f32_16x16x32_bf16 v[{acc}:{acc+3}], a[{b}:{b+3}], a[{o}:{o+3}], {c}")
        if p == 0 and i + D < 100:
            p3_read(i + D)
stamp()
g("s_mul_i32 s3, s48, 2560")
g("s_mul_i32 s4, s28, 1280")
g("s_add_u32 s3, s3, s4")
g("s_mul_i32 s4, s30, 160")
g("s_add_u32 s3, s3, s4")
for p in range(2):
    for t in range(5):
        a = 144 + (t * 2 + p) * 4
        d = 112 + p * 10 + 2 * t
        g(f"v_cvt_pk_bf16_f32 v{d}, v{a}, v{a+1}")
        g(f"v_cvt_pk_bf16_f32 v{d+1}, v{a+2}, v{a+3}")
    d = 112 + p * 10
    g(f"buffer_store_dwordx4 v[{d}:{d+3}], v48, s[20:23], s3 offen offset:{p*2560}")
    g(f"buffer_store_dwordx4 v[{d+4}:{d+7}], v48, s[20:23], s3 offen offset:{p*2560+16}")
    g(f"buffer_store_dwordx2 v[{d+8}:{d+9}], v48, s[20:23], s3 offen offset:{p*2560+32}")
if opt['prof']:
    g.force_wait(vm=0)
    stamp()
    g("s_memrealtime s[88:89]")
    g.wait_lg(0)
    g("v_writelane_b32 v5, s92, 62")
    g("v_writelane_b32 v5, s88, 63")
    g("s_lshl_b32 s3, s2, 2")
    g("s_add_u32 s3, s3, s31")
    g("s_lshl_b32 s3, s3, 8")
    g(f"s_add_u32 s3, s3, {WS_P}")
    g("v_lshlrev_b32 v6, 2, v1")
    g("buffer_store_dword v5, v6, s[24:27], s3 offen")
g.label("L_end")
g("s_endpgm")
g.raw(f""".section .rodata,"a"
.p2align 6
.amdhsa_kernel {NAME}
  .amdhsa_next_free_vgpr 512
  .amdhsa_next_free_sgpr 96
  .amdhsa_accum_offset 256
  .amdhsa_group_segment_fixed_size 0
  .amdhsa_kernarg_size 72
  .amdhsa_user_sgpr_count 2
  .amdhsa_user_sgpr_kernarg_segment_ptr 1
  .amdhsa_system_sgpr_workgroup_id_x 1
.end_amdhsa_kernel""")
sys.stdout.write(g.text())
sys.stderr.write(f"bytes~{g.nbytes} stats={g.stats}\n")
```

```python
import sys
from asmgen import Asm

opt = dict(dist=6, nbuf=8, dmagap=2, pre=1, barf=14, init=2, prof=0, rot=1, fst=12, cf=4, touch=1, t0=0, t1=0, t2=0, tq=-1, two=1, tinc=0, fasto=0)
for a in sys.argv[1:]:
    k, v = a.split('=')
    opt[k] = int(v)

NAME = "concat_heads__sliding_local_dilated__linear_attn_block__prompt_kernel"
SLOT = 20544
XBASE = 5 * SLOT
KVB = XBASE
PRT = XBASE
KVF = XBASE + 32768
WS_O, WS_H, WS_K, WS_F, WS_P = 0, 0x500000, 0x600000, 0x700000, 0x800000
SPIN = 1 << 14
LOG2E = 0x3FB8AA3B
SCL = 0x3EA52B5C
EPS = 0x358637BD
NEG = 0xF149F2CA

g = Asm()
OSC = '' if opt['fasto'] else 'sc1'
def br(text):
    g.flush_hazards()
    g(text)
g.raw("; @launch grid=(256,1,1) block=(256,1,1) lds=163840")
g.raw('.amdgcn_target "amdgcn-amd-amdhsa--gfx950"')
g.raw(f".text\n.globl {NAME}\n.p2align 8\n.type {NAME},@function\n{NAME}:")

nstamp = [0]
lst = []
def lstamp():
    if opt['prof'] > 2:
        r = 96 - 2 * (len(lst) + 1) - 8
        r = 100 - 2 * len(lst)
        lst.append(r)
        g.raw(f"  s_memtime s[{r}:{r+1}]")
def lflush():
    if opt['prof'] > 2:
        g.raw("  s_waitcnt lgkmcnt(0)")
        for r in lst:
            k = nstamp[0]; nstamp[0] += 1
            g(f"s_sub_u32 s88, s{r}, s90")
            g(f"v_writelane_b32 v5, s88, {k}")
def stamp():
    if opt['prof']:
        k = nstamp[0]; nstamp[0] += 1
        g("s_memtime s[88:89]")
        g.wait_lg(0)
        g("s_sub_u32 s88, s88, s90")
        g(f"v_writelane_b32 v5, s88, {k}")

if opt['prof']:
    g("s_memrealtime s[92:93]")
    g("s_memtime s[90:91]")
g("s_cmp_ge_u32 s2, 256")
br("s_cbranch_scc1 L_end")
g("s_and_b32 s3, s2, 7")
g("s_lshr_b32 s4, s2, 3")
g("s_lshr_b32 s28, s3, 2")
g("s_mul_i32 s5, s28, 24")
g("s_add_u32 s6, s0, s5")
g("s_addc_u32 s7, s1, 0")
g("s_load_dwordx4 s[64:67], s[6:7], 0")
g("s_load_dwordx2 s[68:69], s[6:7], 16")
g("s_load_dwordx4 s[72:75], s[0:1], 48")
g("s_load_dwordx2 s[76:77], s[0:1], 64")
g("s_and_b32 s3, s3, 3")
g("s_lshl_b32 s3, s3, 2")
g("s_lshr_b32 s5, s4, 3")
g("s_add_u32 s29, s3, s5")
g("s_and_b32 s30, s4, 7")
g("s_add_u32 s78, s30, s5")
g("s_cmp_ge_u32 s78, 5")
g("s_cselect_b32 s3, 5, 0")
g("s_sub_u32 s78, s78, s3")
g("s_cmp_ge_u32 s78, 5")
g("s_cselect_b32 s3, 5, 0")
g("s_sub_u32 s78, s78, s3")
if not opt['rot']:
    g("s_mov_b32 s78, 0")
g("v_and_b32 v1, 63, v0")
g("v_lshrrev_b32 v2, 6, v0")
g("v_and_b32 v3, 15, v0")
g("v_readfirstlane_b32 s31, v2")
g("v_bfe_u32 v4, v0, 4, 2")
def tload(text):
    r = g(text)
    g.vm[-1] = (None, set())
def setexec(lo, hi):
    m = ((1 << hi) - 1) & ~((1 << lo) - 1)
    g(f"s_mov_b32 exec_lo, 0x{m & 0xffffffff:x}")
    g(f"s_mov_b32 exec_hi, 0x{m >> 32:x}")
tdone = [0]
def touch(hi):
    lo = tdone[0]
    if not opt['touch'] or hi <= lo:
        return
    tdone[0] = hi
    for a, b, va in ((lo, min(hi, 6), "v56"), (max(lo, 6), hi, "v57")):
        if b > a:
            o = 0 if va == "v56" else 6
            setexec(10 * (a - o), 10 * (b - o))
            tload(f"global_load_dword v32, {va}, s[66:67]")
    setexec(4 * lo, 4 * hi)
    tload("global_load_dword v33, v58, s[64:65]")
    g("s_mov_b64 exec, -1")
if opt['touch']:
    g("v_mul_u32_u24 v6, 6554, v1")
    g("v_lshrrev_b32 v6, 16, v6")
    g("v_mul_u32_u24 v7, 10, v6")
    g("v_sub_u32 v7, v1, v7")
    g("v_lshlrev_b32 v7, 7, v7")
    g("s_lshl_b32 s3, s4, 2")
    g("s_add_u32 s3, s3, s31")
    g("s_lshr_b32 s6, s3, 1")
    g("s_mul_i32 s6, s6, 3840")
    g("s_and_b32 s7, s3, 1")
    g("s_mul_i32 s7, s7, 1280")
    g("s_add_u32 s6, s6, s7")
    g("s_add_u32 s6, s6, 1280")
    g(f"v_mul_u32_u24 v6, {64*3840}, v6")
    g("v_add3_u32 v56, v6, v7, s6")
    g("s_and_b32 s6, s2, 3")
    g("s_lshl_b32 s6, s6, 7")
    g("s_add_u32 s6, s6, s3")
    g("s_mul_i32 s6, s6, 5120")
    g("v_and_b32 v6, 3, v1")
    g("v_mul_u32_u24 v6, 1280, v6")
    g("v_lshrrev_b32 v23, 2, v1")
    g("v_lshlrev_b32 v23, 7, v23")
    g("v_add3_u32 v58, v6, v23, s6")
    lstamp()
    g.wait_lg(0)
    touch(opt['t0'])
    lstamp()
    g(f"v_add_u32 v57, {6*64*3840}, v56")
    g("v_mul_u32_u24 v6, 6554, v1")
    g("v_lshrrev_b32 v6, 16, v6")
    g("v_lshl_add_u32 v6, v6, 7, s3")
    g("v_mul_u32_u24 v59, 3840, v6")
    g("v_add_u32 v59, v59, v7")
    g("v_mul_u32_u24 v35, 1280, v6")
    g("v_add_u32 v35, v35, v7")
def touch_q():
    setexec(0, 50)
    tload("global_load_dword v32, v59, s[66:67]")
    g("s_mov_b64 exec, -1")
def touch_wo():
    setexec(0, 50)
    tload("global_load_dword v32, v35, s[68:69]")
    g("s_mov_b64 exec, -1")
g("v_lshrrev_b32 v6, 3, v1")
g("v_mul_u32_u24 v6, 2560, v6")
g("v_and_b32 v7, 7, v1")
g("v_and_b32 v23, 1, v4")
g("v_xor_b32 v7, v7, v23")
g("v_lshl_add_u32 v40, v7, 4, v6")
g("v_add_u32 v41, 256, v40")
g("v_xor_b32 v7, 4, v7")
g("v_lshl_add_u32 v42, v7, 4, v6")
g(f"v_add_u32 v42, {16*1280-2048}, v42")
g("v_add_u32 v43, 256, v42")
for i in range(5):
    g(f"v_add_u32 v6, {64*i}, v1")
    g("v_mul_u32_u24 v7, 3277, v6")
    g("v_lshrrev_b32 v7, 16, v7")
    g("v_mul_u32_u24 v23, 20, v7")
    g("v_sub_u32 v6, v6, v23")
    g("v_cmp_le_u32 vcc, 10, v6")
    g("v_cndmask_b32 v23, 0, 1, vcc")
    g("v_mul_u32_u24 v24, 10, v23")
    g("v_sub_u32 v6, v6, v24")
    g("v_lshlrev_b32 v6, 4, v6")
    comp = 1024 * (i & 3)
    if comp:
        g(f"v_subrev_u32 v6, {comp}, v6")
    g(f"v_mul_u32_u24 v24, 3840, v7")
    g(f"v_add_u32 v{8+i}, v24, v6")
    g(f"v_mul_u32_u24 v25, 1280, v23")
    g(f"v_add_u32 v{8+i}, v{8+i}, v25")
    g(f"v_lshl_add_u32 v7, v23, 6, v7")
    g(f"v_mul_u32_u24 v24, 3840, v7")
    g(f"v_add_u32 v{13+i}, v24, v6")
g("s_lshl_b32 s3, s29, 7")
g("s_lshl_b32 s4, s31, 5")
g("s_add_u32 s48, s3, s4")
g("s_mul_i32 s32, s48, 1280")
g("s_mul_i32 s4, s30, 160")
g("s_mul_i32 s5, s31, 61440")
g("s_add_u32 s34, s5, s4")
g("s_add_u32 s33, s34, 1280")
g("s_mul_i32 s5, s31, 40960")
g("s_add_u32 s35, s5, s4")
g("s_add_u32 s4, s31, 1")
g("s_lshr_b32 s4, s4, 1")
g("s_lshl_b32 s4, s4, 5")
g("s_mul_i32 s45, s31, 5120")
g("s_add_u32 s36, s4, s45")
g("s_mul_i32 s79, s31, 12288")
g(f"s_add_u32 s79, s79, {XBASE}")
for u in range(5):
    g(f"s_add_u32 s{80+u}, s78, {u}")
    g(f"s_cmp_ge_u32 s{80+u}, 5")
    g("s_cselect_b32 s3, 5, 0")
    g(f"s_sub_u32 s{80+u}, s{80+u}, s3")
g.wait_lg(0)
for base, lo, n in ((8, 64, 2621440), (12, 66, 2457600), (16, 68, 819200), (20, 72, 5242880),
                    (24, 76, 1 << 24), (40, 74, 256)):
    g(f"s_mov_b32 s{base}, s{lo}")
    g(f"s_mov_b32 s{base+1}, s{lo+1}")
    g(f"s_mov_b32 s{base+2}, {n}")
    g(f"s_mov_b32 s{base+3}, 0x00020000")

nv = [0]
_call = g.__call__

def dma_ops(st):
    if st < 10:
        srd, vb, sb, u, mul, add = "s[12:15]", 8, "s33", st // 2, 128 * 3840, (st % 2) * 64 * 3840
    elif st < 15:
        srd, vb, sb, u, mul, add = "s[12:15]", 13, "s34", st - 10, 128 * 3840, 0
    sl = st % 5
    def mk(i):
        def f():
            if st < 15:
                if i == 0:
                    g(f"s_mul_i32 s37, s{80+u}, {mul}")
                    g(f"s_add_u32 s37, s37, {sb}")
                    if add:
                        g(f"s_add_u32 s37, s37, {add}")
                g(f"s_add_u32 m0, s36, {sl*SLOT + (4096 if i == 4 else 0)}")
                off = 1024 * (i & 3)
                g(f"buffer_load_dwordx4 v{vb+i}, {srd}, s37 offen offset:{off} lds", tag=('w', st))
            else:
                uu = st - 15
                if i == 0:
                    g(f"s_add_u32 s37, s35, {uu*128*1280}")
                g(f"s_add_u32 m0, s45, {uu*20480 + (4096 if i == 4 else 0)}")
                off = 1024 * (i & 3)
                g(f"buffer_load_dwordx4 v{18+i}, s[16:19], s37 offen offset:{off} lds", tag=('w', st))
            nv[0] += 1
        f.tag = ('w', st)
        return f
    return [mk(i) for i in range(5)]

def xreg(B, s, p):
    b = ((B * 2 + s) * 2 + p) * 4
    return f"a[{b}:{b+3}]"

def xregs(B):
    return {('a', i) for i in range(B * 16, B * 16 + 16)}

def x_ops(B):
    def mk(i):
        def f():
            if i == 0:
                if B >= 3:
                    g._auto_wait(xregs(B - 3))
                g(f"s_lshl_b32 s38, s{80+B//2}, 8")
                g(f"s_add_u32 s38, s38, s32")
                if B % 2:
                    g(f"s_add_u32 s38, s38, 128")
            g(f"s_add_u32 m0, s79, {(B%3)*4096}")
            g(f"buffer_load_dwordx4 v{40+i}, s[8:11], s38 offen offset:{1024*i} lds", tag=('x', B))
            nv[0] += 1
        f.tag = ('x', B)
        return f
    return [mk(i) for i in range(4)]

def x_read(B):
    for s in range(2):
        for p in range(2):
            g(f"ds_read_b128 {xreg(B,s,p)}, v{44+s} offset:{(B%3)*4096+1024*p}")

queue = []
for st in range(5):
    if st < 3:
        for f in x_ops(st):
            f() if st < opt['init'] else queue.append(f)
    for f in dma_ops(st):
        f() if st < opt['init'] else queue.append(f)
    if st < 2:
        lstamp()
        touch(opt['t1'] if st == 0 else opt['t2'])
    if st == 0:
        if opt['pre']:
            g("s_getpc_b64 s[86:87]")
            g.raw("L_pc0:")
            g("s_lshr_b32 s3, s2, 3")
            g("s_and_b32 s3, s3, 7")
            g("s_lshl_b32 s3, s3, 12")
            g("v_lshlrev_b32 v6, 4, v0")
            g("v_add_u32 v6, s3, v6")
            g("v_min_u32 v6, L_end-L_pc0-16, v6")
            g("global_load_dwordx4 v[60:63], v6, s[86:87]")
        g("s_cmp_lg_u32 s2, 0")
        br("s_cbranch_scc1 L_notag")
        g("s_cmp_lg_u32 s31, 0")
        br("s_cbranch_scc1 L_notag")
        with g.extra():
            g("s_memrealtime s[4:5]")
            g.wait_lg(0)
            g("s_or_b32 s4, s4, 1")
            g("v_mov_b32 v6, s4")
            g("v_mov_b32 v7, 0")
            g("s_mov_b64 exec, 1")
            g("buffer_store_dword v6, v7, s[40:43], 0 offen sc1")
            g("s_mov_b64 exec, -1")
        g.label("L_notag")
        g("v_bfe_u32 v49, v0, 2, 2")
        g("v_and_b32 v50, 3, v0")
        g("v_mul_u32_u24 v6, 320, v49")
        g("v_mul_u32_u24 v7, 40, v50")
        g("v_add_u32 v6, v6, v7")
        g("v_mul_u32_u24 v7, 5120, v4")
        g("v_add_u32 v6, v6, v7")
        g("v_add_u32 v7, 1, v4")
        g("v_lshrrev_b32 v7, 1, v7")
        g("v_lshl_add_u32 v26, v7, 5, v6")
        g(f"v_add_u32 v27, {3*SLOT}, v26")
        g("v_lshrrev_b32 v6, 3, v3")
        g("v_lshlrev_b32 v6, 4, v6")
        g("v_and_b32 v7, 7, v3")
        g("v_add_u32 v6, v6, v7")
        g("v_lshlrev_b32 v6, 7, v6")
        g("v_lshrrev_b32 v7, 1, v3")
        g("v_and_b32 v7, 5, v7")
        g("v_lshlrev_b32 v23, 1, v4")
        g("v_xor_b32 v7, v7, v23")
        g("v_lshl_add_u32 v6, v7, 4, v6")
        g("v_add_u32 v44, s79, v6")
        g("v_xor_b32 v45, 16, v44")

g("s_lshl_b32 s54, s30, 13")
g(f"s_add_u32 s54, s54, {WS_K}")
g("s_lshl_b32 s55, s30, 7")
g("s_lshl_b32 s3, s31, 2")
g("s_add_u32 s55, s55, s3")
g(f"s_add_u32 s55, s55, {WS_F+0xA000}")
g("s_xor_b32 s3, s28, 1")
g("s_or_b32 s56, s3, s29")
g("v_lshlrev_b32 v51, 2, v0")
g("s_cmp_lg_u32 s56, 0")
br("s_cbranch_scc1 L_nozero")
with g.extra():
    g("v_mov_b32 v6, 0")
    g("s_add_u32 s3, s54, 4096")
    for k in range(8):
        g(f"buffer_store_dword v6, v51, s[24:27], {'s54' if k < 4 else 's3'} offen offset:{(k%4)*1024} sc1")
g.label("L_nozero")
for i in range(5):
    g(f"v_add_u32 v6, {64*i}, v1")
    g("v_mul_u32_u24 v7, 6554, v6")
    g("v_lshrrev_b32 v7, 16, v7")
    g("v_mul_u32_u24 v23, 10, v7")
    g("v_sub_u32 v6, v6, v23")
    g("v_lshlrev_b32 v6, 4, v6")
    comp = 1024 * (i & 3)
    if comp:
        g(f"v_subrev_u32 v6, {comp}, v6")
    g("v_mul_u32_u24 v7, 1280, v7")
    g(f"v_add_u32 v{18+i}, v7, v6")
g("v_mul_u32_u24 v6, 160, v49")
g("v_mul_u32_u24 v7, 40, v50")
g("v_add_u32 v6, v6, v7")
g("v_mul_u32_u24 v7, 3200, v4")
g("v_add_u32 v28, v6, v7")
g("v_add_u32 v29, 51200, v28")
g("v_lshrrev_b32 v7, 1, v4")
g("v_mul_u32_u24 v7, 12800, v7")
g("v_add_u32 v6, v6, v7")
g("v_and_b32 v7, 1, v4")
g("v_mul_u32_u24 v7, 3200, v7")
g("v_add_u32 v30, v6, v7")
g("v_add_u32 v31, 51200, v30")
g("v_lshlrev_b32 v46, 4, v1")
g("s_and_b32 s3, s30, 1")
g("s_lshl_b32 s3, s3, 9")
g("v_and_b32 v6, 1, v4")
g("v_lshlrev_b32 v6, 8, v6")
g("v_lshl_add_u32 v6, v3, 4, v6")
g("v_lshrrev_b32 v7, 1, v4")
g("v_lshl_add_u32 v6, v7, 3, v6")
g("v_add_u32 v47, s3, v6")
g("v_mul_u32_u24 v6, 5120, v3")
g("v_mul_u32_u24 v7, 40, v4")
g("v_add_u32 v48, v6, v7")
g("s_lshl_b32 s3, s31, 5")
g(f"s_add_u32 s3, s3, {KVB}")
g("v_mul_u32_u24 v6, 20, v49")
g("v_add_u32 v6, v6, v50")
g("v_mul_u32_u24 v6, 288, v6")
g("v_lshl_add_u32 v6, v4, 3, v6")
g("v_add_u32 v37, s3, v6")
g("v_add_u32 v37, 16, v37")
g("v_mul_u32_u24 v7, 20, v4")
g("v_add_u32 v6, v7, v49")
g("v_mul_u32_u24 v6, 288, v6")
g("v_lshl_add_u32 v6, v50, 3, v6")
g("v_add_u32 v38, s3, v6")
g("v_add_u32 v6, v7, v50")
g("v_mul_u32_u24 v6, 288, v6")
g("v_lshl_add_u32 v6, v49, 3, v6")
g("v_add_u32 v39, s3, v6")
g("v_add_u32 v39, 23040, v39")
g("s_lshl_b32 s3, s28, 4")
g("s_add_u32 s3, s3, s29")
g("s_lshl_b32 s3, s3, 2")
g("s_add_u32 s3, s3, s31")
g("s_mul_i32 s44, s3, 40960")
g("s_lshl_b32 s49, s3, 7")
g(f"s_add_u32 s49, s49, {WS_F}")
g("s_lshl_b32 s3, s29, 3")
g("s_add_u32 s3, s3, s30")
g("s_lshl_b32 s4, s3, 7")
g(f"s_add_u32 s4, s4, {WS_F+0x4000}")
g("s_mul_i32 s50, s3, 5120")
g(f"s_add_u32 s50, s50, {WS_H}")
g("s_lshl_b32 s5, s30, 8")
g("s_lshl_b32 s6, s29, 4")
g("s_add_u32 s5, s5, s6")
g("s_lshl_b32 s6, s31, 2")
g("s_add_u32 s5, s5, s6")
g(f"s_add_u32 s5, s5, {WS_F+0x8000}")
g("s_cmp_eq_u32 s28, 0")
g("s_cselect_b32 s47, s4, s5")
g("s_cmp_eq_u32 s31, 3")
g("s_cselect_b32 s51, 1, 0")
g("s_or_b32 s51, s51, s28")

frags = []
for st in range(15):
    for f in range(20):
        if st < 10:
            s, sec, t = f // 10, (f // 5) % 2, f % 5
            B = st
        else:
            sec, s, t = f // 10, (f // 5) % 2, f % 5
            B = 2 * (st - 10) + sec
        frags.append((st, f, s, sec, t, B))

NB = opt['nbuf']
def wreg(i):
    return 160 + 4 * (i % NB)

def issue_read(i):
    st, f, s, sec, t, B = frags[i]
    sl = st % 5
    va = "v26" if sl < 3 else "v27"
    imm = (sl % 3) * SLOT + s * 2560 + sec * 160 + 8 * t
    b = wreg(i)
    g(f"ds_read_b64_tr_b16 a[{b}:{b+1}], {va} offset:{imm}")
    g(f"ds_read_b64_tr_b16 a[{b+2}:{b+3}], {va} offset:{imm+1280}")

D = opt['dist']
first = {}
def need(tag):
    while any(getattr(f, 'tag', None) == tag for f in queue):
        queue.pop(0)()
    g.wait_tag(tag)

mark = [0]
lab = [0]
def spin_wait(load, test, what):
    n = lab[0]; lab[0] += 1
    g(f"s_mov_b32 s46, {SPIN}")
    g.label(f"L_spin{n}")
    with g.extra():
        load()
        g.force_wait(vm=0)
        test()
        br(f"s_cbranch_scc1 L_spun{n}")
        g("s_sleep 1")
        g("s_sub_u32 s46, s46, 1")
        g("s_cmp_lg_u32 s46, 0")
        br(f"s_cbranch_scc1 L_spin{n}")
    g.label(f"L_spun{n}")

def run_phase(lo, hi, sid):
    st0 = frags[lo][0]
    if sid == 0:
        lflush()
        stamp()
    need(('w', st0))
    if sid == 0:
        need(('x', 0))
        x_read(0)
        queue.extend(x_ops(3))
    g("s_barrier")
    stamp()
    for i in range(lo, lo + D):
        issue_read(i)
    for i in range(lo, hi):
        st, f, s, sec, t, B = frags[i]
        last = (i + 20 - f) >= hi
        if f == opt['barf']:
            if not last:
                need(('w', st + 1))
                if sid == 0:
                    need(('x', st + 1))
            if st == 4:
                g("v_readfirstlane_b32 s39, v36")
                g("s_cmp_lg_u32 s39, 0")
                br("s_cbranch_scc1 L_havetag")
                def _ld():
                    g("v_mov_b32 v7, 0")
                    g("buffer_load_dword v36, v7, s[40:43], 0 offen sc1")
                def _tst():
                    g("v_readfirstlane_b32 s39, v36")
                    g("s_cmp_lg_u32 s39, 0")
                spin_wait(_ld, _tst, "tag")
                g.label("L_havetag")
                g("s_cmp_lg_u32 s56, 0")
                br("s_cbranch_scc1 L_nozf")
                with g.extra():
                    g("v_mov_b32 v6, s39")
                    g("v_mov_b32 v7, 0")
                    g("s_mov_b64 exec, 1")
                    g("buffer_store_dword v6, v7, s[24:27], s55 offen sc1")
                    g("s_mov_b64 exec, -1")
                g.label("L_nozf")
            if st == opt['fst']:
                g.force_wait(vm=min(63, min(len(g.vm), nv[0] - mark[0])))
                g("s_cmp_eq_u32 s51, 0")
                br("s_cbranch_scc1 L_nof1")
                with g.extra():
                    g("v_mov_b32 v6, s39")
                    g("v_mov_b32 v7, 0")
                    g("s_mov_b64 exec, 1")
                    g("buffer_store_dword v6, v7, s[24:27], s47 offen sc1")
                    g("s_mov_b64 exec, -1")
                g.label("L_nof1")
            g("s_barrier")
            if opt['prof'] > 1:
                stamp()
            if sid == 0 and not last:
                x_read(st + 1)
            if sid == 0 and opt['touch']:
                n0 = len(g.vm)
                touch(min(10, tdone[0] + opt['tinc']))
                if st == opt['tq']:
                    touch_q()
                nv[0] += len(g.vm) - n0
            if st == 1:
                g("v_mov_b32 v7, 0")
                g("buffer_load_dword v36, v7, s[40:43], 0 offen sc1")
                nv[0] += 1
            if st == 8:
                g("v_mov_b32 v7, 0")
                g("buffer_load_dword v36, v7, s[24:27], s55 offen sc1")
                nv[0] += 1
            if st >= 1:
                queue.extend(dma_ops(st + 4))
            if sid == 0 and st + 4 < 10:
                queue.extend(x_ops(st + 4))
        if st == 14 and f == opt['cf']:
            g("buffer_load_dword v36, v25, s[24:27], s57 offen sc1")
            nv[0] += 1
        b = wreg(i)
        for p in range(2):
            if st < 10:
                acc = 64 + ((sec * 5 + t) * 2 + p) * 4
            else:
                acc = 144 + (t * 2 + p) * 4
            key = (sid, acc)
            c = f"v[{acc}:{acc+3}]" if key in first else "0"
            first[key] = 1
            if st < 10:
                g(f"v_mfma_f32_16x16x32_bf16 v[{acc}:{acc+3}], {xreg(B,s,p)}, a[{b}:{b+3}], {c}")
            else:
                g(f"v_mfma_f32_16x16x32_bf16 v[{acc}:{acc+3}], a[{b}:{b+3}], {xreg(B,s,p)}, {c}")
            if p == 0 and i + D < hi:
                issue_read(i + D)
            if p == 1 and queue and (i % opt['dmagap'] == 0 or len(queue) > 9):
                queue.pop(0)()
    while queue:
        queue.pop(0)()

def phi(regs, tmp):
    for r, t in zip(regs, tmp):
        g(f"v_mul_f32 v{t}, s52, v{r}")
    for r, t in zip(regs, tmp):
        g(f"v_exp_f32_e64 v{t}, v{t} clamp")
        g(f"v_max_f32 v{r}, 0, v{r}")
    for r, t in zip(regs, tmp):
        g(f"v_add_f32 v{r}, v{r}, v{t}")
    for r, t in zip(regs, tmp):
        g(f"v_add_f32 v{r}, s53, v{r}")

run_phase(0, 200, 0)
stamp()
if opt['touch'] and opt['two']:
    touch_wo()
g("s_sub_u32 s3, s47, 1024")
g("s_lshl_b32 s4, s30, 8")
g(f"s_add_u32 s4, s4, {WS_F+0x8000}")
g("s_cmp_eq_u32 s28, 0")
g("s_cselect_b32 s57, s3, s4")
g("v_lshlrev_b32 v25, 2, v1")
g("v_mul_u32_u24 v25, s28, v25")
g(f"s_mov_b32 s52, 0x{LOG2E:08x}")
g(f"s_mov_b32 s53, 0x{EPS:08x}")
g("s_cmp_eq_u32 s28, 1")
br("s_cbranch_scc1 L_m1b")
with g.extra():
    for sec in range(2):
        for t in range(5):
            idx = sec * 5 + t
            for p in range(2):
                a = 64 + (idx * 2 + p) * 4
                d = 184 + idx * 4 + 2 * p
                g(f"v_cvt_pk_bf16_f32 v{d}, v{a}, v{a+1}")
                g(f"v_cvt_pk_bf16_f32 v{d+1}, v{a+2}, v{a+3}")
            for p in range(2):
                d = 184 + idx * 4 + 2 * p
                g(f"ds_write_b64 v37, v[{d}:{d+1}] offset:{sec*23040+t*1152+p*144}")
    g("s_cmp_lg_u32 s31, 3")
    br("s_cbranch_scc1 L_nohalo")
    g("s_add_u32 s3, s50, 2560")
    g("v_subrev_u32 v6, 512, v46")
    g("s_mov_b32 exec_lo, 0")
    for idx in range(10):
        d = 184 + idx * 4
        g(f"buffer_store_dwordx4 v[{d}:{d+3}], v6, s[24:27], {'s50' if idx < 5 else 's3'} offen offset:{(idx%5)*512} sc1")
    g("s_mov_b32 exec_lo, -1")
    g.label("L_nohalo")
    g.force_wait(lg=0)
    br("s_branch L_m1done")
g.label("L_m1b")
with g.extra():
    phi(list(range(64, 104)), list(range(184, 224)))
    for sec in range(2):
        for t in range(5):
            idx = sec * 5 + t
            for p in range(2):
                a = 64 + (idx * 2 + p) * 4
                d = 184 + idx * 4 + 2 * p
                g(f"v_cvt_pk_bf16_f32 v{d}, v{a}, v{a+1}")
                g(f"v_cvt_pk_bf16_f32 v{d+1}, v{a+2}, v{a+3}")
    for r in range(4):
        g(f"v_mov_b32 v{224+r}, 0x3f803f80")
    g("s_lshl_b32 s3, s31, 13")
    g(f"s_add_u32 s3, s3, {PRT}")
    g("v_lshl_add_u32 v6, v4, 2, v50")
    g("v_lshlrev_b32 v6, 4, v6")
    g("v_add_u32 v6, s3, v6")
    def dreg(T):
        return f"a[{192+4*T}:{195+4*T}]" if T < 16 else f"v[{64+4*(T-16)}:{67+4*(T-16)}]"
    for t in range(5):
        for t2 in range(6):
            T = t * 6 + t2
            bsrc = f"v[{204+4*t2}:{207+4*t2}]"
            g(f"v_mfma_f32_16x16x32_bf16 {dreg(T)}, v[{184+4*t}:{187+4*t}], {bsrc}, 0")
    g("s_mov_b32 exec_lo, 0x00f0000f")
    g("s_mov_b32 exec_hi, 0xf0000f00")
    for T in range(30):
        g(f"ds_write_b128 v6, {dreg(T)} offset:{T*256}")
    g("s_mov_b64 exec, -1")
    g.force_wait(lg=0)
    g("s_barrier")
    g("v_lshlrev_b32 v7, 4, v0")
    g(f"v_add_u32 v6, {PRT}, v7")
    for it in range(2):
        for w2 in range(4):
            d = 64 + (it * 4 + w2) * 4
            g(f"ds_read_b128 v[{d}:{d+3}], v6 offset:{w2*8192+it*4096}")
    g("v_readfirstlane_b32 s3, v36")
    g("s_cmp_eq_u32 s3, s39")
    br("s_cbranch_scc1 L_zok")
    def _ld():
        g("v_mov_b32 v7, 0")
        g("buffer_load_dword v36, v7, s[24:27], s55 offen sc1")
    def _tst():
        g("v_readfirstlane_b32 s3, v36")
        g("s_cmp_eq_u32 s3, s39")
    spin_wait(_ld, _tst, "zero")
    g.label("L_zok")
    g("s_add_u32 s4, s54, 4096")
    for it in range(2):
        d = 64 + it * 16
        for r in range(4):
            g(f"v_add_f32 v{d+r}, v{d+r}, v{d+4+r}")
            g(f"v_add_f32 v{d+8+r}, v{d+8+r}, v{d+12+r}")
        for r in range(4):
            g(f"v_add_f32 v{d+r}, v{d+r}, v{d+8+r}")
        for r in range(4):
            k = r * 2 + it
            g(f"buffer_atomic_add_f32 v{d+r}, v51, s[24:27], {'s54' if k < 4 else 's4'} offen offset:{(k%4)*1024} sc1")
g.label("L_m1done")
mark[0] = nv[0]
stamp()
run_phase(200, 300, 1)
g("s_barrier")
for f in dma_ops(19):
    f()
stamp()
g("s_cmp_eq_u32 s28, 1")
br("s_cbranch_scc1 L_m2b")
with g.extra():
    g("s_cmp_lg_u32 s31, 0")
    br("s_cbranch_scc1 L_halo1")
    g("s_cmp_lg_u32 s29, 0")
    br("s_cbranch_scc1 L_haloget")
    for r in range(40):
        g(f"v_mov_b32 v{64+r}, 0")
    br("s_branch L_halo1")
    g.label("L_haloget")
    g("v_readfirstlane_b32 s3, v36")
    g("s_cmp_eq_u32 s3, s39")
    br("s_cbranch_scc1 L_hok")
    def _ld():
        g("buffer_load_dword v36, v25, s[24:27], s57 offen sc1")
    def _tst():
        g("v_readfirstlane_b32 s3, v36")
        g("s_cmp_eq_u32 s3, s39")
    spin_wait(_ld, _tst, "halo")
    g.label("L_hok")
    g("s_sub_u32 s3, s50, 40960")
    g("s_add_u32 s4, s3, 2560")
    g("v_subrev_u32 v6, 512, v46")
    g("s_mov_b32 exec_lo, 0")
    for idx in range(10):
        d = 64 + idx * 4
        g.raw(f"  buffer_load_dwordx4 v[{d}:{d+3}], v6, s[24:27], {'s3' if idx < 5 else 's4'} offen offset:{(idx%5)*512} sc1")
    g("s_mov_b32 exec_lo, -1")
    g.label("L_halo1")
    for t in range(5):
        for p in range(2):
            a = 144 + (t * 2 + p) * 4
            d = 184 + (p * 5 + t) * 2
            g(f"v_cvt_pk_bf16_f32 v{d}, v{a}, v{a+1}")
            g(f"v_cvt_pk_bf16_f32 v{d+1}, v{a+2}, v{a+3}")
    g("s_or_b32 s3, s29, s31")
    g("s_cmp_eq_u32 s3, 0")
    g("s_cselect_b32 s4, 0, 64")
    g(f"v_mov_b32 v6, 0x{NEG:08x}")
    g("v_lshlrev_b32 v7, 2, v49")
    g("v_add_u32 v7, s4, v7")
    for c in range(3):
        for r in range(4):
            d = 52 + c * 4 + r
            if c == 0:
                g(f"v_cmp_le_u32 vcc, {r}, v50")
                g(f"v_cndmask_b32 v{d}, v6, 0, vcc")
            elif c == 1:
                g(f"v_cmp_le_u32 vcc, {4-r}, v7")
                g(f"v_cndmask_b32 v{d}, v6, 0, vcc")
            else:
                g(f"v_cmp_le_u32 vcc, {8-r}, v7")
                g(f"v_cndmask_b32 v{d}, v6, 0, vcc")
                g(f"v_cmp_gt_u32 vcc, {r}, v50")
                g(f"v_cndmask_b32 v{d}, v6, v{d}, vcc")
    g("v_mov_b32 v240, 0x3f803f80")
    g("v_mov_b32 v241, 0x3f803f80")
    g(f"s_mov_b32 s4, 0x{SCL:08x}")
    g("s_cmp_lg_u32 s31, 0")
    br("s_cbranch_scc1 L_halodone")
    g("v_subrev_u32 v23, 32, v37")
    g.force_wait(vm=0)
    g("s_mov_b32 exec_lo, 0")
    for sec in range(2):
        for t in range(5):
            idx = sec * 5 + t
            for p in range(2):
                d = 64 + idx * 4 + 2 * p
                g(f"ds_write_b64 v23, v[{d}:{d+1}] offset:{sec*23040+t*1152+p*144}")
    g("s_mov_b32 exec_lo, -1")
    g.force_wait(lg=0)
    g.label("L_halodone")
    def kreg(p, c, t):
        b = ((p * 3 + c) * 5 + t) * 2
        return f"a[{b}:{b+1}]"
    def vreg(p, c, t):
        b = 60 + ((p * 3 + c) * 5 + t) * 2
        return f"a[{b}:{b+1}]"
    for t in range(5):
        for p in range(2):
            for c in range(3):
                g(f"ds_read_b64_tr_b16 {kreg(p,c,t)}, v38 offset:{t*1152+p*144+16-8*c}")
    for t in range(5):
        for p in range(2):
            for c in range(3):
                g(f"ds_read_b64 {vreg(p,c,t)}, v39 offset:{t*1152+p*144+16-8*c}")
    for t in range(5):
        for p in range(2):
            for c in range(3):
                s = 204 + (p * 3 + c) * 4
                q = 184 + (p * 5 + t) * 2
                cc = f"v[{52+4*c}:{55+4*c}]" if t == 0 else f"v[{s}:{s+3}]"
                g(f"v_mfma_f32_4x4x4_16b_bf16 v[{s}:{s+3}], {kreg(p,c,t)}, v[{q}:{q+1}], {cc}")
    for p in range(2):
        s = 204 + p * 12
        m = 242 + p * 4
        for k in range(4):
            g(f"v_max3_f32 v{m+k}, v{s+3*k}, v{s+3*k+1}, v{s+3*k+2}")
        g(f"v_max3_f32 v{m}, v{m}, v{m+1}, v{m+2}")
        g(f"v_max_f32 v{m}, v{m}, v{m+3}")
        g(f"v_mul_f32 v{m}, s4, v{m}")
    for p in range(2):
        s = 204 + p * 12
        m = 242 + p * 4
        for k in range(12):
            g(f"v_fma_f32 v{s+k}, v{s+k}, s4, -v{m}")
        for k in range(12):
            g(f"v_exp_f32 v{s+k}, v{s+k}")
    for p in range(2):
        s = 204 + p * 12
        for k in range(6):
            g(f"v_cvt_pk_bf16_f32 v{228+p*6+k}, v{s+2*k}, v{s+2*k+1}")
    for c in range(3):
        for p in range(2):
            pr = 228 + (p * 3 + c) * 2
            for t in range(6):
                o = 64 + (p * 6 + t) * 4
                a = vreg(p, c, t) if t < 5 else "v[240:241]"
                cc = "0" if c == 0 else f"v[{o}:{o+3}]"
                g(f"v_mfma_f32_4x4x4_16b_bf16 v[{o}:{o+3}], {a}, v[{pr}:{pr+1}], {cc}")
    br("s_branch L_m2done")
g.label("L_m2b")
with g.extra():
    g("v_cmp_eq_u32 vcc, s39, v36")
    g("s_cmp_eq_u64 vcc, -1")
    br("s_cbranch_scc1 L_kok")
    def _ld():
        g("buffer_load_dword v36, v25, s[24:27], s57 offen sc1")
    def _tst():
        g("v_cmp_eq_u32 vcc, s39, v36")
        g("s_cmp_eq_u64 vcc, -1")
    spin_wait(_ld, _tst, "kv")
    g.label("L_kok")
    g("s_add_u32 s4, s54, 4096")
    for it, b0 in enumerate((64, 184)):
        for r in range(4):
            k = r * 2 + it
            g(f"buffer_load_dword v{b0+r}, v51, s[24:27], {'s54' if k < 4 else 's4'} offen offset:{(k%4)*1024} sc1")
    qr = list(range(144, 184))
    for h in range(0, 40, 16):
        phi(qr[h:h+16], list(range(128, 144)))
    for t in range(5):
        for p in range(2):
            a = 144 + (t * 2 + p) * 4
            g(f"v_cvt_pk_bf16_f32 v{a}, v{a}, v{a+1}")
            g(f"v_cvt_pk_bf16_f32 v{a+1}, v{a+2}, v{a+3}")
    for it, b0 in enumerate((64, 184)):
        g(f"v_cvt_pk_bf16_f32 v{b0}, v{b0}, v{b0+1}")
        g(f"v_cvt_pk_bf16_f32 v{b0+1}, v{b0+2}, v{b0+3}")
    g("v_lshlrev_b32 v6, 3, v0")
    g(f"v_add_u32 v6, {KVF}, v6")
    g("ds_write_b64 v6, v[64:65]")
    g("ds_write_b64 v6, v[184:185] offset:2048")
    g("v_lshl_add_u32 v7, v4, 2, v50")
    g("v_lshlrev_b32 v7, 3, v7")
    g(f"v_add_u32 v7, {KVF}, v7")
    g.force_wait(lg=0)
    g("s_barrier")
    for T in range(30):
        g(f"ds_read_b64 a[{2*T}:{2*T+1}], v7 offset:{T*128}")
    for t in range(5):
        for t2 in range(6):
            T = t * 6 + t2
            for p in range(2):
                o = 64 + (p * 6 + t2) * 4
                q = 144 + (t * 2 + p) * 4
                cc = "0" if t == 0 else f"v[{o}:{o+3}]"
                g(f"v_mfma_f32_4x4x4_16b_bf16 v[{o}:{o+3}], a[{2*T}:{2*T+1}], v[{q}:{q+1}], {cc}")
    for p in range(2):
        o = 64 + (p * 6 + 5) * 4
        g(f"v_add_f32 v{o}, s53, v{o}")
g.label("L_m2done")
for p in range(2):
    o = 64 + (p * 6 + 5) * 4
    g(f"v_rcp_f32 v{o}, v{o}")
for p in range(2):
    dn = 64 + (p * 6 + 5) * 4
    for t in range(5):
        o = 64 + (p * 6 + t) * 4
        for r in range(4):
            g(f"v_mul_f32 v{o+r}, v{o+r}, v{dn}")
        d = 112 + p * 10 + 2 * t
        g(f"v_cvt_pk_bf16_f32 v{d}, v{o}, v{o+1}")
        g(f"v_cvt_pk_bf16_f32 v{d+1}, v{o+2}, v{o+3}")
g("s_lshr_b32 s3, s30, 1")
g("s_mul_i32 s3, s3, 10240")
g("s_add_u32 s3, s3, s44")
g("s_add_u32 s4, s3, 8192")
g("s_and_b32 s5, s30, 1")
g("s_lshl_b32 s5, s5, 12")
g("s_add_u32 s3, s3, s5")
for p in range(2):
    d = 112 + p * 10
    g(f"buffer_store_dwordx4 v[{d}:{d+3}], v46, s[24:27], s3 offen offset:{p*1024} {OSC}", tag='o')
    g(f"buffer_store_dwordx4 v[{d+4}:{d+7}], v46, s[24:27], s3 offen offset:{2048+p*1024} {OSC}", tag='o')
    g(f"buffer_store_dwordx2 v[{d+8}:{d+9}], v47, s[24:27], s4 offen offset:{p*1024} {OSC}", tag='o')
g("s_lshl_b32 s3, s30, 2")
g("s_add_u32 s3, s3, s49")
g("v_mov_b32 v6, s39")
g("v_mov_b32 v7, 0")
g.force_wait(vm=0)
g("s_mov_b64 exec, 1")
g(f"buffer_store_dword v6, v7, s[24:27], s3 offen {OSC}")
g("s_mov_b64 exec, -1")
stamp()
g("s_barrier")
p3 = []
for ks in range(20):
    for t in range(5):
        p3.append((ks, t))
def p3_read(i):
    ks, t = p3[i]
    j, q = ks // 5, ks % 5
    b = wreg(i)
    if q < 4:
        va = "v28" if j < 2 else "v29"
        imm = (160 * (j & 1) + (0, 8, 80, 88)[q]) * 160 + 8 * t
        d2 = 640
    else:
        va = "v30" if j < 2 else "v31"
        imm = (160 * (j & 1) + 16) * 160 + 8 * t
        d2 = 6400
    g(f"ds_read_b64_tr_b16 a[{b}:{b+1}], {va} offset:{imm}")
    g(f"ds_read_b64_tr_b16 a[{b+2}:{b+3}], {va} offset:{imm+d2}")
for i in range(D):
    p3_read(i)
g("v_lshlrev_b32 v7, 2, v1")
g("v_min_u32 v7, 28, v7")
def _ld():
    g("buffer_load_dword v36, v7, s[24:27], s49 offen sc1")
def _tst():
    g("v_cmp_eq_u32 vcc, s39, v36")
    g("s_cmp_eq_u64 vcc, -1")
spin_wait(_ld, _tst, "o")
g.force_wait(vm=0)
stamp()
g("s_mov_b32 s3, s44")
for k in range(40):
    g(f"buffer_load_dwordx4 a[{4*k}:{4*k+3}], v46, s[24:27], s3 offen offset:{(k%4)*1024} sc1")
    if k % 4 == 3 and k < 39:
        g("s_add_u32 s3, s3, 4096")
for i in range(100):
    ks, t = p3[i]
    b = wreg(i)
    for p in range(2):
        acc = 144 + (t * 2 + p) * 4
        c = "0" if ks == 0 else f"v[{acc}:{acc+3}]"
        o = (ks * 2 + p) * 4
        g(f"v_mfma_f32_16x16x32_bf16 v[{acc}:{acc+3}], a[{b}:{b+3}], a[{o}:{o+3}], {c}")
        if p == 0 and i + D < 100:
            p3_read(i + D)
stamp()
g("s_mul_i32 s3, s48, 2560")
g("s_mul_i32 s4, s28, 1280")
g("s_add_u32 s3, s3, s4")
g("s_mul_i32 s4, s30, 160")
g("s_add_u32 s3, s3, s4")
for p in range(2):
    for t in range(5):
        a = 144 + (t * 2 + p) * 4
        d = 112 + p * 10 + 2 * t
        g(f"v_cvt_pk_bf16_f32 v{d}, v{a}, v{a+1}")
        g(f"v_cvt_pk_bf16_f32 v{d+1}, v{a+2}, v{a+3}")
    d = 112 + p * 10
    g(f"buffer_store_dwordx4 v[{d}:{d+3}], v48, s[20:23], s3 offen offset:{p*2560}")
    g(f"buffer_store_dwordx4 v[{d+4}:{d+7}], v48, s[20:23], s3 offen offset:{p*2560+16}")
    g(f"buffer_store_dwordx2 v[{d+8}:{d+9}], v48, s[20:23], s3 offen offset:{p*2560+32}")
if opt['prof']:
    g.force_wait(vm=0)
    stamp()
    g("s_memrealtime s[88:89]")
    g.wait_lg(0)
    g("v_writelane_b32 v5, s92, 62")
    g("v_writelane_b32 v5, s88, 63")
    g("s_lshl_b32 s3, s2, 2")
    g("s_add_u32 s3, s3, s31")
    g("s_lshl_b32 s3, s3, 8")
    g(f"s_add_u32 s3, s3, {WS_P}")
    g("v_lshlrev_b32 v6, 2, v1")
    g("buffer_store_dword v5, v6, s[24:27], s3 offen")
g.label("L_end")
g("s_endpgm")
g.raw(f""".section .rodata,"a"
.p2align 6
.amdhsa_kernel {NAME}
  .amdhsa_next_free_vgpr 512
  .amdhsa_next_free_sgpr 102
  .amdhsa_accum_offset 256
  .amdhsa_group_segment_fixed_size 0
  .amdhsa_kernarg_size 72
  .amdhsa_user_sgpr_count 2
  .amdhsa_user_sgpr_kernarg_segment_ptr 1
  .amdhsa_system_sgpr_workgroup_id_x 1
.end_amdhsa_kernel""")
sys.stdout.write(g.text())
sys.stderr.write(f"bytes~{g.nbytes} stats={g.stats}\n")
```

```python
import sys
from asmgen import Asm

opt = dict(dist=6, nbuf=8, dmagap=2, barf=14, prof=0, fst=12, cf=4, brx=1, t5=1, tq=-1, qd=0, two=1,
           order=1, early=0, pst=13, pf=8, cf2=6, ff=14, nb=0)
for a in sys.argv[1:]:
    k, v = a.split('=')
    opt[k] = int(v)

NAME = "concat_heads__sliding_local_dilated__linear_attn_block__prompt_kernel"
SLOT = 20544
XBASE = 5 * SLOT
KVB = XBASE
HS = 5768
SECS = 4 * HS
RS = 10304
KVF = XBASE + 4 * RS
WS_O, WS_H, WS_K, WS_F, WS_P = 0, 0x500000, 0x600000, 0x700000, 0x800000
SPIN = 1 << 14
LOG2E = 0x3FB8AA3B
SCL = 0x3EA52B5C
EPS = 0x358637BD
NEG = 0xF149F2CA

g = Asm()
def br(text):
    g.flush_hazards()
    g(text)
g.raw("; @launch grid=(256,1,1) block=(256,1,1) lds=163840")
g.raw('.amdgcn_target "amdgcn-amd-amdhsa--gfx950"')
g.raw(f".text\n.globl {NAME}\n.p2align 8\n.type {NAME},@function\n{NAME}:")

nstamp = [0]
lst = []
def lstamp():
    if opt['prof'] > 2:
        r = 100 - 2 * len(lst)
        lst.append(r)
        g.raw(f"  s_memtime s[{r}:{r+1}]")
def lflush():
    if opt['prof'] > 2:
        g.raw("  s_waitcnt lgkmcnt(0)")
        for r in lst:
            k = nstamp[0]; nstamp[0] += 1
            g(f"s_sub_u32 s88, s{r}, s90")
            g(f"v_writelane_b32 v5, s88, {k}")
def stamp():
    if opt['prof']:
        k = nstamp[0]; nstamp[0] += 1
        g("s_memtime s[88:89]")
        g.wait_lg(0)
        g("s_sub_u32 s88, s88, s90")
        g(f"v_writelane_b32 v5, s88, {k}")
def bstamp(k):
    if opt['prof'] > 3:
        g("s_memtime s[88:89]")
        g.wait_lg(0)
        g("s_sub_u32 s88, s88, s90")
        g(f"v_writelane_b32 v5, s88, {32+k}")
def tload(text):
    g(text)
    g.vm[-1] = (None, set())
    nv[0] += 1
def setexec(lo, hi):
    m = ((1 << hi) - 1) & ~((1 << lo) - 1)
    g(f"s_mov_b32 exec_lo, 0x{m & 0xffffffff:x}")
    g(f"s_mov_b32 exec_hi, 0x{m >> 32:x}")
nv = [0]

if opt['prof']:
    g("s_memrealtime s[92:93]")
    g("s_memtime s[90:91]")
g("s_cmp_ge_u32 s2, 256")
br("s_cbranch_scc1 L_end")
g("s_bfe_u32 s28, s2, 0x10002")
if opt['brx']:
    g("s_xor_b32 s28, s28, 1")
g("s_mul_i32 s5, s28, 24")
g("s_add_u32 s6, s0, s5")
g("s_addc_u32 s7, s1, 0")
g("s_load_dwordx2 s[8:9], s[6:7], 0")
g("s_load_dwordx2 s[12:13], s[6:7], 8")
g("s_load_dwordx2 s[16:17], s[6:7], 16")
g("s_load_dwordx2 s[20:21], s[0:1], 48")
g("s_load_dwordx2 s[40:41], s[0:1], 56")
g("s_load_dwordx2 s[24:25], s[0:1], 64")
g("s_getpc_b64 s[86:87]")
g.raw("L_pc0:")
g("s_bfe_u32 s30, s2, 0x30003")
g("s_lshl_b32 s3, s30, 12")
g("v_lshlrev_b32 v6, 4, v0")
g("v_add_u32 v6, s3, v6")
g("v_min_u32 v6, L_end-L_pc0-16, v6")
tload("global_load_dwordx4 v[60:63], v6, s[86:87]")
g("v_and_b32 v1, 63, v0")
g("v_lshrrev_b32 v2, 6, v0")
g("s_and_b32 s3, s2, 3")
g("v_readfirstlane_b32 s31, v2")
g("s_lshl_b32 s3, s3, 2")
g("s_lshr_b32 s78, s2, 6")
g("s_add_u32 s29, s3, s78")
g("s_add_u32 s3, s30, s78")
g("s_lshl_b32 s3, s3, 2")
g("s_mov_b32 s84, 0x21043210")
g("s_mov_b32 s85, 0x04321043")
g("s_lshr_b64 s[84:85], s[84:85], s3")
g("v_bfe_u32 v4, v0, 4, 2")
g("v_lshrrev_b32 v6, 3, v1")
g("v_mul_u32_u24 v6, 2560, v6")
g("v_and_b32 v7, 7, v1")
g("v_and_b32 v23, 1, v4")
g("v_xor_b32 v7, v7, v23")
g("v_lshl_add_u32 v40, v7, 4, v6")
g("v_add_u32 v41, 256, v40")
g("v_xor_b32 v7, 4, v7")
g("v_lshl_add_u32 v42, v7, 4, v6")
g(f"v_add_u32 v42, {16*1280-2048}, v42")
g("v_add_u32 v43, 256, v42")
g("s_lshl_b32 s3, s29, 7")
g("s_lshl_b32 s4, s31, 5")
g("s_add_u32 s48, s3, s4")
g("s_mul_i32 s32, s48, 1280")
g("s_and_b32 s3, s84, 7")
g("s_lshl_b32 s58, s3, 8")
g("s_add_u32 s58, s58, s32")
g("s_mul_i32 s79, s31, 12288")
g(f"s_add_u32 s79, s79, {XBASE}")
g("s_mov_b32 m0, s79")
g("s_mov_b32 s10, 2621440")
g("s_mov_b32 s11, 0x00020000")
g("s_mov_b32 s14, 2457600")
g("s_mov_b32 s15, 0x00020000")
g("v_mul_u32_u24 v24, 6554, v1")
g("v_lshlrev_b32 v46, 4, v1")
g("v_add_u32 v25, 1280, v46")
g("s_movk_i32 s4, 1120")
g("s_movk_i32 s5, 1280")
def wvoff(i):
    if i:
        g(f"v_add_u32 v6, {64*i*6554}, v24")
    src = "v6" if i else "v24"
    g(f"v_lshrrev_b32 v{52+i}, 16, {src}")
    g(f"v_lshrrev_b32 v7, 17, {src}")
    g(f"v_mad_u32_u24 v{8+i}, v{52+i}, s4, v25")
    g(f"v_mad_u32_u24 v{8+i}, v7, s5, v{8+i}")
    if i == 4:
        g(f"v_add_u32 v{8+i}, 4096, v{8+i}")
for i in range(5):
    wvoff(i)
g("s_mul_i32 s4, s30, 160")
g("s_mul_i32 s5, s31, 61440")
g("s_add_u32 s34, s5, s4")
g("s_mul_i32 s68, s3, 491520")
g("s_add_u32 s68, s68, s34")
g("s_add_u32 s5, s31, 1")
g("s_lshr_b32 s5, s5, 1")
g("s_lshl_b32 s5, s5, 5")
g("s_mul_i32 s45, s31, 5120")
g("s_add_u32 s36, s5, s45")
lstamp()
g.wait_lg(0)
lstamp()

cur_m0 = ["s79+0"]
def setm0(key):
    if cur_m0[0] != key:
        r, off = key.split('+')
        if int(off):
            g(f"s_add_u32 m0, {r}, {off}")
        else:
            g(f"s_mov_b32 m0, {r}")
        cur_m0[0] = key

class Op:
    def __init__(self, tag, m0, fn):
        self.tag, self.m0, self.fn = tag, m0, fn
queue = []
def pop():
    op = queue.pop(0)
    if op.m0:
        setm0(op.m0)
    op.fn()
    for o in queue[:1]:
        if o.m0:
            setm0(o.m0)
def enqueue(ops):
    was = bool(queue)
    queue.extend(ops)
    if not was and queue and queue[0].m0:
        setm0(queue[0].m0)

def dma_ops(st):
    sl = st % 5
    ops = []
    for i in range(5):
        off = 1024 * (i & 3)
        hi = 4096 if i == 4 else 0
        if st < 10:
            txt = f"buffer_load_dwordx4 v{8+i}, s[12:15], s{68+st} offen offset:{off} lds"
            m0 = f"s36+{sl*SLOT+hi}"
        elif st < 15:
            txt = f"buffer_load_dwordx4 v{13+i}, s[12:15], s{68+2*(st-10)} offen offset:{off} lds"
            m0 = f"s36+{sl*SLOT+hi}"
        else:
            uu = st - 15
            txt = f"buffer_load_dwordx4 v{18+i}, s[16:19], s37 offen offset:{off} lds"
            m0 = f"s45+{uu*20480+hi}"
        def fn(txt=txt, i=i, st=st):
            if st >= 15 and i == 0:
                g(f"s_add_u32 s37, s35, {(st-15)*128*1280}")
            g(txt, tag=('w', st))
            nv[0] += 1
        ops.append(Op(('w', st), m0, fn))
    return ops

def xreg(B, s, p):
    b = ((B * 2 + s) * 2 + p) * 4
    return f"a[{b}:{b+3}]"
def xregs(B):
    return {('a', i) for i in range(B * 16, B * 16 + 16)}
def x_ops(B):
    ops = []
    for i in range(4):
        def fn(i=i):
            if i == 0 and B >= 3:
                g._auto_wait(xregs(B - 3))
            g(f"buffer_load_dwordx4 v{40+i}, s[8:11], s{58+B} offen offset:{1024*i} lds", tag=('x', B))
            nv[0] += 1
        ops.append(Op(('x', B), f"s79+{(B%3)*4096}", fn))
    return ops
def x_read(B):
    for s in range(2):
        for p in range(2):
            g(f"ds_read_b128 {xreg(B,s,p)}, v{44+s} offset:{(B%3)*4096+1024*p}")

enqueue(x_ops(0) + dma_ops(0))
while queue:
    pop()
lstamp()
for base, n in ((16, 819200), (20, 5242880), (24, 1 << 24), (40, 256)):
    g(f"s_mov_b32 s{base+2}, {n}")
    g(f"s_mov_b32 s{base+3}, 0x00020000")
g("s_or_b32 s3, s2, s31")
g("s_cmp_lg_u32 s3, 0")
br("s_cbranch_scc1 L_notag")
with g.extra():
    g("s_memrealtime s[4:5]")
    g.wait_lg(0)
    g("s_lshl_b32 s4, s4, 6")
    g("s_or_b32 s4, s4, 1")
    g("v_mov_b32 v6, s4")
    g("v_mov_b32 v7, 0")
    g("s_mov_b64 exec, 1")
    g("buffer_store_dword v6, v7, s[40:43], 0 offen sc1")
    g("s_mov_b64 exec, -1")
g.label("L_notag")
g("s_add_u32 s59, s58, 128")
g(f"s_add_u32 s69, s68, {64*3840}")
for u in range(1, 5):
    g(f"s_bfe_u32 s3, s84, 0x{(3<<16)|(4*u):x}")
    g(f"s_lshl_b32 s{58+2*u}, s3, 8")
    g(f"s_add_u32 s{58+2*u}, s{58+2*u}, s32")
    g(f"s_add_u32 s{59+2*u}, s{58+2*u}, 128")
    g(f"s_mul_i32 s{68+2*u}, s3, 491520")
    g(f"s_add_u32 s{68+2*u}, s{68+2*u}, s34")
    g(f"s_add_u32 s{69+2*u}, s{68+2*u}, {64*3840}")
g("v_and_b32 v3, 15, v0")
g("v_bfe_u32 v49, v0, 2, 2")
g("v_and_b32 v50, 3, v0")
g("v_mul_u32_u24 v6, 320, v49")
g("v_mul_u32_u24 v7, 5120, v4")
g("v_add_u32 v6, v6, v7")
g("v_add_u32 v7, 1, v4")
g("v_lshrrev_b32 v7, 1, v7")
g("v_lshl_add_u32 v6, v7, 5, v6")
g("v_mul_u32_u24 v7, 40, v50")
g("v_add_u32 v26, v6, v7")
g(f"v_add_u32 v27, {3*SLOT}, v26")
g("s_cmp_eq_u32 s28, 0")
g("s_cselect_b32 s3, 40, 8")
g("s_cselect_b32 s4, 8, 40")
g("v_mad_u32_u24 v184, v50, s3, v6")
for t in range(1, 4):
    g(f"v_add_u32 v{184+2*t}, s4, v{182+2*t}")
g("v_add_u32 v192, 32, v26")
for t in range(5):
    g(f"v_add_u32 v{185+2*t}, {3*SLOT}, v{184+2*t}")
g("v_lshrrev_b32 v6, 3, v3")
g("v_lshlrev_b32 v6, 4, v6")
g("v_and_b32 v7, 7, v3")
g("v_add_u32 v6, v6, v7")
g("v_lshlrev_b32 v6, 7, v6")
g("v_lshrrev_b32 v7, 1, v3")
g("v_and_b32 v7, 5, v7")
g("v_lshlrev_b32 v23, 1, v4")
g("v_xor_b32 v7, v7, v23")
g("v_lshl_add_u32 v6, v7, 4, v6")
g("v_add_u32 v44, s79, v6")
g("v_xor_b32 v45, 16, v44")
g("s_lshl_b32 s54, s30, 13")
g("s_lshl_b32 s3, s31, 11")
g("s_add_u32 s54, s54, s3")
g(f"s_add_u32 s54, s54, {WS_K}")
g("s_lshl_b32 s55, s30, 7")
g("s_lshl_b32 s3, s31, 2")
g("s_add_u32 s55, s55, s3")
g(f"s_add_u32 s55, s55, {WS_F+0xA000}")
g("s_xor_b32 s3, s28, 1")
g("s_or_b32 s56, s3, s29")
g("v_lshlrev_b32 v51, 2, v1")
g("s_cmp_lg_u32 s56, 0")
br("s_cbranch_scc1 L_nozero")
with g.extra():
    for r in range(4):
        g(f"v_mov_b32 v{64+r}, 0")
    for k in range(2):
        g(f"buffer_store_dwordx4 v[64:67], v46, s[24:27], s54 offen offset:{k*1024} sc1")
g.label("L_nozero")
g("s_movk_i32 s4, 1120")
g(f"s_mov_b32 s5, {64*3840-160}")
g(f"s_mov_b32 s6, {128*3840-3840}")
for i in range(5):
    g(f"v_mad_u32_u24 v{18+i}, v{52+i}, s4, v46")
    g(f"v_mad_u32_u24 v{13+i}, v{52+i}, s5, v46")
    g(f"v_lshrrev_b32 v7, 1, v{52+i}")
    g(f"v_mul_u32_u24 v7, s6, v7")
    g(f"v_sub_u32 v{13+i}, v{13+i}, v7")
g("v_add_u32 v17, 4096, v17")
g("v_add_u32 v22, 4096, v22")
g("s_mul_i32 s5, s31, 40960")
g("s_mul_i32 s4, s30, 160")
g("s_add_u32 s35, s5, s4")
g("s_lshr_b32 s3, s2, 3")
g("s_lshl_b32 s3, s3, 2")
g("s_add_u32 s3, s3, s31")
g("v_mul_u32_u24 v7, 10, v52")
g("v_sub_u32 v7, v1, v7")
g("v_lshlrev_b32 v7, 7, v7")
g("v_lshl_add_u32 v6, v52, 7, s3")
g("v_mul_u32_u24 v59, 3840, v6")
g("v_add_u32 v59, v59, v7")
g("v_mul_u32_u24 v35, 1280, v6")
g("v_add_u32 v35, v35, v7")
g("s_add_u32 s3, s30, 4")
g("s_lshl_b32 s3, s3, 2")
g("s_mov_b32 s6, 0x21043210")
g("s_mov_b32 s7, 0x04321043")
g("s_lshr_b64 s[6:7], s[6:7], s3")
g("s_and_b32 s3, s6, 7")
g("s_lshl_b32 s3, s3, 2")
g("s_add_u32 s3, s3, s78")
g("s_lshl_b32 s3, s3, 2")
g("s_add_u32 s3, s3, s31")
g(f"s_mul_i32 s3, s3, {8*3840}")
g("s_add_u32 s3, s3, s4")
g("s_add_u32 s3, s3, 1280")
g("v_lshrrev_b32 v6, 2, v1")
g("v_mul_u32_u24 v6, 3840, v6")
g("v_bfe_u32 v7, v1, 1, 1")
g("v_mul_u32_u24 v7, 1280, v7")
g("v_and_b32 v23, 1, v1")
g("v_mul_u32_u24 v23, 156, v23")
g("v_add3_u32 v6, v6, v7, v23")
g("v_add_u32 v58, s3, v6")
def touch(va, base, n):
    setexec(0, n)
    tload(f"global_load_dword v32, {va}, {base}")
    g("s_mov_b64 exec, -1")
g("v_mul_u32_u24 v6, 160, v49")
g("v_mul_u32_u24 v7, 40, v50")
g("v_add_u32 v6, v6, v7")
g("v_mul_u32_u24 v7, 3200, v4")
g("v_add_u32 v28, v6, v7")
g("v_add_u32 v29, 51200, v28")
g("v_lshrrev_b32 v7, 1, v4")
g("v_mul_u32_u24 v7, 12800, v7")
g("v_add_u32 v6, v6, v7")
g("v_and_b32 v7, 1, v4")
g("v_mul_u32_u24 v7, 3200, v7")
g("v_add_u32 v30, v6, v7")
g("v_add_u32 v31, 51200, v30")
g("s_and_b32 s3, s30, 1")
g("s_lshl_b32 s3, s3, 9")
g("v_and_b32 v6, 1, v4")
g("v_lshlrev_b32 v6, 8, v6")
g("v_lshl_add_u32 v6, v3, 4, v6")
g("v_lshrrev_b32 v7, 1, v4")
g("v_lshl_add_u32 v6, v7, 3, v6")
g("v_add_u32 v47, s3, v6")
g("v_mul_u32_u24 v6, 5120, v3")
g("v_mul_u32_u24 v7, 40, v4")
g("v_add_u32 v48, v6, v7")
g("s_lshl_b32 s3, s31, 5")
g(f"s_add_u32 s3, s3, {KVB}")
g(f"v_mul_u32_u24 v6, {HS}, v49")
g("v_mul_u32_u24 v7, 288, v50")
g("v_add_u32 v6, v6, v7")
g("v_lshl_add_u32 v6, v4, 3, v6")
g("v_add_u32 v37, s3, v6")
g("v_add_u32 v37, 16, v37")
g(f"v_mul_u32_u24 v23, {HS}, v4")
g("v_mul_u32_u24 v6, 288, v49")
g("v_add_u32 v6, v6, v23")
g("v_lshl_add_u32 v6, v50, 3, v6")
g("v_add_u32 v38, s3, v6")
g("v_add_u32 v6, v7, v23")
g("v_lshl_add_u32 v6, v49, 3, v6")
g("v_add_u32 v39, s3, v6")
g(f"v_add_u32 v39, {SECS}, v39")
g("s_lshl_b32 s3, s28, 4")
g("s_add_u32 s3, s3, s29")
g("s_lshl_b32 s3, s3, 2")
g("s_add_u32 s3, s3, s31")
g("s_mul_i32 s44, s3, 40960")
g("s_lshl_b32 s49, s3, 7")
g(f"s_add_u32 s49, s49, {WS_F}")
g("s_lshl_b32 s3, s29, 3")
g("s_add_u32 s3, s3, s30")
g("s_lshl_b32 s4, s3, 7")
g(f"s_add_u32 s4, s4, {WS_F+0x4000}")
g("s_mul_i32 s50, s3, 5120")
g(f"s_add_u32 s50, s50, {WS_H}")
g("s_lshl_b32 s5, s30, 8")
g("s_lshl_b32 s6, s31, 6")
g("s_add_u32 s5, s5, s6")
g(f"s_add_u32 s5, s5, {WS_F+0x8000}")
g("s_lshl_b32 s6, s29, 2")
g("s_add_u32 s6, s6, s5")
g("s_sub_u32 s3, s4, 1024")
g("s_cmp_eq_u32 s28, 0")
g("s_cselect_b32 s47, s4, s6")
g("s_cselect_b32 s57, s3, s5")
g("v_lshlrev_b32 v25, 2, v3")
g("v_mul_u32_u24 v25, s28, v25")
g("s_cmp_eq_u32 s31, 3")
g("s_cselect_b32 s51, 1, 0")
g("s_or_b32 s51, s51, s28")
g("s_cmp_eq_u32 s31, 0")
g("s_cselect_b32 s81, 1, 0")
g("s_cmp_lg_u32 s29, 0")
g("s_cselect_b32 s81, s81, 0")
g("s_or_b32 s81, s81, s28")
g(f"s_mov_b32 s52, 0x{LOG2E:08x}")
g(f"s_mov_b32 s53, 0x{EPS:08x}")
g("s_mov_b32 s82, s52")
g("s_mov_b32 s83, s52")
g("s_mov_b32 s86, s53")
g("s_mov_b32 s87, s53")
lstamp()
enqueue(x_ops(1) + dma_ops(1))
while queue:
    pop()
if opt['t5']:
    touch("v58", "s[12:13]", 32)
enqueue(x_ops(2) + dma_ops(2) + dma_ops(3) + dma_ops(4))

frags = []
for st in range(15):
    for f in range(20):
        if st < 10:
            s, sec, t = f // 10, (f // 5) % 2, f % 5
            B = st
        else:
            sec, s, t = f // 10, (f // 5) % 2, f % 5
            B = 2 * (st - 10) + sec
        frags.append((st, f, s, sec, t, B))

NB = opt['nbuf']
def wreg(i):
    return 160 + 4 * (i % NB)

def issue_read(i, half=None):
    st, f, s, sec, t, B = frags[i]
    sl = st % 5
    imm = (sl % 3) * SLOT + s * 2560 + sec * 160
    if st < 10:
        va = f"v{184 + 2*t + (sl >= 3)}"
    else:
        va = "v26" if sl < 3 else "v27"
        imm += 8 * t
    b = wreg(i)
    if half in (None, 0):
        g(f"ds_read_b64_tr_b16 a[{b}:{b+1}], {va} offset:{imm}")
    if half in (None, 1):
        g(f"ds_read_b64_tr_b16 a[{b+2}:{b+3}], {va} offset:{imm+1280}")

D = opt['dist']
first = {}
def need(tag):
    while any(o.tag == tag for o in queue):
        pop()
    g.wait_tag(tag)

mark = [0]
lab = [0]
def spin_wait(load, test, what):
    n = lab[0]; lab[0] += 1
    g(f"s_mov_b32 s46, {SPIN}")
    g.label(f"L_spin{n}")
    with g.extra():
        load()
        g.force_wait(vm=0)
        test()
        br(f"s_cbranch_scc1 L_spun{n}")
        g("s_sleep 1")
        g("s_sub_u32 s46, s46, 1")
        g("s_cmp_lg_u32 s46, 0")
        br(f"s_cbranch_scc1 L_spin{n}")
    g.label(f"L_spun{n}")

def mid_test():
    g("v_cmp_eq_u32 vcc, s39, v36")
    g("s_cmp_eq_u64 vcc, -1")
def mid_loads(lbl):
    g("s_cmp_eq_u32 s28, 1")
    br(f"s_cbranch_scc1 L_mlb{lbl}")
    g("s_sub_u32 s3, s50, 40960")
    g("s_add_u32 s4, s3, 2560")
    g("v_subrev_u32 v6, 512, v46")
    g("s_mov_b32 exec_lo, 0")
    g.flush_hazards()
    for idx in range(10):
        d = 64 + idx * 4
        g.raw(f"  buffer_load_dwordx4 v[{d}:{d+3}], v6, s[24:27], {'s3' if idx < 5 else 's4'} offen offset:{(idx%5)*512} sc1")
    g("s_mov_b32 exec_lo, -1")
    br(f"s_branch L_mld{lbl}")
    g.label(f"L_mlb{lbl}")
    for k in range(8):
        g.raw(f"  buffer_load_dword v{64+k}, v51, s[24:27], s54 offen offset:{k*256} sc1")
    g.label(f"L_mld{lbl}")
    g("s_mov_b32 s81, 0")

def publish_mid():
    g.force_wait(vm=min(63, min(len(g.vm), nv[0] - mark[0])))
    g("s_cmp_eq_u32 s51, 0")
    br("s_cbranch_scc1 L_nof1")
    with g.extra():
        g("v_mov_b32 v6, s39")
        g("v_mov_b32 v7, 0")
        g("s_mov_b64 exec, 1")
        g("buffer_store_dword v6, v7, s[24:27], s47 offen sc1")
        g("s_mov_b64 exec, -1")
    g.label("L_nof1")

def run_phase(lo, hi, sid):
    st0 = frags[lo][0]
    if sid == 0:
        lflush()
        stamp()
    need(('w', st0))
    if sid == 0:
        need(('x', 0))
        x_read(0)
        enqueue(x_ops(3))
    g("s_barrier")
    stamp()
    for i in range(lo, lo + D):
        issue_read(i)
    for i in range(lo, hi):
        st, f, s, sec, t, B = frags[i]
        last = (i + 20 - f) >= hi
        if f == opt['barf']:
            if not last:
                need(('w', st + 1))
                if sid == 0:
                    need(('x', st + 1))
            if st == 4:
                g("v_readfirstlane_b32 s39, v36")
                g("s_cmp_lg_u32 s39, 0")
                br("s_cbranch_scc1 L_havetag")
                def _ld():
                    g("v_mov_b32 v7, 0")
                    g("buffer_load_dword v36, v7, s[40:43], 0 offen sc1")
                def _tst():
                    g("v_readfirstlane_b32 s39, v36")
                    g("s_cmp_lg_u32 s39, 0")
                spin_wait(_ld, _tst, "tag")
                g.label("L_havetag")
                g("s_cmp_lg_u32 s56, 0")
                br("s_cbranch_scc1 L_nozf")
                with g.extra():
                    g("v_mov_b32 v6, s39")
                    g("v_mov_b32 v7, 0")
                    g("s_mov_b64 exec, 1")
                    g("buffer_store_dword v6, v7, s[24:27], s55 offen sc1")
                    g("s_mov_b64 exec, -1")
                g.label("L_nozf")
            if st == opt['fst'] and opt['ff'] == opt['barf']:
                publish_mid()
            g("s_barrier")
            if opt['prof'] > 1:
                stamp()
            if sid == 0 and not last:
                x_read(st + 1)
            if st == 1:
                g("v_mov_b32 v7, 0")
                g("buffer_load_dword v36, v7, s[40:43], 0 offen sc1")
                nv[0] += 1
            if st == 8:
                g("v_mov_b32 v7, 0")
                g("buffer_load_dword v36, v7, s[24:27], s55 offen sc1")
                nv[0] += 1
            for s2 in range(5, 19):
                at = s2 - 4
                if 10 <= s2 <= 13:
                    at = max(at, opt['qd'])
                if at == st:
                    enqueue(dma_ops(s2))
            if sid == 0 and st + 4 < 10:
                enqueue(x_ops(st + 4))
            if st == opt['tq']:
                enqueue([Op(None, None, lambda: touch("v59", "s[12:13]", 50))])
        if st == opt['fst'] and f == opt['ff'] and f != opt['barf']:
            publish_mid()
        if opt['early']:
            if st == opt['pst'] and f == opt['pf']:
                g("buffer_load_dword v36, v25, s[24:27], s57 offen sc1")
                nv[0] += 1
            if st == 14 and f == opt['cf2']:
                mid_test()
                g("s_cselect_b32 s3, s81, 0")
                g("s_cmp_eq_u32 s3, 0")
                br("s_cbranch_scc1 L_noearly")
                mid_loads(0)
                g.label("L_noearly")
        elif st == 14 and f == opt['cf']:
            g("buffer_load_dword v36, v25, s[24:27], s57 offen sc1")
            nv[0] += 1
        b = wreg(i)
        for p in range(2):
            if st < 10:
                acc = 64 + ((sec * 5 + t) * 2 + p) * 4
            else:
                acc = 144 + (t * 2 + p) * 4
            key = (sid, acc)
            c = f"v[{acc}:{acc+3}]" if key in first else "0"
            first[key] = 1
            if st < 10:
                g(f"v_mfma_f32_16x16x32_bf16 v[{acc}:{acc+3}], {xreg(B,s,p)}, a[{b}:{b+3}], {c}")
            else:
                g(f"v_mfma_f32_16x16x32_bf16 v[{acc}:{acc+3}], a[{b}:{b+3}], {xreg(B,s,p)}, {c}")
            if i + D < hi:
                if opt['order']:
                    issue_read(i + D, p)
                elif p == 0:
                    issue_read(i + D)
            if p == 1 and queue and (i % opt['dmagap'] == 0 or len(queue) > 9):
                pop()
    while queue:
        pop()

def phi(regs, tmp):
    n = len(regs)
    for k in range(0, n, 2):
        r, t = regs[k], tmp[k]
        g(f"v_pk_mul_f32 v[{t}:{t+1}], v[{r}:{r+1}], s[82:83]")
        g(f"v_pk_add_f32 v[{r}:{r+1}], v[{r}:{r+1}], 1.0 op_sel_hi:[1,0]")
    for r, t in zip(regs, tmp):
        g(f"v_exp_f32_e64 v{t}, v{t} clamp")
    for r, t in zip(regs, tmp):
        g(f"v_max_f32 v{r}, v{r}, v{t}")
    for k in range(0, n, 2):
        r = regs[k]
        g(f"v_pk_add_f32 v[{r}:{r+1}], v[{r}:{r+1}], s[86:87]")

run_phase(0, 200, 0)
stamp()
if opt['two']:
    touch("v35", "s[16:17]", 50)
g("s_cmp_eq_u32 s28, 1")
br("s_cbranch_scc1 L_m1b")
with g.extra():
    for sec in range(2):
        for t in range(5):
            idx = sec * 5 + t
            for p in range(2):
                a = 64 + (idx * 2 + p) * 4
                d = 184 + idx * 4 + 2 * p
                g(f"v_cvt_pk_bf16_f32 v{d}, v{a}, v{a+1}")
                g(f"v_cvt_pk_bf16_f32 v{d+1}, v{a+2}, v{a+3}")
            for p in range(2):
                d = 184 + idx * 4 + 2 * p
                g(f"ds_write_b64 v37, v[{d}:{d+1}] offset:{sec*SECS+t*1152+p*144}")
    bstamp(6)
    g("s_cmp_lg_u32 s31, 3")
    br("s_cbranch_scc1 L_nohalo")
    g("s_add_u32 s3, s50, 2560")
    g("v_subrev_u32 v6, 512, v46")
    g("s_mov_b32 exec_lo, 0")
    for idx in range(10):
        d = 184 + idx * 4
        g(f"buffer_store_dwordx4 v[{d}:{d+3}], v6, s[24:27], {'s50' if idx < 5 else 's3'} offen offset:{(idx%5)*512} sc1")
    g("s_mov_b32 exec_lo, -1")
    g.label("L_nohalo")
    g.force_wait(lg=0)
    br("s_branch L_m1done")
g.label("L_m1b")
with g.extra():
    g(f"s_mul_i32 s3, s31, {RS}")
    g(f"s_add_u32 s3, s3, {XBASE}")
    g("v_add_u32 v6, s3, v46")
    for idx in list(range(5, 10)) + list(range(5)):
        if idx == 0:
            for r in range(4):
                g(f"v_mov_b32 v{224+r}, 0x3f803f80")
            g("v_mov_b32 v7, s3")
            g("ds_write_b128 v7, v[224:227] offset:10240")
            phi(list(range(64, 104)), list(range(208, 248)))
        d = 184 + (idx % 5) * 4 + (0 if idx >= 5 else 0)
        d = 184 + (idx % 6) * 4
        for p in range(2):
            a = 64 + (idx * 2 + p) * 4
            g(f"v_cvt_pk_bf16_f32 v{d+2*p}, v{a}, v{a+1}")
            g(f"v_cvt_pk_bf16_f32 v{d+2*p+1}, v{a+2}, v{a+3}")
        g(f"ds_write_b128 v6, v[{d}:{d+3}] offset:{idx*1024}")
    bstamp(6)
    g("s_lshl_b32 s3, s31, 10")
    g(f"s_add_u32 s3, s3, {XBASE}")
    g("v_add_u32 v6, s3, v46")
    g("s_lshl_b32 s3, s31, 6")
    g(f"s_add_u32 s3, s3, {XBASE+4096}")
    g("v_lshlrev_b32 v7, 8, v4")
    g("v_lshl_add_u32 v7, v50, 4, v7")
    g("v_add_u32 v7, s3, v7")
    g("v_add_u32 v23, 5120, v7")
    g(f"v_mov_b32 v24, {XBASE+10240}")
    g("v_and_b32 v34, 4, v1")
    g("v_cmp_eq_u32 vcc, 0, v34")
    g("v_cndmask_b32 v23, v24, v23, vcc")
    g.force_wait(lg=0)
    g("s_barrier")
    bstamp(7)
    for w2 in range(4):
        b = 64 + w2 * 16
        g(f"ds_read_b128 v[{b}:{b+3}], v6 offset:{w2*RS}")
        g(f"ds_read_b128 v[{b+4}:{b+7}], v6 offset:{w2*RS+5120}")
        g(f"ds_read_b128 v[{b+8}:{b+11}], v23 offset:{w2*RS}")
        g(f"ds_read_b128 v[{b+12}:{b+15}], v7 offset:{w2*RS}")
    for w2 in range(4):
        b = 64 + w2 * 16
        pk, vh, b2, a2 = (f"v[{b+4*k}:{b+4*k+3}]" for k in range(4))
        for k, (A, Bo) in enumerate(((pk, vh), (pk, b2), (a2, vh), (a2, b2))):
            d = 184 + 4 * k
            c = f"v[{d}:{d+3}]" if w2 else "0"
            g(f"v_mfma_f32_16x16x32_bf16 v[{d}:{d+3}], {A}, {Bo}, {c}")
    g("v_readfirstlane_b32 s3, v36")
    g("s_cmp_eq_u32 s3, s39")
    br("s_cbranch_scc1 L_zok")
    def _ld():
        g("v_mov_b32 v7, 0")
        g("buffer_load_dword v36, v7, s[24:27], s55 offen sc1")
    def _tst():
        g("v_readfirstlane_b32 s3, v36")
        g("s_cmp_eq_u32 s3, s39")
    spin_wait(_ld, _tst, "zero")
    g.label("L_zok")
    bstamp(8)
    g("s_mov_b32 s4, 0x00ffff00")
    g("s_mov_b32 s5, 0")
    g("s_mov_b32 s6, 0")
    g("s_mov_b32 s7, 0xff00ff00")
    for r in range(4):
        g(f"buffer_atomic_add_f32 v{184+r}, v51, s[24:27], s54 offen offset:{r*256} sc1")
    for r in range(4):
        g(f"v_cndmask_b32 v{188+r}, v{188+r}, v{192+r}, s[4:5]")
        g(f"v_cndmask_b32 v{188+r}, v{188+r}, v{196+r}, s[6:7]")
    for r in range(4):
        g(f"buffer_atomic_add_f32 v{188+r}, v51, s[24:27], s54 offen offset:{1024+r*256} sc1")
g.label("L_m1done")
mark[0] = nv[0]
stamp()
run_phase(200, 300, 1)
g("s_barrier")
enqueue(dma_ops(19))
while queue:
    pop()
stamp()
g("s_cmp_eq_u32 s81, 0")
br("s_cbranch_scc1 L_midok")
if not opt['early']:
    mid_test()
    br("s_cbranch_scc1 L_midgo")
def _ld():
    g("buffer_load_dword v36, v25, s[24:27], s57 offen sc1")
spin_wait(_ld, mid_test, "mid")
g.label("L_midgo")
mid_loads(1)
g.label("L_midok")
bstamp(0)
g("s_cmp_eq_u32 s28, 1")
br("s_cbranch_scc1 L_m2b")
with g.extra():
    g("s_or_b32 s3, s29, s31")
    g("s_cmp_lg_u32 s3, 0")
    br("s_cbranch_scc1 L_halo1")
    for r in range(40):
        g(f"v_mov_b32 v{64+r}, 0")
    g.label("L_halo1")
    for t in range(5):
        for p in range(2):
            a = 144 + (t * 2 + p) * 4
            d = 184 + (p * 5 + t) * 2
            g(f"v_cvt_pk_bf16_f32 v{d}, v{a}, v{a+1}")
            g(f"v_cvt_pk_bf16_f32 v{d+1}, v{a+2}, v{a+3}")
    g("s_cmp_eq_u32 s3, 0")
    g("s_cselect_b32 s4, 0, 64")
    g(f"v_mov_b32 v6, 0x{NEG:08x}")
    g("v_lshlrev_b32 v7, 2, v49")
    g("v_add_u32 v7, s4, v7")
    for c in range(3):
        for r in range(4):
            d = 52 + c * 4 + r
            if c == 0:
                g(f"v_cmp_le_u32 vcc, {r}, v50")
                g(f"v_cndmask_b32 v{d}, v6, 0, vcc")
            elif c == 1:
                g(f"v_cmp_le_u32 vcc, {4-r}, v7")
                g(f"v_cndmask_b32 v{d}, v6, 0, vcc")
            else:
                g(f"v_cmp_le_u32 vcc, {8-r}, v7")
                g(f"v_cndmask_b32 v{d}, v6, 0, vcc")
                g(f"v_cmp_gt_u32 vcc, {r}, v50")
                g(f"v_cndmask_b32 v{d}, v6, v{d}, vcc")
    g("v_mov_b32 v240, 0x3f803f80")
    g("v_mov_b32 v241, 0x3f803f80")
    g(f"s_mov_b32 s4, 0x{SCL:08x}")
    g("s_cmp_lg_u32 s31, 0")
    br("s_cbranch_scc1 L_halodone")
    g("v_subrev_u32 v23, 32, v37")
    g.force_wait(vm=0)
    g("s_mov_b32 exec_lo, 0")
    for sec in range(2):
        for t in range(5):
            idx = sec * 5 + t
            for p in range(2):
                d = 64 + idx * 4 + 2 * p
                g(f"ds_write_b64 v23, v[{d}:{d+1}] offset:{sec*SECS+t*1152+p*144}")
    g("s_mov_b32 exec_lo, -1")
    g.force_wait(lg=0)
    g.label("L_halodone")
    bstamp(1)
    def kreg(p, c, t):
        b = ((p * 3 + c) * 5 + t) * 2
        return f"a[{b}:{b+1}]"
    def vreg(p, c, t):
        b = 60 + ((p * 3 + c) * 5 + t) * 2
        return f"a[{b}:{b+1}]"
    for t in range(5):
        for p in range(2):
            for c in range(3):
                g(f"ds_read_b64_tr_b16 {kreg(p,c,t)}, v38 offset:{t*1152+p*144+16-8*c}")
    for t in range(5):
        for p in range(2):
            for c in range(3):
                g(f"ds_read_b64 {vreg(p,c,t)}, v39 offset:{t*1152+p*144+16-8*c}")
    for t in range(5):
        for p in range(2):
            for c in range(3):
                s = 204 + (p * 3 + c) * 4
                q = 184 + (p * 5 + t) * 2
                cc = f"v[{52+4*c}:{55+4*c}]" if t == 0 else f"v[{s}:{s+3}]"
                g(f"v_mfma_f32_4x4x4_16b_bf16 v[{s}:{s+3}], {kreg(p,c,t)}, v[{q}:{q+1}], {cc}")
    bstamp(2)
    for p in range(2):
        s = 204 + p * 12
        m = 242 + p * 4
        for k in range(4):
            g(f"v_max3_f32 v{m+k}, v{s+3*k}, v{s+3*k+1}, v{s+3*k+2}")
        g(f"v_max3_f32 v{m}, v{m}, v{m+1}, v{m+2}")
        g(f"v_max_f32 v{m}, v{m}, v{m+3}")
        g(f"v_mul_f32 v{m}, s4, v{m}")
    for p in range(2):
        s = 204 + p * 12
        m = 242 + p * 4
        for k in range(12):
            g(f"v_fma_f32 v{s+k}, v{s+k}, s4, -v{m}")
        for k in range(12):
            g(f"v_exp_f32 v{s+k}, v{s+k}")
    for p in range(2):
        s = 204 + p * 12
        for k in range(6):
            g(f"v_cvt_pk_bf16_f32 v{228+p*6+k}, v{s+2*k}, v{s+2*k+1}")
    bstamp(3)
    for c in range(3):
        for p in range(2):
            pr = 228 + (p * 3 + c) * 2
            for t in range(6):
                o = 64 + (p * 6 + t) * 4
                a = vreg(p, c, t) if t < 5 else "v[240:241]"
                cc = "0" if c == 0 else f"v[{o}:{o+3}]"
                g(f"v_mfma_f32_4x4x4_16b_bf16 v[{o}:{o+3}], {a}, v[{pr}:{pr+1}], {cc}")
    br("s_branch L_m2done")
g.label("L_m2b")
with g.extra():
    phi(list(range(144, 184)), list(range(184, 224)))
    for t in range(5):
        for p in range(2):
            a = 144 + (t * 2 + p) * 4
            g(f"v_cvt_pk_bf16_f32 v{a}, v{a}, v{a+1}")
            g(f"v_cvt_pk_bf16_f32 v{a+1}, v{a+2}, v{a+3}")
    g("s_lshl_b32 s3, s31, 5")
    g(f"s_add_u32 s3, s3, {KVF}")
    g("v_lshl_add_u32 v6, v50, 3, s3")
    g("v_mul_u32_u24 v7, 768, v4")
    g("v_lshl_add_u32 v23, v49, 7, v6")
    g("v_add_u32 v23, v23, v7")
    g("s_mov_b32 s4, 0x00ffff00")
    g("s_mov_b32 s5, 0xff00ff00")
    g("v_mov_b32 v24, 3072")
    g("v_cndmask_b32 v7, v7, v24, s[4:5]")
    g("v_and_b32 v24, 1, v49")
    g("v_add_u32 v24, 4, v24")
    g("s_mov_b32 s5, 0")
    g("v_cndmask_b32 v24, v24, v49, s[4:5]")
    g("v_lshl_add_u32 v24, v24, 7, v6")
    g("v_add_u32 v24, v24, v7")
    g("v_lshl_add_u32 v7, v4, 2, v50")
    g("v_lshlrev_b32 v7, 3, v7")
    g(f"v_add_u32 v7, {KVF}, v7")
    bstamp(1)
    g.force_wait(vm=0)
    bstamp(2)
    for k in range(4):
        g(f"v_cvt_pk_bf16_f32 v{72+k}, v{64+2*k}, v{65+2*k}")
    g("ds_write_b64 v23, v[72:73]")
    g("ds_write_b64 v24, v[74:75]")
    g.force_wait(lg=0)
    g("s_barrier")
    bstamp(3)
    for T in range(30):
        g(f"ds_read_b64 a[{2*T}:{2*T+1}], v7 offset:{T*128}")
    for t in range(5):
        for t2 in range(6):
            T = t * 6 + t2
            for p in range(2):
                o = 64 + (p * 6 + t2) * 4
                q = 144 + (t * 2 + p) * 4
                cc = "0" if t == 0 else f"v[{o}:{o+3}]"
                g(f"v_mfma_f32_4x4x4_16b_bf16 v[{o}:{o+3}], a[{2*T}:{2*T+1}], v[{q}:{q+1}], {cc}")
    for p in range(2):
        o = 64 + (p * 6 + 5) * 4
        g(f"v_add_f32 v{o}, s53, v{o}")
g.label("L_m2done")
bstamp(4)
for p in range(2):
    o = 64 + (p * 6 + 5) * 4
    g(f"v_rcp_f32 v{o}, v{o}")
for p in range(2):
    dn = 64 + (p * 6 + 5) * 4
    for t in range(5):
        o = 64 + (p * 6 + t) * 4
        for r in range(0, 4, 2):
            g(f"v_pk_mul_f32 v[{o+r}:{o+r+1}], v[{o+r}:{o+r+1}], v[{dn}:{dn+1}] op_sel_hi:[1,0]")
        d = 112 + p * 10 + 2 * t
        g(f"v_cvt_pk_bf16_f32 v{d}, v{o}, v{o+1}")
        g(f"v_cvt_pk_bf16_f32 v{d+1}, v{o+2}, v{o+3}")
g("s_lshr_b32 s3, s30, 1")
g("s_mul_i32 s3, s3, 10240")
g("s_add_u32 s3, s3, s44")
g("s_add_u32 s4, s3, 8192")
g("s_and_b32 s5, s30, 1")
g("s_lshl_b32 s5, s5, 12")
g("s_add_u32 s3, s3, s5")
OSC = 'sc1'
for p in range(2):
    d = 112 + p * 10
    g(f"buffer_store_dwordx4 v[{d}:{d+3}], v46, s[24:27], s3 offen offset:{p*1024} {OSC}", tag='o')
    g(f"buffer_store_dwordx4 v[{d+4}:{d+7}], v46, s[24:27], s3 offen offset:{2048+p*1024} {OSC}", tag='o')
    g(f"buffer_store_dwordx2 v[{d+8}:{d+9}], v47, s[24:27], s4 offen offset:{p*1024} {OSC}", tag='o')
bstamp(5)
g("s_lshl_b32 s3, s30, 2")
g("s_add_u32 s3, s3, s49")
g("v_mov_b32 v6, s39")
g("v_mov_b32 v7, 0")
g.force_wait(vm=0)
g("s_mov_b64 exec, 1")
g(f"buffer_store_dword v6, v7, s[24:27], s3 offen {OSC}")
g("s_mov_b64 exec, -1")
stamp()
g("s_barrier")
p3 = []
for ks in range(20):
    for t in range(5):
        p3.append((ks, t))
def p3_read(i, half=None):
    ks, t = p3[i]
    j, q = ks // 5, ks % 5
    b = wreg(i)
    if q < 4:
        va = "v28" if j < 2 else "v29"
        imm = (160 * (j & 1) + (0, 8, 80, 88)[q]) * 160 + 8 * t
        d2 = 640
    else:
        va = "v30" if j < 2 else "v31"
        imm = (160 * (j & 1) + 16) * 160 + 8 * t
        d2 = 6400
    if half in (None, 0):
        g(f"ds_read_b64_tr_b16 a[{b}:{b+1}], {va} offset:{imm}")
    if half in (None, 1):
        g(f"ds_read_b64_tr_b16 a[{b+2}:{b+3}], {va} offset:{imm+d2}")
for i in range(D):
    p3_read(i)
g("v_min_u32 v7, 28, v51")
def _ld():
    g("buffer_load_dword v36, v7, s[24:27], s49 offen sc1")
spin_wait(_ld, mid_test, "o")
g.force_wait(vm=0)
stamp()
g("s_mov_b32 s3, s44")
for k in range(40):
    g(f"buffer_load_dwordx4 a[{4*k}:{4*k+3}], v46, s[24:27], s3 offen offset:{(k%4)*1024} sc1")
    if k % 4 == 3 and k < 39:
        g("s_add_u32 s3, s3, 4096")
for i in range(100):
    ks, t = p3[i]
    b = wreg(i)
    for p in range(2):
        acc = 144 + (t * 2 + p) * 4
        c = "0" if ks == 0 else f"v[{acc}:{acc+3}]"
        o = (ks * 2 + p) * 4
        g(f"v_mfma_f32_16x16x32_bf16 v[{acc}:{acc+3}], a[{b}:{b+3}], a[{o}:{o+3}], {c}")
        if i + D < 100:
            if opt['order']:
                p3_read(i + D, p)
            elif p == 0:
                p3_read(i + D)
stamp()
g("s_mul_i32 s3, s48, 2560")
g("s_mul_i32 s4, s28, 1280")
g("s_add_u32 s3, s3, s4")
g("s_mul_i32 s4, s30, 160")
g("s_add_u32 s3, s3, s4")
for p in range(2):
    for t in range(5):
        a = 144 + (t * 2 + p) * 4
        d = 112 + p * 10 + 2 * t
        g(f"v_cvt_pk_bf16_f32 v{d}, v{a}, v{a+1}")
        g(f"v_cvt_pk_bf16_f32 v{d+1}, v{a+2}, v{a+3}")
    d = 112 + p * 10
    g(f"buffer_store_dwordx4 v[{d}:{d+3}], v48, s[20:23], s3 offen offset:{p*2560}")
    g(f"buffer_store_dwordx4 v[{d+4}:{d+7}], v48, s[20:23], s3 offen offset:{p*2560+16}")
    g(f"buffer_store_dwordx2 v[{d+8}:{d+9}], v48, s[20:23], s3 offen offset:{p*2560+32}")
if opt['prof']:
    g.force_wait(vm=0)
    stamp()
    g("s_memrealtime s[88:89]")
    g.wait_lg(0)
    g("v_writelane_b32 v5, s92, 62")
    g("v_writelane_b32 v5, s88, 63")
    g("s_lshl_b32 s3, s2, 2")
    g("s_add_u32 s3, s3, s31")
    g("s_lshl_b32 s3, s3, 8")
    g(f"s_add_u32 s3, s3, {WS_P}")
    g("buffer_store_dword v5, v51, s[24:27], s3 offen")
g.label("L_end")
g("s_endpgm")
g.raw(f""".section .rodata,"a"
.p2align 6
.amdhsa_kernel {NAME}
  .amdhsa_next_free_vgpr 512
  .amdhsa_next_free_sgpr 102
  .amdhsa_accum_offset 256
  .amdhsa_group_segment_fixed_size 0
  .amdhsa_kernarg_size 72
  .amdhsa_user_sgpr_count 2
  .amdhsa_user_sgpr_kernarg_segment_ptr 1
  .amdhsa_system_sgpr_workgroup_id_x 1
.end_amdhsa_kernel""")
sys.stdout.write(g.text())
sys.stderr.write(f"bytes~{g.nbytes} stats={g.stats}\n")
```

```python
import sys
from asmgen import Asm

opt = dict(dist=6, nbuf=8, dmagap=2, barf=14, prof=0, fst=11, cf=4, brx=1, t5=1, tq=-1, qd=0, two=1,
           order=1, early=0, pst=13, pf=8, cf2=6, ff=14, nb=0, pts=10, ptf=16, po=0, fo=1, xst=12, pa=0, dg=0)
for a in sys.argv[1:]:
    k, v = a.split('=')
    opt[k] = int(v)

NAME = "concat_heads__sliding_local_dilated__linear_attn_block__prompt_kernel"
SLOT = 20544
XBASE = 5 * SLOT
KVB = XBASE
HS = 5768
SECS = 4 * HS
RS = 10304
KVF = XBASE + 4 * RS
WS_O, WS_H, WS_K, WS_F, WS_P = 0, 0x500000, 0x600000, 0x700000, 0x800000
SPIN = 1 << 14
LOG2E = 0x3FB8AA3B
SCL = 0x3EA52B5C
EPS = 0x358637BD
NEG = 0xF149F2CA

g = Asm()
def br(text):
    g.flush_hazards()
    g(text)
g.raw("; @launch grid=(256,1,1) block=(256,1,1) lds=163840")
g.raw('.amdgcn_target "amdgcn-amd-amdhsa--gfx950"')
g.raw(f".text\n.globl {NAME}\n.p2align 8\n.type {NAME},@function\n{NAME}:")

nstamp = [0]
lst = []
def lstamp():
    if opt['prof'] > 2:
        r = 100 - 2 * len(lst)
        lst.append(r)
        g.raw(f"  s_memtime s[{r}:{r+1}]")
def lflush():
    if opt['prof'] > 2:
        g.raw("  s_waitcnt lgkmcnt(0)")
        for r in lst:
            k = nstamp[0]; nstamp[0] += 1
            g(f"s_sub_u32 s88, s{r}, s90")
            g(f"v_writelane_b32 v5, s88, {k}")
def stamp():
    if opt['prof']:
        k = nstamp[0]; nstamp[0] += 1
        g("s_memtime s[88:89]")
        g.wait_lg(0)
        g("s_sub_u32 s88, s88, s90")
        g(f"v_writelane_b32 v5, s88, {k}")
def bstamp(k):
    if opt['prof'] > 3:
        g("s_memtime s[88:89]")
        g.wait_lg(0)
        g("s_sub_u32 s88, s88, s90")
        g(f"v_writelane_b32 v5, s88, {32+k}")
def tload(text):
    g(text)
    g.vm[-1] = (None, set())
    nv[0] += 1
def setexec(lo, hi):
    m = ((1 << hi) - 1) & ~((1 << lo) - 1)
    g(f"s_mov_b32 exec_lo, 0x{m & 0xffffffff:x}")
    g(f"s_mov_b32 exec_hi, 0x{m >> 32:x}")
nv = [0]

if opt['prof']:
    g("s_memrealtime s[92:93]")
    g("s_memtime s[90:91]")
g("s_cmp_ge_u32 s2, 256")
br("s_cbranch_scc1 L_end")
g("s_bfe_u32 s28, s2, 0x10002")
if opt['brx']:
    g("s_xor_b32 s28, s28, 1")
g("s_mul_i32 s5, s28, 24")
g("s_add_u32 s6, s0, s5")
g("s_addc_u32 s7, s1, 0")
g("s_load_dwordx2 s[8:9], s[6:7], 0")
g("s_load_dwordx2 s[12:13], s[6:7], 8")
g("s_load_dwordx2 s[16:17], s[6:7], 16")
g("s_load_dwordx2 s[20:21], s[0:1], 48")
g("s_load_dwordx2 s[40:41], s[0:1], 56")
g("s_load_dwordx2 s[24:25], s[0:1], 64")
g("s_getpc_b64 s[86:87]")
g.raw("L_pc0:")
g("s_bfe_u32 s30, s2, 0x30003")
g("s_lshl_b32 s3, s30, 12")
g("v_lshlrev_b32 v6, 4, v0")
g("v_add_u32 v6, s3, v6")
g("v_min_u32 v6, L_end-L_pc0-16, v6")
tload("global_load_dwordx4 v[60:63], v6, s[86:87]")
g("v_and_b32 v1, 63, v0")
g("v_lshrrev_b32 v2, 6, v0")
g("s_and_b32 s3, s2, 3")
g("v_readfirstlane_b32 s31, v2")
g("s_lshl_b32 s3, s3, 2")
g("s_lshr_b32 s78, s2, 6")
g("s_add_u32 s29, s3, s78")
g("s_add_u32 s3, s30, s78")
g("s_lshl_b32 s3, s3, 2")
g("s_mov_b32 s84, 0x21043210")
g("s_mov_b32 s85, 0x04321043")
g("s_lshr_b64 s[84:85], s[84:85], s3")
g("v_bfe_u32 v4, v0, 4, 2")
g("v_lshrrev_b32 v6, 3, v1")
g("v_mul_u32_u24 v6, 2560, v6")
g("v_and_b32 v7, 7, v1")
g("v_and_b32 v23, 1, v4")
g("v_xor_b32 v7, v7, v23")
g("v_lshl_add_u32 v40, v7, 4, v6")
g("v_add_u32 v41, 256, v40")
g("v_xor_b32 v7, 4, v7")
g("v_lshl_add_u32 v42, v7, 4, v6")
g(f"v_add_u32 v42, {16*1280-2048}, v42")
g("v_add_u32 v43, 256, v42")
g("s_lshl_b32 s3, s29, 7")
g("s_lshl_b32 s4, s31, 5")
g("s_add_u32 s48, s3, s4")
g("s_mul_i32 s32, s48, 1280")
g("s_and_b32 s3, s84, 7")
g("s_lshl_b32 s58, s3, 8")
g("s_add_u32 s58, s58, s32")
g("s_mul_i32 s79, s31, 12288")
g(f"s_add_u32 s79, s79, {XBASE}")
g("s_mov_b32 m0, s79")
g("s_mov_b32 s10, 2621440")
g("s_mov_b32 s11, 0x00020000")
g("s_mov_b32 s14, 2457600")
g("s_mov_b32 s15, 0x00020000")
g("v_mul_u32_u24 v24, 6554, v1")
g("v_lshlrev_b32 v46, 4, v1")
g("v_add_u32 v25, 1280, v46")
g("s_movk_i32 s4, 1120")
g("s_movk_i32 s5, 1280")
def wvoff(i):
    if i:
        g(f"v_add_u32 v6, {64*i*6554}, v24")
    src = "v6" if i else "v24"
    g(f"v_lshrrev_b32 v{52+i}, 16, {src}")
    g(f"v_lshrrev_b32 v7, 17, {src}")
    g(f"v_mad_u32_u24 v{8+i}, v{52+i}, s4, v25")
    g(f"v_mad_u32_u24 v{8+i}, v7, s5, v{8+i}")
    if i == 4:
        g(f"v_add_u32 v{8+i}, 4096, v{8+i}")
for i in range(5):
    wvoff(i)
g("s_mul_i32 s4, s30, 160")
g("s_mul_i32 s5, s31, 61440")
g("s_add_u32 s34, s5, s4")
g("s_mul_i32 s68, s3, 491520")
g("s_add_u32 s68, s68, s34")
g("s_add_u32 s5, s31, 1")
g("s_lshr_b32 s5, s5, 1")
g("s_lshl_b32 s5, s5, 5")
g("s_mul_i32 s45, s31, 5120")
g("s_add_u32 s36, s5, s45")
lstamp()
g.wait_lg(0)
lstamp()

cur_m0 = ["s79+0"]
def setm0(key):
    if cur_m0[0] != key:
        r, off = key.split('+')
        if int(off):
            g(f"s_add_u32 m0, {r}, {off}")
        else:
            g(f"s_mov_b32 m0, {r}")
        cur_m0[0] = key

class Op:
    def __init__(self, tag, m0, fn):
        self.tag, self.m0, self.fn = tag, m0, fn
queue = []
def pop():
    op = queue.pop(0)
    if op.m0:
        setm0(op.m0)
    op.fn()
    for o in queue[:1]:
        if o.m0:
            setm0(o.m0)
def enqueue(ops):
    was = bool(queue)
    queue.extend(ops)
    if not was and queue and queue[0].m0:
        setm0(queue[0].m0)

def dma_ops(st):
    sl = st % 5
    ops = []
    for i in range(5):
        off = 1024 * (i & 3)
        hi = 4096 if i == 4 else 0
        if st < 10:
            txt = f"buffer_load_dwordx4 v{8+i}, s[12:15], s{68+st} offen offset:{off} lds"
            m0 = f"s36+{sl*SLOT+hi}"
        elif st < 15:
            txt = f"buffer_load_dwordx4 v{13+i}, s[12:15], s{68+2*(st-10)} offen offset:{off} lds"
            m0 = f"s36+{sl*SLOT+hi}"
        else:
            uu = st - 15
            txt = f"buffer_load_dwordx4 v{18+i}, s[16:19], s37 offen offset:{off} lds"
            m0 = f"s45+{uu*20480+hi}"
        def fn(txt=txt, i=i, st=st):
            if st >= 15 and i == 0:
                g(f"s_add_u32 s37, s35, {(st-15)*128*1280}")
            g(txt, tag=('w', st))
            nv[0] += 1
        ops.append(Op(('w', st), m0, fn))
    return ops

def xreg(B, s, p):
    b = ((B * 2 + s) * 2 + p) * 4
    return f"a[{b}:{b+3}]"
def xregs(B):
    return {('a', i) for i in range(B * 16, B * 16 + 16)}
def x_ops(B):
    ops = []
    for i in range(4):
        def fn(i=i):
            if i == 0 and B >= 3:
                g._auto_wait(xregs(B - 3))
            g(f"buffer_load_dwordx4 v{40+i}, s[8:11], s{58+B} offen offset:{1024*i} lds", tag=('x', B))
            nv[0] += 1
        ops.append(Op(('x', B), f"s79+{(B%3)*4096}", fn))
    return ops
def x_read(B):
    for s in range(2):
        for p in range(2):
            g(f"ds_read_b128 {xreg(B,s,p)}, v{44+s} offset:{(B%3)*4096+1024*p}")

enqueue(x_ops(0) + dma_ops(0))
while queue:
    pop()
lstamp()
for base, n in ((16, 819200), (20, 5242880), (24, 1 << 24), (40, 256)):
    g(f"s_mov_b32 s{base+2}, {n}")
    g(f"s_mov_b32 s{base+3}, 0x00020000")
g("s_or_b32 s3, s2, s31")
g("s_cmp_lg_u32 s3, 0")
br("s_cbranch_scc1 L_notag")
with g.extra():
    g("s_memrealtime s[4:5]")
    g.wait_lg(0)
    g("s_lshl_b32 s4, s4, 6")
    g("s_or_b32 s4, s4, 1")
    g("v_mov_b32 v6, s4")
    g("v_mov_b32 v7, 0")
    g("s_mov_b64 exec, 1")
    g("buffer_store_dword v6, v7, s[40:43], 0 offen sc1")
    g("s_mov_b64 exec, -1")
g.label("L_notag")
g("s_add_u32 s59, s58, 128")
g(f"s_add_u32 s69, s68, {64*3840}")
for u in range(1, 5):
    g(f"s_bfe_u32 s3, s84, 0x{(3<<16)|(4*u):x}")
    g(f"s_lshl_b32 s{58+2*u}, s3, 8")
    g(f"s_add_u32 s{58+2*u}, s{58+2*u}, s32")
    g(f"s_add_u32 s{59+2*u}, s{58+2*u}, 128")
    g(f"s_mul_i32 s{68+2*u}, s3, 491520")
    g(f"s_add_u32 s{68+2*u}, s{68+2*u}, s34")
    g(f"s_add_u32 s{69+2*u}, s{68+2*u}, {64*3840}")
g("v_and_b32 v3, 15, v0")
g("v_bfe_u32 v49, v0, 2, 2")
g("v_and_b32 v50, 3, v0")
g("v_mul_u32_u24 v6, 320, v49")
g("v_mul_u32_u24 v7, 5120, v4")
g("v_add_u32 v6, v6, v7")
g("v_add_u32 v7, 1, v4")
g("v_lshrrev_b32 v7, 1, v7")
g("v_lshl_add_u32 v6, v7, 5, v6")
g("v_mul_u32_u24 v7, 40, v50")
g("v_add_u32 v26, v6, v7")
g(f"v_add_u32 v27, {3*SLOT}, v26")
g("s_cmp_eq_u32 s28, 0")
g("s_cselect_b32 s3, 40, 8")
g("s_cselect_b32 s4, 8, 40")
g("v_mad_u32_u24 v184, v50, s3, v6")
for t in range(1, 4):
    g(f"v_add_u32 v{184+2*t}, s4, v{182+2*t}")
g("v_add_u32 v192, 32, v26")
for t in range(5):
    g(f"v_add_u32 v{185+2*t}, {3*SLOT}, v{184+2*t}")
g("v_lshrrev_b32 v6, 3, v3")
g("v_lshlrev_b32 v6, 4, v6")
g("v_and_b32 v7, 7, v3")
g("v_add_u32 v6, v6, v7")
g("v_lshlrev_b32 v6, 7, v6")
g("v_lshrrev_b32 v7, 1, v3")
g("v_and_b32 v7, 5, v7")
g("v_lshlrev_b32 v23, 1, v4")
g("v_xor_b32 v7, v7, v23")
g("v_lshl_add_u32 v6, v7, 4, v6")
g("v_add_u32 v44, s79, v6")
g("v_xor_b32 v45, 16, v44")
g("s_lshl_b32 s54, s30, 13")
g("s_lshl_b32 s3, s31, 11")
g("s_add_u32 s54, s54, s3")
g(f"s_add_u32 s54, s54, {WS_K}")
g("s_lshl_b32 s55, s30, 7")
g("s_lshl_b32 s3, s31, 2")
g("s_add_u32 s55, s55, s3")
g(f"s_add_u32 s55, s55, {WS_F+0xA000}")
g("s_xor_b32 s3, s28, 1")
g("s_or_b32 s56, s3, s29")
g("v_lshlrev_b32 v51, 2, v1")
g("s_cmp_lg_u32 s56, 0")
br("s_cbranch_scc1 L_nozero")
with g.extra():
    for r in range(4):
        g(f"v_mov_b32 v{64+r}, 0")
    for k in range(2):
        g(f"buffer_store_dwordx4 v[64:67], v46, s[24:27], s54 offen offset:{k*1024} sc1")
g.label("L_nozero")
g("s_movk_i32 s4, 1120")
g(f"s_mov_b32 s5, {64*3840-160}")
g(f"s_mov_b32 s6, {128*3840-3840}")
for i in range(5):
    g(f"v_mad_u32_u24 v{18+i}, v{52+i}, s4, v46")
    g(f"v_mad_u32_u24 v{13+i}, v{52+i}, s5, v46")
    g(f"v_lshrrev_b32 v7, 1, v{52+i}")
    g(f"v_mul_u32_u24 v7, s6, v7")
    g(f"v_sub_u32 v{13+i}, v{13+i}, v7")
g("v_add_u32 v17, 4096, v17")
g("v_add_u32 v22, 4096, v22")
g("s_mul_i32 s5, s31, 40960")
g("s_mul_i32 s4, s30, 160")
g("s_add_u32 s35, s5, s4")
g("s_lshr_b32 s3, s2, 3")
g("s_lshl_b32 s3, s3, 2")
g("s_add_u32 s3, s3, s31")
g("v_mul_u32_u24 v7, 10, v52")
g("v_sub_u32 v7, v1, v7")
g("v_lshlrev_b32 v7, 7, v7")
g("v_lshl_add_u32 v6, v52, 7, s3")
g("v_mul_u32_u24 v35, 1280, v6")
g("v_add_u32 v35, v35, v7")
g("s_add_u32 s3, s30, 4")
g("s_lshl_b32 s3, s3, 2")
g("s_mov_b32 s6, 0x21043210")
g("s_mov_b32 s7, 0x04321043")
g("s_lshr_b64 s[6:7], s[6:7], s3")
g("s_and_b32 s3, s6, 7")
g("s_lshl_b32 s3, s3, 2")
g("s_add_u32 s3, s3, s78")
g("s_lshl_b32 s3, s3, 2")
g("s_add_u32 s3, s3, s31")
g(f"s_mul_i32 s3, s3, {8*3840}")
g("s_add_u32 s3, s3, s4")
g("s_add_u32 s3, s3, 1280")
g("v_lshrrev_b32 v6, 2, v1")
g("v_mul_u32_u24 v6, 3840, v6")
g("v_bfe_u32 v7, v1, 1, 1")
g("v_mul_u32_u24 v7, 1280, v7")
g("v_and_b32 v23, 1, v1")
g("v_mul_u32_u24 v23, 156, v23")
g("v_add3_u32 v6, v6, v7, v23")
g("v_add_u32 v58, s3, v6")
def ptouch():
    if opt['pa']:
        g("v_mov_b32 v34, 0")
        setexec(0, 40)
        tload("buffer_atomic_or v34, v59, s[24:27], 0 offen")
        setexec(40, 41)
    else:
        setexec(0, 41)
    tload("buffer_load_dword v32, v59, s[24:27], 0 offen sc1")
    g("s_mov_b64 exec, -1")
def touch(va, base, n):
    setexec(0, n)
    tload(f"global_load_dword v32, {va}, {base}")
    g("s_mov_b64 exec, -1")
g("v_mul_u32_u24 v6, 160, v49")
g("v_mul_u32_u24 v7, 40, v50")
g("v_add_u32 v6, v6, v7")
g("v_mul_u32_u24 v7, 3200, v4")
g("v_add_u32 v28, v6, v7")
g("v_add_u32 v29, 51200, v28")
g("v_lshrrev_b32 v7, 1, v4")
g("v_mul_u32_u24 v7, 12800, v7")
g("v_add_u32 v6, v6, v7")
g("v_and_b32 v7, 1, v4")
g("v_mul_u32_u24 v7, 3200, v7")
g("v_add_u32 v30, v6, v7")
g("v_add_u32 v31, 51200, v30")
g("s_and_b32 s3, s30, 1")
g("s_lshl_b32 s3, s3, 9")
g("v_and_b32 v6, 1, v4")
g("v_lshlrev_b32 v6, 8, v6")
g("v_lshl_add_u32 v6, v3, 4, v6")
g("v_lshrrev_b32 v7, 1, v4")
g("v_lshl_add_u32 v6, v7, 3, v6")
g("v_add_u32 v47, s3, v6")
g("v_mul_u32_u24 v6, 5120, v3")
g("v_mul_u32_u24 v7, 40, v4")
g("v_add_u32 v48, v6, v7")
g("s_lshl_b32 s3, s31, 5")
g(f"s_add_u32 s3, s3, {KVB}")
g(f"v_mul_u32_u24 v6, {HS}, v49")
g("v_mul_u32_u24 v7, 288, v50")
g("v_add_u32 v6, v6, v7")
g("v_lshl_add_u32 v6, v4, 3, v6")
g("v_add_u32 v37, s3, v6")
g("v_add_u32 v37, 16, v37")
g(f"v_mul_u32_u24 v23, {HS}, v4")
g("v_mul_u32_u24 v6, 288, v49")
g("v_add_u32 v6, v6, v23")
g("v_lshl_add_u32 v6, v50, 3, v6")
g("v_add_u32 v38, s3, v6")
g("v_add_u32 v6, v7, v23")
g("v_lshl_add_u32 v6, v49, 3, v6")
g("v_add_u32 v39, s3, v6")
g(f"v_add_u32 v39, {SECS}, v39")
g("s_lshl_b32 s3, s28, 4")
g("s_add_u32 s3, s3, s29")
g("s_lshl_b32 s3, s3, 2")
g("s_add_u32 s3, s3, s31")
g("s_mul_i32 s44, s3, 40960")
g("s_lshl_b32 s49, s3, 7")
g(f"s_add_u32 s49, s49, {WS_F}")
g("s_lshr_b32 s33, s3, 2")
g("s_lshl_b32 s33, s33, 7")
g(f"s_add_u32 s33, s33, {WS_F+0xC000}")
g("s_getreg_b32 s38, hwreg(HW_REG_XCC_ID, 0, 4)")
g("s_lshl_b32 s38, s38, 1")
g("s_lshr_b32 s3, s30, 1")
g("s_mul_i32 s3, s3, 10240")
g("s_add_u32 s3, s3, s44")
g("s_and_b32 s5, s30, 1")
g("s_lshl_b32 s4, s5, 12")
g("s_add_u32 s4, s4, s3")
g("s_lshl_b32 s5, s5, 9")
g("s_add_u32 s5, s5, s3")
g("s_add_u32 s5, s5, 8192")
g("v_lshl_add_u32 v59, v1, 7, s4")
g("v_and_b32 v6, 4, v1")
g("v_lshlrev_b32 v6, 8, v6")
g("v_lshl_add_u32 v6, v50, 7, v6")
g("v_add_u32 v6, s5, v6")
g("v_cmp_gt_u32 vcc, 32, v1")
g("v_cndmask_b32 v59, v6, v59, vcc")
g("v_mov_b32 v6, s49")
g("v_cmp_gt_u32 vcc, 40, v1")
g("v_cndmask_b32 v59, v6, v59, vcc")
g("s_lshl_b32 s3, s29, 3")
g("s_add_u32 s3, s3, s30")
g("s_lshl_b32 s4, s3, 7")
g(f"s_add_u32 s4, s4, {WS_F+0x4000}")
g("s_mul_i32 s50, s3, 5120")
g(f"s_add_u32 s50, s50, {WS_H}")
g("s_lshl_b32 s5, s30, 8")
g("s_lshl_b32 s6, s31, 6")
g("s_add_u32 s5, s5, s6")
g(f"s_add_u32 s5, s5, {WS_F+0x8000}")
g("s_lshl_b32 s6, s29, 2")
g("s_add_u32 s6, s6, s5")
g("s_sub_u32 s3, s4, 1024")
g("s_cmp_eq_u32 s28, 0")
g("s_cselect_b32 s47, s4, s6")
g("s_cselect_b32 s57, s3, s5")
g("v_lshlrev_b32 v25, 2, v3")
g("v_mul_u32_u24 v25, s28, v25")
g("s_cmp_eq_u32 s31, 3")
g("s_cselect_b32 s51, 1, 0")
g("s_or_b32 s51, s51, s28")
g("s_cmp_eq_u32 s31, 0")
g("s_cselect_b32 s81, 1, 0")
g("s_cmp_lg_u32 s29, 0")
g("s_cselect_b32 s81, s81, 0")
g("s_or_b32 s81, s81, s28")
g(f"s_mov_b32 s52, 0x{LOG2E:08x}")
g(f"s_mov_b32 s53, 0x{EPS:08x}")
g("s_mov_b32 s82, s52")
g("s_mov_b32 s83, s52")
g("s_mov_b32 s86, s53")
g("s_mov_b32 s87, s53")
lstamp()
enqueue(x_ops(1) + dma_ops(1))
while queue:
    pop()
if opt['t5']:
    touch("v58", "s[12:13]", 32)
if opt['pts'] == 98:
    ptouch()
enqueue(x_ops(2) + dma_ops(2) + dma_ops(3) + dma_ops(4))

frags = []
for st in range(15):
    for f in range(20):
        if st < 10:
            s, sec, t = f // 10, (f // 5) % 2, f % 5
            B = st
        else:
            sec, s, t = f // 10, (f // 5) % 2, f % 5
            B = 2 * (st - 10) + sec
        frags.append((st, f, s, sec, t, B))

NB = opt['nbuf']
def wreg(i):
    return 160 + 4 * (i % NB)

def issue_read(i, half=None):
    st, f, s, sec, t, B = frags[i]
    sl = st % 5
    imm = (sl % 3) * SLOT + s * 2560 + sec * 160
    if st < 10:
        va = f"v{184 + 2*t + (sl >= 3)}"
    else:
        va = "v26" if sl < 3 else "v27"
        imm += 8 * t
    b = wreg(i)
    if half in (None, 0):
        g(f"ds_read_b64_tr_b16 a[{b}:{b+1}], {va} offset:{imm}")
    if half in (None, 1):
        g(f"ds_read_b64_tr_b16 a[{b+2}:{b+3}], {va} offset:{imm+1280}")

D = opt['dist']
first = {}
def need(tag):
    while any(o.tag == tag for o in queue):
        pop()
    g.wait_tag(tag)

mark = [0]
lab = [0]
def spin_wait(load, test, what):
    n = lab[0]; lab[0] += 1
    g(f"s_mov_b32 s46, {SPIN}")
    g.label(f"L_spin{n}")
    with g.extra():
        load()
        g.force_wait(vm=0)
        test()
        br(f"s_cbranch_scc1 L_spun{n}")
        g("s_sleep 1")
        g("s_sub_u32 s46, s46, 1")
        g("s_cmp_lg_u32 s46, 0")
        br(f"s_cbranch_scc1 L_spin{n}")
    g.label(f"L_spun{n}")

def mid_test():
    g("v_cmp_eq_u32 vcc, s39, v36")
    g("s_cmp_eq_u64 vcc, -1")
def mid_loads(lbl):
    g("s_cmp_eq_u32 s28, 1")
    br(f"s_cbranch_scc1 L_mlb{lbl}")
    g("s_sub_u32 s3, s50, 40960")
    g("s_add_u32 s4, s3, 2560")
    g("v_subrev_u32 v6, 512, v46")
    g("s_mov_b32 exec_lo, 0")
    g.flush_hazards()
    for idx in range(10):
        d = 64 + idx * 4
        g.raw(f"  buffer_load_dwordx4 v[{d}:{d+3}], v6, s[24:27], {'s3' if idx < 5 else 's4'} offen offset:{(idx%5)*512} sc1")
    g("s_mov_b32 exec_lo, -1")
    br(f"s_branch L_mld{lbl}")
    g.label(f"L_mlb{lbl}")
    for k in range(8):
        g.raw(f"  buffer_load_dword v{64+k}, v51, s[24:27], s54 offen offset:{k*256} sc1")
    g.label(f"L_mld{lbl}")
    g("s_mov_b32 s81, 0")

def publish_mid():
    g.force_wait(vm=min(63, min(len(g.vm), nv[0] - mark[0])))
    g("s_cmp_eq_u32 s51, 0")
    br("s_cbranch_scc1 L_nof1")
    with g.extra():
        g("v_mov_b32 v6, s39")
        g("v_mov_b32 v7, 0")
        g("s_mov_b64 exec, 1")
        g("buffer_store_dword v6, v7, s[24:27], s47 offen sc1")
        g("s_mov_b64 exec, -1")
    g.label("L_nof1")

def run_phase(lo, hi, sid):
    st0 = frags[lo][0]
    if sid == 0:
        lflush()
        stamp()
    need(('w', st0))
    if sid == 0:
        need(('x', 0))
        x_read(0)
        enqueue(x_ops(3))
    g("s_barrier")
    stamp()
    for i in range(lo, lo + D):
        issue_read(i)
    for i in range(lo, hi):
        st, f, s, sec, t, B = frags[i]
        last = (i + 20 - f) >= hi
        if f == opt['barf']:
            if not last:
                need(('w', st + 1))
                if sid == 0:
                    need(('x', st + 1))
            if st == 4:
                g("v_readfirstlane_b32 s39, v36")
                g("s_cmp_lg_u32 s39, 0")
                br("s_cbranch_scc1 L_havetag")
                def _ld():
                    g("v_mov_b32 v7, 0")
                    g("buffer_load_dword v36, v7, s[40:43], 0 offen sc1")
                def _tst():
                    g("v_readfirstlane_b32 s39, v36")
                    g("s_cmp_lg_u32 s39, 0")
                spin_wait(_ld, _tst, "tag")
                g.label("L_havetag")
                g("s_cmp_lg_u32 s56, 0")
                br("s_cbranch_scc1 L_nozf")
                with g.extra():
                    g("v_mov_b32 v6, s39")
                    g("v_mov_b32 v7, 0")
                    g("s_mov_b64 exec, 1")
                    g("buffer_store_dword v6, v7, s[24:27], s55 offen sc1")
                    g("s_mov_b64 exec, -1")
                g.label("L_nozf")
                g("s_or_b32 s38, s38, s39")
                g("s_cmp_lg_u32 s31, 0")
                br("s_cbranch_scc1 L_noxg")
                with g.extra():
                    g("s_lshl_b32 s3, s30, 2")
                    g("v_mov_b32 v6, s38")
                    g("v_mov_b32 v7, s3")
                    g("s_mov_b64 exec, 1")
                    g("buffer_store_dword v6, v7, s[24:27], s33 offen sc1")
                    g("s_mov_b64 exec, -1")
                g.label("L_noxg")
            if st == opt['fst'] and opt['ff'] == opt['barf']:
                publish_mid()
            g("s_barrier")
            if opt['prof'] > 1:
                stamp()
            if sid == 0 and not last:
                x_read(st + 1)
            if st == 1:
                g("v_mov_b32 v7, 0")
                g("buffer_load_dword v36, v7, s[40:43], 0 offen sc1")
                nv[0] += 1
            if st == 8:
                g("v_mov_b32 v7, 0")
                g("buffer_load_dword v36, v7, s[24:27], s55 offen sc1")
                nv[0] += 1
            for s2 in range(5, 19):
                at = s2 - 4
                if 10 <= s2 <= 13:
                    at = max(at, opt['qd'])
                if at == st:
                    enqueue(dma_ops(s2))
            if sid == 0 and st + 4 < 10:
                enqueue(x_ops(st + 4))
        if st == opt['pts'] and f == opt['ptf']:
            enqueue([Op(None, None, ptouch)])
        if st == opt['xst'] and f == 2:
            g("v_min_u32 v7, 28, v51")
            g("buffer_load_dword v33, v7, s[24:27], s33 offen sc1")
            nv[0] += 1
        if st == opt['fst'] and f == opt['ff'] and f != opt['barf']:
            publish_mid()
        if opt['early']:
            if st == opt['pst'] and f == opt['pf']:
                g("buffer_load_dword v36, v25, s[24:27], s57 offen sc1")
                nv[0] += 1
            if st == 14 and f == opt['cf2']:
                mid_test()
                g("s_cselect_b32 s3, s81, 0")
                g("s_cmp_eq_u32 s3, 0")
                br("s_cbranch_scc1 L_noearly")
                mid_loads(0)
                g.label("L_noearly")
        elif st == 14 and f == opt['cf']:
            g("buffer_load_dword v36, v25, s[24:27], s57 offen sc1")
            nv[0] += 1
        b = wreg(i)
        for p in range(2):
            if st < 10:
                acc = 64 + ((sec * 5 + t) * 2 + p) * 4
            else:
                acc = 144 + (t * 2 + p) * 4
            key = (sid, acc)
            c = f"v[{acc}:{acc+3}]" if key in first else "0"
            first[key] = 1
            if st < 10:
                g(f"v_mfma_f32_16x16x32_bf16 v[{acc}:{acc+3}], {xreg(B,s,p)}, a[{b}:{b+3}], {c}")
            else:
                g(f"v_mfma_f32_16x16x32_bf16 v[{acc}:{acc+3}], a[{b}:{b+3}], {xreg(B,s,p)}, {c}")
            if i + D < hi:
                if opt['order']:
                    issue_read(i + D, p)
                elif p == 0:
                    issue_read(i + D)
            if p == 1 and queue and (i % opt['dmagap'] == 0 or len(queue) > 9):
                pop()
    while queue:
        pop()

def phi(regs, tmp):
    n = len(regs)
    for k in range(0, n, 2):
        r, t = regs[k], tmp[k]
        g(f"v_pk_mul_f32 v[{t}:{t+1}], v[{r}:{r+1}], s[82:83]")
        g(f"v_pk_add_f32 v[{r}:{r+1}], v[{r}:{r+1}], 1.0 op_sel_hi:[1,0]")
    for r, t in zip(regs, tmp):
        g(f"v_exp_f32_e64 v{t}, v{t} clamp")
    for r, t in zip(regs, tmp):
        g(f"v_max_f32 v{r}, v{r}, v{t}")
    for k in range(0, n, 2):
        r = regs[k]
        g(f"v_pk_add_f32 v[{r}:{r+1}], v[{r}:{r+1}], s[86:87]")

run_phase(0, 200, 0)
stamp()
if opt['dg']:
    g.force_wait(vm=0)
    bstamp(9)
    if opt['dg'] == 1:
        ptouch()
    elif opt['dg'] == 2:
        touch("v35", "s[16:17]", 50)
    elif opt['dg'] == 3:
        setexec(0, 1)
        tload("buffer_load_dword v32, v59, s[24:27], 0 offen sc1")
        g("s_mov_b64 exec, -1")
    elif opt['dg'] == 4:
        setexec(0, 8)
        tload("buffer_load_dword v32, v59, s[24:27], 0 offen sc1")
        g("s_mov_b64 exec, -1")
    elif opt['dg'] == 5:
        setexec(0, 1)
        tload("buffer_load_dword v32, v59, s[24:27], 0 offen sc1")
        g("s_mov_b64 exec, -1")
        g.force_wait(vm=0)
        bstamp(9)
        ptouch()
    g.force_wait(vm=0)
    bstamp(10)
if opt['pts'] == 99:
    ptouch()
if opt['two']:
    touch("v35", "s[16:17]", 50)
if opt['pts'] == 100:
    ptouch()
if opt['po']:
    g("s_mul_i32 s3, s48, 2560")
    g("s_mul_i32 s4, s28, 1280")
    g("s_add_u32 s3, s3, s4")
    g("s_mul_i32 s4, s30, 160")
    g("s_add_u32 s3, s3, s4")
    g("v_lshrrev_b32 v6, 1, v1")
    g("v_mul_u32_u24 v6, 2560, v6")
    g("v_and_b32 v7, 1, v1")
    g("v_mul_u32_u24 v7, 156, v7")
    g("v_add_u32 v6, v6, v7")
    if opt['po'] == 2:
        setexec(0, 1)
    tload("buffer_load_dword v32, v6, s[20:23], s3 offen")
    g("s_mov_b64 exec, -1")
g("s_cmp_eq_u32 s28, 1")
br("s_cbranch_scc1 L_m1b")
with g.extra():
    for sec in range(2):
        for t in range(5):
            idx = sec * 5 + t
            for p in range(2):
                a = 64 + (idx * 2 + p) * 4
                d = 184 + idx * 4 + 2 * p
                g(f"v_cvt_pk_bf16_f32 v{d}, v{a}, v{a+1}")
                g(f"v_cvt_pk_bf16_f32 v{d+1}, v{a+2}, v{a+3}")
            for p in range(2):
                d = 184 + idx * 4 + 2 * p
                g(f"ds_write_b64 v37, v[{d}:{d+1}] offset:{sec*SECS+t*1152+p*144}")
    bstamp(6)
    g("s_cmp_lg_u32 s31, 3")
    br("s_cbranch_scc1 L_nohalo")
    g("s_add_u32 s3, s50, 2560")
    g("v_subrev_u32 v6, 512, v46")
    g("s_mov_b32 exec_lo, 0")
    for idx in range(10):
        d = 184 + idx * 4
        g(f"buffer_store_dwordx4 v[{d}:{d+3}], v6, s[24:27], {'s50' if idx < 5 else 's3'} offen offset:{(idx%5)*512} sc1")
    g("s_mov_b32 exec_lo, -1")
    g.label("L_nohalo")
    g.force_wait(lg=0)
    br("s_branch L_m1done")
g.label("L_m1b")
with g.extra():
    g(f"s_mul_i32 s3, s31, {RS}")
    g(f"s_add_u32 s3, s3, {XBASE}")
    g("v_add_u32 v6, s3, v46")
    for idx in list(range(5, 10)) + list(range(5)):
        if idx == 0:
            for r in range(4):
                g(f"v_mov_b32 v{224+r}, 0x3f803f80")
            g("v_mov_b32 v7, s3")
            g("ds_write_b128 v7, v[224:227] offset:10240")
            phi(list(range(64, 104)), list(range(208, 248)))
        d = 184 + (idx % 5) * 4 + (0 if idx >= 5 else 0)
        d = 184 + (idx % 6) * 4
        for p in range(2):
            a = 64 + (idx * 2 + p) * 4
            g(f"v_cvt_pk_bf16_f32 v{d+2*p}, v{a}, v{a+1}")
            g(f"v_cvt_pk_bf16_f32 v{d+2*p+1}, v{a+2}, v{a+3}")
        g(f"ds_write_b128 v6, v[{d}:{d+3}] offset:{idx*1024}")
    bstamp(6)
    g("s_lshl_b32 s3, s31, 10")
    g(f"s_add_u32 s3, s3, {XBASE}")
    g("v_add_u32 v6, s3, v46")
    g("s_lshl_b32 s3, s31, 6")
    g(f"s_add_u32 s3, s3, {XBASE+4096}")
    g("v_lshlrev_b32 v7, 8, v4")
    g("v_lshl_add_u32 v7, v50, 4, v7")
    g("v_add_u32 v7, s3, v7")
    g("v_add_u32 v23, 5120, v7")
    g(f"v_mov_b32 v24, {XBASE+10240}")
    g("v_and_b32 v34, 4, v1")
    g("v_cmp_eq_u32 vcc, 0, v34")
    g("v_cndmask_b32 v23, v24, v23, vcc")
    g.force_wait(lg=0)
    g("s_barrier")
    bstamp(7)
    for w2 in range(4):
        b = 64 + w2 * 16
        g(f"ds_read_b128 v[{b}:{b+3}], v6 offset:{w2*RS}")
        g(f"ds_read_b128 v[{b+4}:{b+7}], v6 offset:{w2*RS+5120}")
        g(f"ds_read_b128 v[{b+8}:{b+11}], v23 offset:{w2*RS}")
        g(f"ds_read_b128 v[{b+12}:{b+15}], v7 offset:{w2*RS}")
    for w2 in range(4):
        b = 64 + w2 * 16
        pk, vh, b2, a2 = (f"v[{b+4*k}:{b+4*k+3}]" for k in range(4))
        for k, (A, Bo) in enumerate(((pk, vh), (pk, b2), (a2, vh), (a2, b2))):
            d = 184 + 4 * k
            c = f"v[{d}:{d+3}]" if w2 else "0"
            g(f"v_mfma_f32_16x16x32_bf16 v[{d}:{d+3}], {A}, {Bo}, {c}")
    g("v_readfirstlane_b32 s3, v36")
    g("s_cmp_eq_u32 s3, s39")
    br("s_cbranch_scc1 L_zok")
    def _ld():
        g("v_mov_b32 v7, 0")
        g("buffer_load_dword v36, v7, s[24:27], s55 offen sc1")
    def _tst():
        g("v_readfirstlane_b32 s3, v36")
        g("s_cmp_eq_u32 s3, s39")
    spin_wait(_ld, _tst, "zero")
    g.label("L_zok")
    bstamp(8)
    g("s_mov_b32 s4, 0x00ffff00")
    g("s_mov_b32 s5, 0")
    g("s_mov_b32 s6, 0")
    g("s_mov_b32 s7, 0xff00ff00")
    for r in range(4):
        g(f"buffer_atomic_add_f32 v{184+r}, v51, s[24:27], s54 offen offset:{r*256} sc1")
    for r in range(4):
        g(f"v_cndmask_b32 v{188+r}, v{188+r}, v{192+r}, s[4:5]")
        g(f"v_cndmask_b32 v{188+r}, v{188+r}, v{196+r}, s[6:7]")
    for r in range(4):
        g(f"buffer_atomic_add_f32 v{188+r}, v51, s[24:27], s54 offen offset:{1024+r*256} sc1")
g.label("L_m1done")
mark[0] = nv[0]
stamp()
run_phase(200, 300, 1)
g("s_barrier")
enqueue(dma_ops(19))
while queue:
    pop()
stamp()
g("v_cmp_eq_u32 vcc, s38, v33")
g("s_cmp_eq_u64 vcc, -1")
g("s_cselect_b32 s80, 1, 0")
g("s_cmp_eq_u32 s81, 0")
br("s_cbranch_scc1 L_midok")
if not opt['early']:
    mid_test()
    br("s_cbranch_scc1 L_midgo")
def _ld():
    g("buffer_load_dword v36, v25, s[24:27], s57 offen sc1")
spin_wait(_ld, mid_test, "mid")
g.label("L_midgo")
mid_loads(1)
g.label("L_midok")
bstamp(0)
g("s_cmp_eq_u32 s28, 1")
br("s_cbranch_scc1 L_m2b")
with g.extra():
    g("s_or_b32 s3, s29, s31")
    g("s_cmp_lg_u32 s3, 0")
    br("s_cbranch_scc1 L_halo1")
    for r in range(40):
        g(f"v_mov_b32 v{64+r}, 0")
    g.label("L_halo1")
    for t in range(5):
        for p in range(2):
            a = 144 + (t * 2 + p) * 4
            d = 184 + (p * 5 + t) * 2
            g(f"v_cvt_pk_bf16_f32 v{d}, v{a}, v{a+1}")
            g(f"v_cvt_pk_bf16_f32 v{d+1}, v{a+2}, v{a+3}")
    g("s_cmp_eq_u32 s3, 0")
    g("s_cselect_b32 s4, 0, 64")
    g(f"v_mov_b32 v6, 0x{NEG:08x}")
    g("v_lshlrev_b32 v7, 2, v49")
    g("v_add_u32 v7, s4, v7")
    for c in range(3):
        for r in range(4):
            d = 52 + c * 4 + r
            if c == 0:
                g(f"v_cmp_le_u32 vcc, {r}, v50")
                g(f"v_cndmask_b32 v{d}, v6, 0, vcc")
            elif c == 1:
                g(f"v_cmp_le_u32 vcc, {4-r}, v7")
                g(f"v_cndmask_b32 v{d}, v6, 0, vcc")
            else:
                g(f"v_cmp_le_u32 vcc, {8-r}, v7")
                g(f"v_cndmask_b32 v{d}, v6, 0, vcc")
                g(f"v_cmp_gt_u32 vcc, {r}, v50")
                g(f"v_cndmask_b32 v{d}, v6, v{d}, vcc")
    g("v_mov_b32 v240, 0x3f803f80")
    g("v_mov_b32 v241, 0x3f803f80")
    g(f"s_mov_b32 s4, 0x{SCL:08x}")
    g("s_cmp_lg_u32 s31, 0")
    br("s_cbranch_scc1 L_halodone")
    g("v_subrev_u32 v23, 32, v37")
    g.force_wait(vm=0)
    g("s_mov_b32 exec_lo, 0")
    for sec in range(2):
        for t in range(5):
            idx = sec * 5 + t
            for p in range(2):
                d = 64 + idx * 4 + 2 * p
                g(f"ds_write_b64 v23, v[{d}:{d+1}] offset:{sec*SECS+t*1152+p*144}")
    g("s_mov_b32 exec_lo, -1")
    g.force_wait(lg=0)
    g.label("L_halodone")
    bstamp(1)
    def kreg(p, c, t):
        b = ((p * 3 + c) * 5 + t) * 2
        return f"a[{b}:{b+1}]"
    def vreg(p, c, t):
        b = 60 + ((p * 3 + c) * 5 + t) * 2
        return f"a[{b}:{b+1}]"
    for t in range(5):
        for p in range(2):
            for c in range(3):
                g(f"ds_read_b64_tr_b16 {kreg(p,c,t)}, v38 offset:{t*1152+p*144+16-8*c}")
    for t in range(5):
        for p in range(2):
            for c in range(3):
                g(f"ds_read_b64 {vreg(p,c,t)}, v39 offset:{t*1152+p*144+16-8*c}")
    for t in range(5):
        for p in range(2):
            for c in range(3):
                s = 204 + (p * 3 + c) * 4
                q = 184 + (p * 5 + t) * 2
                cc = f"v[{52+4*c}:{55+4*c}]" if t == 0 else f"v[{s}:{s+3}]"
                g(f"v_mfma_f32_4x4x4_16b_bf16 v[{s}:{s+3}], {kreg(p,c,t)}, v[{q}:{q+1}], {cc}")
    bstamp(2)
    for p in range(2):
        s = 204 + p * 12
        m = 242 + p * 4
        for k in range(4):
            g(f"v_max3_f32 v{m+k}, v{s+3*k}, v{s+3*k+1}, v{s+3*k+2}")
        g(f"v_max3_f32 v{m}, v{m}, v{m+1}, v{m+2}")
        g(f"v_max_f32 v{m}, v{m}, v{m+3}")
        g(f"v_mul_f32 v{m}, s4, v{m}")
    for p in range(2):
        s = 204 + p * 12
        m = 242 + p * 4
        for k in range(12):
            g(f"v_fma_f32 v{s+k}, v{s+k}, s4, -v{m}")
        for k in range(12):
            g(f"v_exp_f32 v{s+k}, v{s+k}")
    for p in range(2):
        s = 204 + p * 12
        for k in range(6):
            g(f"v_cvt_pk_bf16_f32 v{228+p*6+k}, v{s+2*k}, v{s+2*k+1}")
    bstamp(3)
    for c in range(3):
        for p in range(2):
            pr = 228 + (p * 3 + c) * 2
            for t in range(6):
                o = 64 + (p * 6 + t) * 4
                a = vreg(p, c, t) if t < 5 else "v[240:241]"
                cc = "0" if c == 0 else f"v[{o}:{o+3}]"
                g(f"v_mfma_f32_4x4x4_16b_bf16 v[{o}:{o+3}], {a}, v[{pr}:{pr+1}], {cc}")
    br("s_branch L_m2done")
g.label("L_m2b")
with g.extra():
    phi(list(range(144, 184)), list(range(184, 224)))
    for t in range(5):
        for p in range(2):
            a = 144 + (t * 2 + p) * 4
            g(f"v_cvt_pk_bf16_f32 v{a}, v{a}, v{a+1}")
            g(f"v_cvt_pk_bf16_f32 v{a+1}, v{a+2}, v{a+3}")
    g("s_lshl_b32 s3, s31, 5")
    g(f"s_add_u32 s3, s3, {KVF}")
    g("v_lshl_add_u32 v6, v50, 3, s3")
    g("v_mul_u32_u24 v7, 768, v4")
    g("v_lshl_add_u32 v23, v49, 7, v6")
    g("v_add_u32 v23, v23, v7")
    g("s_mov_b32 s4, 0x00ffff00")
    g("s_mov_b32 s5, 0xff00ff00")
    g("v_mov_b32 v24, 3072")
    g("v_cndmask_b32 v7, v7, v24, s[4:5]")
    g("v_and_b32 v24, 1, v49")
    g("v_add_u32 v24, 4, v24")
    g("s_mov_b32 s5, 0")
    g("v_cndmask_b32 v24, v24, v49, s[4:5]")
    g("v_lshl_add_u32 v24, v24, 7, v6")
    g("v_add_u32 v24, v24, v7")
    g("v_lshl_add_u32 v7, v4, 2, v50")
    g("v_lshlrev_b32 v7, 3, v7")
    g(f"v_add_u32 v7, {KVF}, v7")
    bstamp(1)
    g.force_wait(vm=0)
    bstamp(2)
    for k in range(4):
        g(f"v_cvt_pk_bf16_f32 v{72+k}, v{64+2*k}, v{65+2*k}")
    g("ds_write_b64 v23, v[72:73]")
    g("ds_write_b64 v24, v[74:75]")
    g.force_wait(lg=0)
    g("s_barrier")
    bstamp(3)
    for T in range(30):
        g(f"ds_read_b64 a[{2*T}:{2*T+1}], v7 offset:{T*128}")
    for t in range(5):
        for t2 in range(6):
            T = t * 6 + t2
            for p in range(2):
                o = 64 + (p * 6 + t2) * 4
                q = 144 + (t * 2 + p) * 4
                cc = "0" if t == 0 else f"v[{o}:{o+3}]"
                g(f"v_mfma_f32_4x4x4_16b_bf16 v[{o}:{o+3}], a[{2*T}:{2*T+1}], v[{q}:{q+1}], {cc}")
    for p in range(2):
        o = 64 + (p * 6 + 5) * 4
        g(f"v_add_f32 v{o}, s53, v{o}")
g.label("L_m2done")
bstamp(4)
for p in range(2):
    o = 64 + (p * 6 + 5) * 4
    g(f"v_rcp_f32 v{o}, v{o}")
for p in range(2):
    dn = 64 + (p * 6 + 5) * 4
    for t in range(5):
        o = 64 + (p * 6 + t) * 4
        for r in range(0, 4, 2):
            g(f"v_pk_mul_f32 v[{o+r}:{o+r+1}], v[{o+r}:{o+r+1}], v[{dn}:{dn+1}] op_sel_hi:[1,0]")
        d = 112 + p * 10 + 2 * t
        g(f"v_cvt_pk_bf16_f32 v{d}, v{o}, v{o+1}")
        g(f"v_cvt_pk_bf16_f32 v{d+1}, v{o+2}, v{o+3}")
g("s_lshr_b32 s3, s30, 1")
g("s_mul_i32 s3, s3, 10240")
g("s_add_u32 s3, s3, s44")
g("s_add_u32 s4, s3, 8192")
g("s_and_b32 s5, s30, 1")
g("s_lshl_b32 s5, s5, 12")
g("s_add_u32 s3, s3, s5")
g("s_lshl_b32 s5, s30, 2")
g("s_add_u32 s5, s5, s49")
g("v_mov_b32 v6, s39")
g("v_mov_b32 v7, 0")
def publish_o(OSC):
    for p in range(2):
        d = 112 + p * 10
        g(f"buffer_store_dwordx4 v[{d}:{d+3}], v46, s[24:27], s3 offen offset:{p*1024} {OSC}", tag='o')
        g(f"buffer_store_dwordx4 v[{d+4}:{d+7}], v46, s[24:27], s3 offen offset:{2048+p*1024} {OSC}", tag='o')
        g(f"buffer_store_dwordx2 v[{d+8}:{d+9}], v47, s[24:27], s4 offen offset:{p*1024} {OSC}", tag='o')
    bstamp(5)
    g.force_wait(vm=0)
    g("s_mov_b64 exec, 1")
    g(f"buffer_store_dword v6, v7, s[24:27], s5 offen {OSC}")
    g("s_mov_b64 exec, -1")
if opt['fo']:
    g("s_cmp_eq_u32 s80, 0")
    br("s_cbranch_scc1 L_slowo")
    with g.extra():
        publish_o('')
        br("s_branch L_pubo")
    g.label("L_slowo")
publish_o('sc1')
g.label("L_pubo")
stamp()
g("s_barrier")
p3 = []
for ks in range(20):
    for t in range(5):
        p3.append((ks, t))
def p3_read(i, half=None):
    ks, t = p3[i]
    j, q = ks // 5, ks % 5
    b = wreg(i)
    if q < 4:
        va = "v28" if j < 2 else "v29"
        imm = (160 * (j & 1) + (0, 8, 80, 88)[q]) * 160 + 8 * t
        d2 = 640
    else:
        va = "v30" if j < 2 else "v31"
        imm = (160 * (j & 1) + 16) * 160 + 8 * t
        d2 = 6400
    if half in (None, 0):
        g(f"ds_read_b64_tr_b16 a[{b}:{b+1}], {va} offset:{imm}")
    if half in (None, 1):
        g(f"ds_read_b64_tr_b16 a[{b+2}:{b+3}], {va} offset:{imm+d2}")
for i in range(D):
    p3_read(i)
g("v_min_u32 v7, 28, v51")
def _ld():
    g("buffer_load_dword v36, v7, s[24:27], s49 offen sc1")
spin_wait(_ld, mid_test, "o")
g.force_wait(vm=0)
stamp()
g("s_mov_b32 s3, s44")
for k in range(40):
    g(f"buffer_load_dwordx4 a[{4*k}:{4*k+3}], v46, s[24:27], s3 offen offset:{(k%4)*1024} sc1")
    if k % 4 == 3 and k < 39:
        g("s_add_u32 s3, s3, 4096")
for i in range(100):
    ks, t = p3[i]
    b = wreg(i)
    for p in range(2):
        acc = 144 + (t * 2 + p) * 4
        c = "0" if ks == 0 else f"v[{acc}:{acc+3}]"
        o = (ks * 2 + p) * 4
        g(f"v_mfma_f32_16x16x32_bf16 v[{acc}:{acc+3}], a[{b}:{b+3}], a[{o}:{o+3}], {c}")
        if i + D < 100:
            if opt['order']:
                p3_read(i + D, p)
            elif p == 0:
                p3_read(i + D)
stamp()
g("s_mul_i32 s3, s48, 2560")
g("s_mul_i32 s4, s28, 1280")
g("s_add_u32 s3, s3, s4")
g("s_mul_i32 s4, s30, 160")
g("s_add_u32 s3, s3, s4")
for p in range(2):
    for t in range(5):
        a = 144 + (t * 2 + p) * 4
        d = 112 + p * 10 + 2 * t
        g(f"v_cvt_pk_bf16_f32 v{d}, v{a}, v{a+1}")
        g(f"v_cvt_pk_bf16_f32 v{d+1}, v{a+2}, v{a+3}")
    d = 112 + p * 10
    g(f"buffer_store_dwordx4 v[{d}:{d+3}], v48, s[20:23], s3 offen offset:{p*2560}")
    g(f"buffer_store_dwordx4 v[{d+4}:{d+7}], v48, s[20:23], s3 offen offset:{p*2560+16}")
    g(f"buffer_store_dwordx2 v[{d+8}:{d+9}], v48, s[20:23], s3 offen offset:{p*2560+32}")
if opt['prof']:
    g.force_wait(vm=0)
    stamp()
    g("s_memrealtime s[88:89]")
    g.wait_lg(0)
    g("v_writelane_b32 v5, s92, 62")
    g("v_writelane_b32 v5, s88, 63")
    g("s_lshl_b32 s3, s2, 2")
    g("s_add_u32 s3, s3, s31")
    g("s_lshl_b32 s3, s3, 8")
    g(f"s_add_u32 s3, s3, {WS_P}")
    g("buffer_store_dword v5, v51, s[24:27], s3 offen")
g.label("L_end")
g("s_endpgm")
g.raw(f""".section .rodata,"a"
.p2align 6
.amdhsa_kernel {NAME}
  .amdhsa_next_free_vgpr 512
  .amdhsa_next_free_sgpr 102
  .amdhsa_accum_offset 256
  .amdhsa_group_segment_fixed_size 0
  .amdhsa_kernarg_size 72
  .amdhsa_user_sgpr_count 2
  .amdhsa_user_sgpr_kernarg_segment_ptr 1
  .amdhsa_system_sgpr_workgroup_id_x 1
.end_amdhsa_kernel""")
sys.stdout.write(g.text())
sys.stderr.write(f"bytes~{g.nbytes} stats={g.stats}\n")
```

```python
import sys
from asmgen import Asm

opt = dict(dist=6, nbuf=8, dmagap=2, barf=14, prof=0, fst=11, cf=4, brx=1, t5=1, tq=-1, qd=0, two=1,
           order=1, early=0, pst=13, pf=8, cf2=6, ff=14, nb=0, pts=11, ptf=16, ptn=1, ptd=20, po=0, fo=1, xst=12, pa=0, dg=0, wat=1234, lw=0, rot=1, tl=0, t0=0, tmax=14, te=1, sch=3034, qa=5, qn=1, oa=40, og=2)
for a in sys.argv[1:]:
    k, v = a.split('=')
    opt[k] = int(v)

NAME = "concat_heads__sliding_local_dilated__linear_attn_block__prompt_kernel"
SLOT = 20544
XBASE = 5 * SLOT
KVB = XBASE
HS = 5768
SECS = 4 * HS
RS = 10304
KVF = XBASE + 4 * RS
WS_O, WS_H, WS_K, WS_F, WS_P = 0, 0x500000, 0x600000, 0x700000, 0x800000
SPIN = 1 << 14
LOG2E = 0x3FB8AA3B
SCL = 0x3EA52B5C
EPS = 0x358637BD
NEG = 0xF149F2CA

g = Asm()
def br(text):
    g.flush_hazards()
    g(text)
g.raw("; @launch grid=(256,1,1) block=(256,1,1) lds=163840")
g.raw('.amdgcn_target "amdgcn-amd-amdhsa--gfx950"')
g.raw(f".text\n.globl {NAME}\n.p2align 8\n.type {NAME},@function\n{NAME}:")

nstamp = [0]
lst = []
def lstamp():
    if opt['prof'] > 2:
        r = 100 - 2 * len(lst)
        lst.append(r)
        g.raw(f"  s_memtime s[{r}:{r+1}]")
def lflush():
    if opt['prof'] > 2:
        g.raw("  s_waitcnt lgkmcnt(0)")
        for r in lst:
            k = nstamp[0]; nstamp[0] += 1
            g(f"s_sub_u32 s88, s{r}, s90")
            g(f"v_writelane_b32 v5, s88, {k}")
def stamp():
    if opt['prof']:
        k = nstamp[0]; nstamp[0] += 1
        g("s_memtime s[88:89]")
        g.wait_lg(0)
        g("s_sub_u32 s88, s88, s90")
        g(f"v_writelane_b32 v5, s88, {k}")
def bstamp(k):
    if opt['prof'] > 3:
        g("s_memtime s[88:89]")
        g.wait_lg(0)
        g("s_sub_u32 s88, s88, s90")
        g(f"v_writelane_b32 v5, s88, {32+k}")
def tload(text):
    g(text)
    g.vm[-1] = (None, set())
    nv[0] += 1
def setexec(lo, hi):
    m = ((1 << hi) - 1) & ~((1 << lo) - 1)
    g(f"s_mov_b32 exec_lo, 0x{m & 0xffffffff:x}")
    g(f"s_mov_b32 exec_hi, 0x{m >> 32:x}")
nv = [0]

if opt['prof']:
    g("s_memrealtime s[92:93]")
    g("s_memtime s[90:91]")
g("s_cmp_ge_u32 s2, 256")
br("s_cbranch_scc1 L_end")
g("s_bfe_u32 s28, s2, 0x10002")
if opt['brx']:
    g("s_xor_b32 s28, s28, 1")
g("s_mul_i32 s5, s28, 24")
g("s_add_u32 s6, s0, s5")
g("s_addc_u32 s7, s1, 0")
g("s_load_dwordx2 s[8:9], s[6:7], 0")
g("s_load_dwordx2 s[12:13], s[6:7], 8")
g("s_load_dwordx2 s[16:17], s[6:7], 16")
g("s_load_dwordx2 s[20:21], s[0:1], 48")
g("s_load_dwordx2 s[40:41], s[0:1], 56")
g("s_load_dwordx2 s[24:25], s[0:1], 64")
g("s_getpc_b64 s[86:87]")
g.raw("L_pc0:")
g("s_bfe_u32 s30, s2, 0x30003")
g("s_lshl_b32 s3, s30, 12")
g("v_lshlrev_b32 v6, 4, v0")
g("v_add_u32 v6, s3, v6")
g("v_min_u32 v6, L_end-L_pc0-16, v6")
tload("global_load_dwordx4 v[60:63], v6, s[86:87]")
g("v_and_b32 v1, 63, v0")
g("v_lshrrev_b32 v2, 6, v0")
g("s_and_b32 s3, s2, 3")
g("v_readfirstlane_b32 s31, v2")
g("s_lshl_b32 s3, s3, 2")
g("s_lshr_b32 s78, s2, 6")
g("s_add_u32 s29, s3, s78")
if opt['rot'] == 1:
    g("s_add_u32 s3, s30, s78")
elif opt['rot'] == 0:
    g("s_mov_b32 s3, 0")
elif opt['rot'] == 2:
    g("s_mov_b32 s3, s78")
elif opt['rot'] == 3:
    g("s_mov_b32 s3, s30")
elif opt['rot'] == 4:
    g("s_add_u32 s3, s30, s78")
    g("s_and_b32 s3, s3, 1")
g("s_lshl_b32 s3, s3, 2")
g("s_mov_b32 s84, 0x21043210")
g("s_mov_b32 s85, 0x04321043")
g("s_lshr_b64 s[84:85], s[84:85], s3")
def T_kv(lo, n):
    assert n <= 6
    g(f"s_mov_b32 s3, {lo*64*3840}")
    setexec(0, 10 * n)
    tload("buffer_load_dword v32, v57, s[12:15], s3 offen")
    setexec(0, 4 * n)
    tload(f"buffer_load_dword v32, v58, s[8:11], 0 offen offset:{128*lo}")
    g("s_mov_b64 exec, -1")
def T_q(lo, n):
    setexec(10 * lo, 10 * (lo + n))
    tload("buffer_load_dword v32, v34, s[12:15], 0 offen")
    g("s_mov_b64 exec, -1")
tsch = {}
if opt['tl']:
    nxt = 0 if opt['t0'] else 1
    for k, c in enumerate(str(opt['sch'])):
        n = min(int(c), 10 - nxt)
        if n:
            tsch.setdefault(k, []).append(lambda lo=nxt, n=n: T_kv(lo, n))
        nxt += n
    assert nxt == 10
    for b in range(0, 5, opt['qn']):
        tsch.setdefault(opt['qa'] + b // opt['qn'], []).append(lambda b=b: T_q(b, min(opt['qn'], 5 - b)))
    g("s_lshr_b32 s3, s2, 3")
    g("s_lshl_b32 s3, s3, 2")
    g("s_add_u32 s3, s3, s31")
    g("v_mul_u32_u24 v6, 6554, v1")
    g("s_lshr_b32 s4, s3, 1")
    g("s_mul_i32 s4, s4, 3840")
    g("v_lshrrev_b32 v6, 16, v6")
    g("s_and_b32 s5, s3, 1")
    g("s_mul_i32 s5, s5, 1280")
    g("s_add_u32 s4, s4, s5")
    g("s_add_u32 s4, s4, 1280")
    g("v_lshl_add_u32 v57, v1, 7, s4")
    g(f"s_mov_b32 s5, {64*3840-1280}")
    g("v_mad_u32_u24 v57, v6, s5, v57")
    g("s_and_b32 s4, s2, 3")
    g("s_lshl_b32 s4, s4, 7")
    g("s_add_u32 s4, s4, s3")
    g("s_mul_i32 s4, s4, 5120")
    g("v_and_b32 v7, 3, v1")
    g("v_mul_u32_u24 v7, 1248, v7")
    g("v_lshl_add_u32 v58, v1, 5, v7")
    g("v_add_u32 v58, s4, v58")
    g("s_mov_b32 s10, 2621440")
    g("s_mov_b32 s11, 0x00020000")
    g("s_mov_b32 s14, 2457600")
    g("s_mov_b32 s15, 0x00020000")
    g("s_mul_i32 s4, s3, 3840")
    g("v_lshl_add_u32 v34, v1, 7, s4")
    g(f"s_mov_b32 s5, {128*3840-1280}")
    g("v_mad_u32_u24 v34, v6, s5, v34")
    g.wait_lg(0)
    for f in tsch.pop(0, []):
        f()
g("v_bfe_u32 v4, v0, 4, 2")
g("v_lshrrev_b32 v6, 3, v1")
g("v_mul_u32_u24 v6, 2560, v6")
g("v_and_b32 v7, 7, v1")
g("v_and_b32 v23, 1, v4")
g("v_xor_b32 v7, v7, v23")
g("v_lshl_add_u32 v40, v7, 4, v6")
g("v_add_u32 v41, 256, v40")
g("v_xor_b32 v7, 4, v7")
g("v_lshl_add_u32 v42, v7, 4, v6")
g(f"v_add_u32 v42, {16*1280-2048}, v42")
g("v_add_u32 v43, 256, v42")
g("s_lshl_b32 s3, s29, 7")
g("s_lshl_b32 s4, s31, 5")
g("s_add_u32 s48, s3, s4")
g("s_mul_i32 s32, s48, 1280")
g("s_and_b32 s3, s84, 7")
g("s_lshl_b32 s58, s3, 8")
g("s_add_u32 s58, s58, s32")
g("s_mul_i32 s79, s31, 12288")
g(f"s_add_u32 s79, s79, {XBASE}")
g("s_mov_b32 m0, s79")
g("s_mov_b32 s10, 2621440")
g("s_mov_b32 s11, 0x00020000")
g("s_mov_b32 s14, 2457600")
g("s_mov_b32 s15, 0x00020000")
g("v_mul_u32_u24 v24, 6554, v1")
g("v_lshlrev_b32 v46, 4, v1")
g("v_add_u32 v25, 1280, v46")
g("s_movk_i32 s4, 1120")
g("s_movk_i32 s5, 1280")
def wvoff(i):
    if i:
        g(f"v_add_u32 v6, {64*i*6554}, v24")
    src = "v6" if i else "v24"
    g(f"v_lshrrev_b32 v{52+i}, 16, {src}")
    g(f"v_lshrrev_b32 v7, 17, {src}")
    g(f"v_mad_u32_u24 v{8+i}, v{52+i}, s4, v25")
    g(f"v_mad_u32_u24 v{8+i}, v7, s5, v{8+i}")
    if i == 4:
        g(f"v_add_u32 v{8+i}, 4096, v{8+i}")
for i in range(5):
    wvoff(i)
g("s_mul_i32 s4, s30, 160")
g("s_mul_i32 s5, s31, 61440")
g("s_add_u32 s34, s5, s4")
g("s_mul_i32 s68, s3, 491520")
g("s_add_u32 s68, s68, s34")
g("s_add_u32 s5, s31, 1")
g("s_lshr_b32 s5, s5, 1")
g("s_lshl_b32 s5, s5, 5")
g("s_mul_i32 s45, s31, 5120")
g("s_add_u32 s36, s5, s45")
lstamp()
g.wait_lg(0)
lstamp()

cur_m0 = ["s79+0"]
def setm0(key):
    if cur_m0[0] != key:
        r, off = key.split('+')
        if int(off):
            g(f"s_add_u32 m0, {r}, {off}")
        else:
            g(f"s_mov_b32 m0, {r}")
        cur_m0[0] = key

class Op:
    def __init__(self, tag, m0, fn):
        self.tag, self.m0, self.fn = tag, m0, fn
queue = []
def pop():
    op = queue.pop(0)
    if op.m0:
        setm0(op.m0)
    op.fn()
    for o in queue[:1]:
        if o.m0:
            setm0(o.m0)
def enqueue(ops):
    was = bool(queue)
    queue.extend(ops)
    if not was and queue and queue[0].m0:
        setm0(queue[0].m0)

def t_ops(st):
    return [Op(None, None, f) for f in tsch.pop(st, [])]
def dma_ops(st):
    sl = st % 5
    ops = []
    ops += t_ops(st)
    for i in range(5):
        off = 1024 * (i & 3)
        hi = 4096 if i == 4 else 0
        if st < 10:
            txt = f"buffer_load_dwordx4 v{8+i}, s[12:15], s{68+st} offen offset:{off} lds"
            m0 = f"s36+{sl*SLOT+hi}"
        elif st < 15:
            txt = f"buffer_load_dwordx4 v{13+i}, s[12:15], s{68+2*(st-10)} offen offset:{off} lds"
            m0 = f"s36+{sl*SLOT+hi}"
        else:
            uu = st - 15
            txt = f"buffer_load_dwordx4 v{18+i}, s[16:19], s37 offen offset:{off} lds"
            m0 = f"s45+{uu*20480+hi}"
        def fn(txt=txt, i=i, st=st):
            if st >= 15 and i == 0:
                g(f"s_add_u32 s37, s35, {(st-15)*128*1280}")
            g(txt, tag=('w', st))
            nv[0] += 1
        ops.append(Op(('w', st), m0, fn))
    return ops

def xreg(B, s, p):
    b = ((B * 2 + s) * 2 + p) * 4
    return f"a[{b}:{b+3}]"
def xregs(B):
    return {('a', i) for i in range(B * 16, B * 16 + 16)}
def x_ops(B):
    ops = []
    for i in range(4):
        def fn(i=i):
            if i == 0 and B >= 3:
                g._auto_wait(xregs(B - 3))
            g(f"buffer_load_dwordx4 v{40+i}, s[8:11], s{58+B} offen offset:{1024*i} lds", tag=('x', B))
            nv[0] += 1
        ops.append(Op(('x', B), f"s79+{(B%3)*4096}", fn))
    return ops
def x_read(B):
    for s in range(2):
        for p in range(2):
            g(f"ds_read_b128 {xreg(B,s,p)}, v{44+s} offset:{(B%3)*4096+1024*p}")

enqueue(x_ops(0) + dma_ops(0))
while queue:
    pop()
lstamp()
for base, n in ((16, 819200), (20, 5242880), (24, 1 << 24), (40, 256)):
    g(f"s_mov_b32 s{base+2}, {n}")
    g(f"s_mov_b32 s{base+3}, 0x00020000")
g("s_or_b32 s3, s2, s31")
g("s_cmp_lg_u32 s3, 0")
br("s_cbranch_scc1 L_notag")
with g.extra():
    g("s_memrealtime s[4:5]")
    g.wait_lg(0)
    g("s_lshl_b32 s4, s4, 6")
    g("s_or_b32 s4, s4, 1")
    g("v_mov_b32 v6, s4")
    g("v_mov_b32 v7, 0")
    g("s_mov_b64 exec, 1")
    g("buffer_store_dword v6, v7, s[40:43], 0 offen sc1")
    g("s_mov_b64 exec, -1")
g.label("L_notag")
g("s_add_u32 s59, s58, 128")
g(f"s_add_u32 s69, s68, {64*3840}")
for u in range(1, 5):
    g(f"s_bfe_u32 s3, s84, 0x{(3<<16)|(4*u):x}")
    g(f"s_lshl_b32 s{58+2*u}, s3, 8")
    g(f"s_add_u32 s{58+2*u}, s{58+2*u}, s32")
    g(f"s_add_u32 s{59+2*u}, s{58+2*u}, 128")
    g(f"s_mul_i32 s{68+2*u}, s3, 491520")
    g(f"s_add_u32 s{68+2*u}, s{68+2*u}, s34")
    g(f"s_add_u32 s{69+2*u}, s{68+2*u}, {64*3840}")
g("v_and_b32 v3, 15, v0")
g("v_bfe_u32 v49, v0, 2, 2")
g("v_and_b32 v50, 3, v0")
g("v_mul_u32_u24 v6, 320, v49")
g("v_mul_u32_u24 v7, 5120, v4")
g("v_add_u32 v6, v6, v7")
g("v_add_u32 v7, 1, v4")
g("v_lshrrev_b32 v7, 1, v7")
g("v_lshl_add_u32 v6, v7, 5, v6")
g("v_mul_u32_u24 v7, 40, v50")
g("v_add_u32 v26, v6, v7")
g(f"v_add_u32 v27, {3*SLOT}, v26")
g("s_cmp_eq_u32 s28, 0")
g("s_cselect_b32 s3, 40, 8")
g("s_cselect_b32 s4, 8, 40")
g("v_mad_u32_u24 v184, v50, s3, v6")
for t in range(1, 4):
    g(f"v_add_u32 v{184+2*t}, s4, v{182+2*t}")
g("v_add_u32 v192, 32, v26")
for t in range(5):
    g(f"v_add_u32 v{185+2*t}, {3*SLOT}, v{184+2*t}")
g("v_lshrrev_b32 v6, 3, v3")
g("v_lshlrev_b32 v6, 4, v6")
g("v_and_b32 v7, 7, v3")
g("v_add_u32 v6, v6, v7")
g("v_lshlrev_b32 v6, 7, v6")
g("v_lshrrev_b32 v7, 1, v3")
g("v_and_b32 v7, 5, v7")
g("v_lshlrev_b32 v23, 1, v4")
g("v_xor_b32 v7, v7, v23")
g("v_lshl_add_u32 v6, v7, 4, v6")
g("v_add_u32 v44, s79, v6")
g("v_xor_b32 v45, 16, v44")
g("s_lshl_b32 s54, s30, 13")
g("s_lshl_b32 s3, s31, 11")
g("s_add_u32 s54, s54, s3")
g(f"s_add_u32 s54, s54, {WS_K}")
g("s_lshl_b32 s55, s30, 7")
g("s_lshl_b32 s3, s31, 2")
g("s_add_u32 s55, s55, s3")
g(f"s_add_u32 s55, s55, {WS_F+0xA000}")
g("s_xor_b32 s3, s28, 1")
g("s_or_b32 s56, s3, s29")
g("v_lshlrev_b32 v51, 2, v1")
g("s_cmp_lg_u32 s56, 0")
br("s_cbranch_scc1 L_nozero")
with g.extra():
    for r in range(4):
        g(f"v_mov_b32 v{64+r}, 0")
    for k in range(2):
        g(f"buffer_store_dwordx4 v[64:67], v46, s[24:27], s54 offen offset:{k*1024} sc1")
g.label("L_nozero")
g("s_movk_i32 s4, 1120")
g(f"s_mov_b32 s5, {64*3840-160}")
g(f"s_mov_b32 s6, {128*3840-3840}")
for i in range(5):
    g(f"v_mad_u32_u24 v{18+i}, v{52+i}, s4, v46")
    g(f"v_mad_u32_u24 v{13+i}, v{52+i}, s5, v46")
    g(f"v_lshrrev_b32 v7, 1, v{52+i}")
    g(f"v_mul_u32_u24 v7, s6, v7")
    g(f"v_sub_u32 v{13+i}, v{13+i}, v7")
g("v_add_u32 v17, 4096, v17")
g("v_add_u32 v22, 4096, v22")
g("s_mul_i32 s5, s31, 40960")
g("s_mul_i32 s4, s30, 160")
g("s_add_u32 s35, s5, s4")
g("s_lshr_b32 s3, s2, 3")
g("s_lshl_b32 s3, s3, 2")
g("s_add_u32 s3, s3, s31")
g("v_mul_u32_u24 v7, 10, v52")
g("v_sub_u32 v7, v1, v7")
g("v_lshlrev_b32 v7, 7, v7")
g("v_lshl_add_u32 v6, v52, 7, s3")
g("v_mul_u32_u24 v35, 1280, v6")
g("v_add_u32 v35, v35, v7")
g("s_add_u32 s3, s30, 4")
g("s_lshl_b32 s3, s3, 2")
g("s_mov_b32 s6, 0x21043210")
g("s_mov_b32 s7, 0x04321043")
g("s_lshr_b64 s[6:7], s[6:7], s3")
g("s_and_b32 s3, s6, 7")
g("s_lshl_b32 s3, s3, 2")
g("s_add_u32 s3, s3, s78")
g("s_lshl_b32 s3, s3, 2")
g("s_add_u32 s3, s3, s31")
g(f"s_mul_i32 s3, s3, {8*3840}")
g("s_add_u32 s3, s3, s4")
g("s_add_u32 s3, s3, 1280")
g("v_lshrrev_b32 v6, 2, v1")
g("v_mul_u32_u24 v6, 3840, v6")
g("v_bfe_u32 v7, v1, 1, 1")
g("v_mul_u32_u24 v7, 1280, v7")
g("v_and_b32 v23, 1, v1")
g("v_mul_u32_u24 v23, 156, v23")
g("v_add3_u32 v6, v6, v7, v23")
if not opt['tl']:
    g("v_add_u32 v58, s3, v6")
def ptouch(lo=0, hi=41):
    setexec(lo, hi)
    tload("buffer_load_dword v32, v59, s[24:27], 0 offen sc1")
    g("s_mov_b64 exec, -1")
def touch(va, base, n):
    setexec(0, n)
    tload(f"global_load_dword v32, {va}, {base}")
    g("s_mov_b64 exec, -1")
g("v_mul_u32_u24 v6, 160, v49")
g("v_mul_u32_u24 v7, 40, v50")
g("v_add_u32 v6, v6, v7")
g("v_mul_u32_u24 v7, 3200, v4")
g("v_add_u32 v28, v6, v7")
g("v_add_u32 v29, 51200, v28")
g("v_lshrrev_b32 v7, 1, v4")
g("v_mul_u32_u24 v7, 12800, v7")
g("v_add_u32 v6, v6, v7")
g("v_and_b32 v7, 1, v4")
g("v_mul_u32_u24 v7, 3200, v7")
g("v_add_u32 v30, v6, v7")
g("v_add_u32 v31, 51200, v30")
g("s_and_b32 s3, s30, 1")
g("s_lshl_b32 s3, s3, 9")
g("v_and_b32 v6, 1, v4")
g("v_lshlrev_b32 v6, 8, v6")
g("v_lshl_add_u32 v6, v3, 4, v6")
g("v_lshrrev_b32 v7, 1, v4")
g("v_lshl_add_u32 v6, v7, 3, v6")
g("v_add_u32 v47, s3, v6")
g("v_mul_u32_u24 v6, 5120, v3")
g("v_mul_u32_u24 v7, 40, v4")
g("v_add_u32 v48, v6, v7")
g("s_lshl_b32 s3, s31, 5")
g(f"s_add_u32 s3, s3, {KVB}")
g(f"v_mul_u32_u24 v6, {HS}, v49")
g("v_mul_u32_u24 v7, 288, v50")
g("v_add_u32 v6, v6, v7")
g("v_lshl_add_u32 v6, v4, 3, v6")
g("v_add_u32 v37, s3, v6")
g("v_add_u32 v37, 16, v37")
g(f"v_mul_u32_u24 v23, {HS}, v4")
g("v_mul_u32_u24 v6, 288, v49")
g("v_add_u32 v6, v6, v23")
g("v_lshl_add_u32 v6, v50, 3, v6")
g("v_add_u32 v38, s3, v6")
g("v_add_u32 v6, v7, v23")
g("v_lshl_add_u32 v6, v49, 3, v6")
g("v_add_u32 v39, s3, v6")
g(f"v_add_u32 v39, {SECS}, v39")
g("s_lshl_b32 s3, s28, 4")
g("s_add_u32 s3, s3, s29")
g("s_lshl_b32 s3, s3, 2")
g("s_add_u32 s3, s3, s31")
g("s_mul_i32 s44, s3, 40960")
g("s_lshl_b32 s49, s3, 7")
g(f"s_add_u32 s49, s49, {WS_F}")
g("s_lshr_b32 s33, s3, 2")
g("s_lshl_b32 s33, s33, 7")
g(f"s_add_u32 s33, s33, {WS_F+0xC000}")
g("s_getreg_b32 s38, hwreg(HW_REG_XCC_ID, 0, 4)")
g("s_lshl_b32 s38, s38, 1")
g("s_lshr_b32 s3, s30, 1")
g("s_mul_i32 s3, s3, 10240")
g("s_add_u32 s3, s3, s44")
g("s_and_b32 s5, s30, 1")
g("s_lshl_b32 s4, s5, 12")
g("s_add_u32 s4, s4, s3")
g("s_lshl_b32 s5, s5, 9")
g("s_add_u32 s5, s5, s3")
g("s_add_u32 s5, s5, 8192")
g("v_lshl_add_u32 v59, v1, 7, s4")
g("v_and_b32 v6, 4, v1")
g("v_lshlrev_b32 v6, 8, v6")
g("v_lshl_add_u32 v6, v50, 7, v6")
g("v_add_u32 v6, s5, v6")
g("v_cmp_gt_u32 vcc, 32, v1")
g("v_cndmask_b32 v59, v6, v59, vcc")
g("v_mov_b32 v6, s49")
g("v_cmp_gt_u32 vcc, 40, v1")
g("v_cndmask_b32 v59, v6, v59, vcc")
g("s_lshl_b32 s3, s29, 3")
g("s_add_u32 s3, s3, s30")
g("s_lshl_b32 s4, s3, 7")
g(f"s_add_u32 s4, s4, {WS_F+0x4000}")
g("s_mul_i32 s50, s3, 5120")
g(f"s_add_u32 s50, s50, {WS_H}")
g("s_lshl_b32 s5, s30, 8")
g("s_lshl_b32 s6, s31, 6")
g("s_add_u32 s5, s5, s6")
g(f"s_add_u32 s5, s5, {WS_F+0x8000}")
g("s_lshl_b32 s6, s29, 2")
g("s_add_u32 s6, s6, s5")
g("s_sub_u32 s3, s4, 1024")
g("s_cmp_eq_u32 s28, 0")
g("s_cselect_b32 s47, s4, s6")
g("s_cselect_b32 s57, s3, s5")
g("v_lshlrev_b32 v25, 2, v3")
g("v_mul_u32_u24 v25, s28, v25")
g("s_cmp_eq_u32 s31, 3")
g("s_cselect_b32 s51, 1, 0")
g("s_or_b32 s51, s51, s28")
g("s_cmp_eq_u32 s31, 0")
g("s_cselect_b32 s81, 1, 0")
g("s_cmp_lg_u32 s29, 0")
g("s_cselect_b32 s81, s81, 0")
g("s_or_b32 s81, s81, s28")
g(f"s_mov_b32 s52, 0x{LOG2E:08x}")
g(f"s_mov_b32 s53, 0x{EPS:08x}")
g("s_mov_b32 s82, s52")
g("s_mov_b32 s83, s52")
g("s_mov_b32 s86, s53")
g("s_mov_b32 s87, s53")
lstamp()
enqueue(t_ops(1) + x_ops(1) + dma_ops(1))
while queue:
    pop()
if opt['t5']:
    touch("v58", "s[12:13]", 32)
if opt['pts'] == 98:
    ptouch()
enqueue(t_ops(2) + x_ops(2) + dma_ops(2) + dma_ops(3) + dma_ops(4))

frags = []
for st in range(15):
    for f in range(20):
        if st < 10:
            s, sec, t = f // 10, (f // 5) % 2, f % 5
            B = st
        else:
            sec, s, t = f // 10, (f // 5) % 2, f % 5
            B = 2 * (st - 10) + sec
        frags.append((st, f, s, sec, t, B))

NB = opt['nbuf']
def wreg(i):
    return 160 + 4 * (i % NB)

def issue_read(i, half=None):
    st, f, s, sec, t, B = frags[i]
    sl = st % 5
    imm = (sl % 3) * SLOT + s * 2560 + sec * 160
    if st < 10:
        va = f"v{184 + 2*t + (sl >= 3)}"
    else:
        va = "v26" if sl < 3 else "v27"
        imm += 8 * t
    b = wreg(i)
    if half in (None, 0):
        g(f"ds_read_b64_tr_b16 a[{b}:{b+1}], {va} offset:{imm}")
    if half in (None, 1):
        g(f"ds_read_b64_tr_b16 a[{b+2}:{b+3}], {va} offset:{imm+1280}")

D = opt['dist']
first = {}
def need(tag):
    while any(o.tag == tag for o in queue):
        pop()
    g.wait_tag(tag)

mark = [0]
lab = [0]
def spin_wait(load, test, what):
    n = lab[0]; lab[0] += 1
    g(f"s_mov_b32 s46, {SPIN}")
    g.label(f"L_spin{n}")
    with g.extra():
        load()
        g.force_wait(vm=0)
        test()
        br(f"s_cbranch_scc1 L_spun{n}")
        g("s_sleep 1")
        g("s_sub_u32 s46, s46, 1")
        g("s_cmp_lg_u32 s46, 0")
        br(f"s_cbranch_scc1 L_spin{n}")
    g.label(f"L_spun{n}")

def mid_test():
    g("v_cmp_eq_u32 vcc, s39, v36")
    g("s_cmp_eq_u64 vcc, -1")
def mid_loads(lbl):
    g("s_cmp_eq_u32 s28, 1")
    br(f"s_cbranch_scc1 L_mlb{lbl}")
    g("s_sub_u32 s3, s50, 40960")
    g("s_add_u32 s4, s3, 2560")
    g("v_subrev_u32 v6, 512, v46")
    g("s_mov_b32 exec_lo, 0")
    g.flush_hazards()
    for idx in range(10):
        d = 64 + idx * 4
        g.raw(f"  buffer_load_dwordx4 v[{d}:{d+3}], v6, s[24:27], {'s3' if idx < 5 else 's4'} offen offset:{(idx%5)*512} sc1")
    g("s_mov_b32 exec_lo, -1")
    br(f"s_branch L_mld{lbl}")
    g.label(f"L_mlb{lbl}")
    for k in range(8):
        g.raw(f"  buffer_load_dword v{64+k}, v51, s[24:27], s54 offen offset:{k*256} sc1")
    g.label(f"L_mld{lbl}")
    g("s_mov_b32 s81, 0")

def publish_mid():
    g.force_wait(vm=min(63, min(len(g.vm), nv[0] - mark[0])))
    g("s_cmp_eq_u32 s51, 0")
    br("s_cbranch_scc1 L_nof1")
    with g.extra():
        g("v_mov_b32 v6, s39")
        g("v_mov_b32 v7, 0")
        g("s_mov_b64 exec, 1")
        g("buffer_store_dword v6, v7, s[24:27], s47 offen sc1")
        g("s_mov_b64 exec, -1")
    g.label("L_nof1")

def run_phase(lo, hi, sid):
    st0 = frags[lo][0]
    if sid == 0:
        lflush()
        stamp()
    need(('w', st0))
    if sid == 0:
        need(('x', 0))
        x_read(0)
        enqueue(x_ops(3))
    g("s_barrier")
    stamp()
    for i in range(lo, lo + D):
        issue_read(i)
    for i in range(lo, hi):
        st, f, s, sec, t, B = frags[i]
        last = (i + 20 - f) >= hi
        if f == opt['barf']:
            if not last:
                need(('w', st + 1))
                if sid == 0:
                    need(('x', st + 1))
            if st == 4:
                g("v_readfirstlane_b32 s39, v36")
                g("s_cmp_lg_u32 s39, 0")
                br("s_cbranch_scc1 L_havetag")
                def _ld():
                    g("v_mov_b32 v7, 0")
                    g("buffer_load_dword v36, v7, s[40:43], 0 offen sc1")
                def _tst():
                    g("v_readfirstlane_b32 s39, v36")
                    g("s_cmp_lg_u32 s39, 0")
                spin_wait(_ld, _tst, "tag")
                g.label("L_havetag")
                g("s_cmp_lg_u32 s56, 0")
                br("s_cbranch_scc1 L_nozf")
                with g.extra():
                    g("v_mov_b32 v6, s39")
                    g("v_mov_b32 v7, 0")
                    g("s_mov_b64 exec, 1")
                    g("buffer_store_dword v6, v7, s[24:27], s55 offen sc1")
                    g("s_mov_b64 exec, -1")
                g.label("L_nozf")
                g("s_or_b32 s38, s38, s39")
                g("s_cmp_lg_u32 s31, 0")
                br("s_cbranch_scc1 L_noxg")
                with g.extra():
                    g("s_lshl_b32 s3, s30, 2")
                    g("v_mov_b32 v6, s38")
                    g("v_mov_b32 v7, s3")
                    g("s_mov_b64 exec, 1")
                    g("buffer_store_dword v6, v7, s[24:27], s33 offen sc1")
                    g("s_mov_b64 exec, -1")
                g.label("L_noxg")
            if st == opt['fst'] and opt['ff'] == opt['barf']:
                publish_mid()
            g("s_barrier")
            if opt['prof'] > 1:
                stamp()
            if sid == 0 and not last:
                x_read(st + 1)
            if st == 1:
                g("v_mov_b32 v7, 0")
                g("buffer_load_dword v36, v7, s[40:43], 0 offen sc1")
                nv[0] += 1
            if st == 8:
                g("v_mov_b32 v7, 0")
                g("buffer_load_dword v36, v7, s[24:27], s55 offen sc1")
                nv[0] += 1
            for s2 in range(5, 19):
                at = s2 - 4
                if 10 <= s2 <= 13:
                    at = max(at, opt['qd'])
                if s2 >= 15:
                    at = 10 + (opt['wat'] // 10 ** (18 - s2)) % 10
                if at == st:
                    enqueue(dma_ops(s2))
            if sid == 0 and st + 4 < 10:
                enqueue(x_ops(st + 4))
        for k in range(opt['ptn']):
            if i == opt['pts'] * 20 + opt['ptf'] + k * opt['ptd']:
                enqueue([Op(None, None, lambda k=k: ptouch(41 * k // opt['ptn'], 41 * (k + 1) // opt['ptn']))])
        if st == opt['xst'] and f == 2:
            g("v_min_u32 v7, 28, v51")
            g("buffer_load_dword v33, v7, s[24:27], s33 offen sc1")
            nv[0] += 1
        if st == opt['fst'] and f == opt['ff'] and f != opt['barf']:
            publish_mid()
        if opt['early']:
            if st == opt['pst'] and f == opt['pf']:
                g("buffer_load_dword v36, v25, s[24:27], s57 offen sc1")
                nv[0] += 1
            if st == 14 and f == opt['cf2']:
                mid_test()
                g("s_cselect_b32 s3, s81, 0")
                g("s_cmp_eq_u32 s3, 0")
                br("s_cbranch_scc1 L_noearly")
                mid_loads(0)
                g.label("L_noearly")
        elif st == 14 and f == opt['cf']:
            g("buffer_load_dword v36, v25, s[24:27], s57 offen sc1")
            nv[0] += 1
        b = wreg(i)
        for p in range(2):
            if st < 10:
                acc = 64 + ((sec * 5 + t) * 2 + p) * 4
            else:
                acc = 144 + (t * 2 + p) * 4
            key = (sid, acc)
            c = f"v[{acc}:{acc+3}]" if key in first else "0"
            first[key] = 1
            if st < 10:
                g(f"v_mfma_f32_16x16x32_bf16 v[{acc}:{acc+3}], {xreg(B,s,p)}, a[{b}:{b+3}], {c}")
            else:
                g(f"v_mfma_f32_16x16x32_bf16 v[{acc}:{acc+3}], a[{b}:{b+3}], {xreg(B,s,p)}, {c}")
            if i + D < hi:
                if opt['order']:
                    issue_read(i + D, p)
                elif p == 0:
                    issue_read(i + D)
            if p == 1 and queue and (i % opt['dmagap'] == 0 or len(queue) > 9):
                pop()
    while queue:
        pop()

def phi(regs, tmp):
    n = len(regs)
    for k in range(0, n, 2):
        r, t = regs[k], tmp[k]
        g(f"v_pk_mul_f32 v[{t}:{t+1}], v[{r}:{r+1}], s[82:83]")
        g(f"v_pk_add_f32 v[{r}:{r+1}], v[{r}:{r+1}], 1.0 op_sel_hi:[1,0]")
    for r, t in zip(regs, tmp):
        g(f"v_exp_f32_e64 v{t}, v{t} clamp")
    for r, t in zip(regs, tmp):
        g(f"v_max_f32 v{r}, v{r}, v{t}")
    for k in range(0, n, 2):
        r = regs[k]
        g(f"v_pk_add_f32 v[{r}:{r+1}], v[{r}:{r+1}], s[86:87]")

run_phase(0, 200, 0)
stamp()
if opt['dg']:
    g.force_wait(vm=0)
    bstamp(9)
    if opt['dg'] == 1:
        ptouch()
    elif opt['dg'] == 2:
        touch("v35", "s[16:17]", 50)
    elif opt['dg'] == 3:
        setexec(0, 1)
        tload("buffer_load_dword v32, v59, s[24:27], 0 offen sc1")
        g("s_mov_b64 exec, -1")
    elif opt['dg'] == 4:
        setexec(0, 8)
        tload("buffer_load_dword v32, v59, s[24:27], 0 offen sc1")
        g("s_mov_b64 exec, -1")
    elif opt['dg'] == 5:
        setexec(0, 1)
        tload("buffer_load_dword v32, v59, s[24:27], 0 offen sc1")
        g("s_mov_b64 exec, -1")
        g.force_wait(vm=0)
        bstamp(9)
        ptouch()
    g.force_wait(vm=0)
    bstamp(10)
if opt['pts'] == 99:
    ptouch()
if opt['two']:
    touch("v35", "s[16:17]", 50)
if opt['pts'] == 100:
    ptouch()
if opt['po']:
    g("s_mul_i32 s3, s48, 2560")
    g("s_mul_i32 s4, s28, 1280")
    g("s_add_u32 s3, s3, s4")
    g("s_mul_i32 s4, s30, 160")
    g("s_add_u32 s3, s3, s4")
    g("v_lshrrev_b32 v6, 1, v1")
    g("v_mul_u32_u24 v6, 2560, v6")
    g("v_and_b32 v7, 1, v1")
    g("v_mul_u32_u24 v7, 156, v7")
    g("v_add_u32 v6, v6, v7")
    if opt['po'] == 2:
        setexec(0, 1)
    tload("buffer_load_dword v32, v6, s[20:23], s3 offen")
    g("s_mov_b64 exec, -1")
g("s_cmp_eq_u32 s28, 1")
br("s_cbranch_scc1 L_m1b")
with g.extra():
    for sec in range(2):
        for t in range(5):
            idx = sec * 5 + t
            for p in range(2):
                a = 64 + (idx * 2 + p) * 4
                d = 184 + idx * 4 + 2 * p
                g(f"v_cvt_pk_bf16_f32 v{d}, v{a}, v{a+1}")
                g(f"v_cvt_pk_bf16_f32 v{d+1}, v{a+2}, v{a+3}")
            for p in range(2):
                d = 184 + idx * 4 + 2 * p
                g(f"ds_write_b64 v37, v[{d}:{d+1}] offset:{sec*SECS+t*1152+p*144}")
    bstamp(6)
    g("s_cmp_lg_u32 s31, 3")
    br("s_cbranch_scc1 L_nohalo")
    g("s_add_u32 s3, s50, 2560")
    g("v_subrev_u32 v6, 512, v46")
    g("s_mov_b32 exec_lo, 0")
    for idx in range(10):
        d = 184 + idx * 4
        g(f"buffer_store_dwordx4 v[{d}:{d+3}], v6, s[24:27], {'s50' if idx < 5 else 's3'} offen offset:{(idx%5)*512} sc1")
    g("s_mov_b32 exec_lo, -1")
    g.label("L_nohalo")
    g.force_wait(lg=0)
    br("s_branch L_m1done")
g.label("L_m1b")
with g.extra():
    g(f"s_mul_i32 s3, s31, {RS}")
    g(f"s_add_u32 s3, s3, {XBASE}")
    g("v_add_u32 v6, s3, v46")
    for idx in list(range(5, 10)) + list(range(5)):
        if idx == 0:
            for r in range(4):
                g(f"v_mov_b32 v{224+r}, 0x3f803f80")
            g("v_mov_b32 v7, s3")
            g("ds_write_b128 v7, v[224:227] offset:10240")
            phi(list(range(64, 104)), list(range(208, 248)))
        d = 184 + (idx % 5) * 4 + (0 if idx >= 5 else 0)
        d = 184 + (idx % 6) * 4
        for p in range(2):
            a = 64 + (idx * 2 + p) * 4
            g(f"v_cvt_pk_bf16_f32 v{d+2*p}, v{a}, v{a+1}")
            g(f"v_cvt_pk_bf16_f32 v{d+2*p+1}, v{a+2}, v{a+3}")
        g(f"ds_write_b128 v6, v[{d}:{d+3}] offset:{idx*1024}")
    bstamp(6)
    g("s_lshl_b32 s3, s31, 10")
    g(f"s_add_u32 s3, s3, {XBASE}")
    g("v_add_u32 v6, s3, v46")
    g("s_lshl_b32 s3, s31, 6")
    g(f"s_add_u32 s3, s3, {XBASE+4096}")
    g("v_lshlrev_b32 v7, 8, v4")
    g("v_lshl_add_u32 v7, v50, 4, v7")
    g("v_add_u32 v7, s3, v7")
    g("v_add_u32 v23, 5120, v7")
    g(f"v_mov_b32 v24, {XBASE+10240}")
    g("v_and_b32 v34, 4, v1")
    g("v_cmp_eq_u32 vcc, 0, v34")
    g("v_cndmask_b32 v23, v24, v23, vcc")
    g.force_wait(lg=0)
    g("s_barrier")
    bstamp(7)
    for w2 in range(4):
        b = 64 + w2 * 16
        g(f"ds_read_b128 v[{b}:{b+3}], v6 offset:{w2*RS}")
        g(f"ds_read_b128 v[{b+4}:{b+7}], v6 offset:{w2*RS+5120}")
        g(f"ds_read_b128 v[{b+8}:{b+11}], v23 offset:{w2*RS}")
        g(f"ds_read_b128 v[{b+12}:{b+15}], v7 offset:{w2*RS}")
    for w2 in range(4):
        b = 64 + w2 * 16
        pk, vh, b2, a2 = (f"v[{b+4*k}:{b+4*k+3}]" for k in range(4))
        for k, (A, Bo) in enumerate(((pk, vh), (pk, b2), (a2, vh), (a2, b2))):
            d = 184 + 4 * k
            c = f"v[{d}:{d+3}]" if w2 else "0"
            g(f"v_mfma_f32_16x16x32_bf16 v[{d}:{d+3}], {A}, {Bo}, {c}")
    g("v_readfirstlane_b32 s3, v36")
    g("s_cmp_eq_u32 s3, s39")
    br("s_cbranch_scc1 L_zok")
    def _ld():
        g("v_mov_b32 v7, 0")
        g("buffer_load_dword v36, v7, s[24:27], s55 offen sc1")
    def _tst():
        g("v_readfirstlane_b32 s3, v36")
        g("s_cmp_eq_u32 s3, s39")
    spin_wait(_ld, _tst, "zero")
    g.label("L_zok")
    bstamp(8)
    g("s_mov_b32 s4, 0x00ffff00")
    g("s_mov_b32 s5, 0")
    g("s_mov_b32 s6, 0")
    g("s_mov_b32 s7, 0xff00ff00")
    for r in range(4):
        g(f"buffer_atomic_add_f32 v{184+r}, v51, s[24:27], s54 offen offset:{r*256} sc1")
    for r in range(4):
        g(f"v_cndmask_b32 v{188+r}, v{188+r}, v{192+r}, s[4:5]")
        g(f"v_cndmask_b32 v{188+r}, v{188+r}, v{196+r}, s[6:7]")
    for r in range(4):
        g(f"buffer_atomic_add_f32 v{188+r}, v51, s[24:27], s54 offen offset:{1024+r*256} sc1")
g.label("L_m1done")
mark[0] = nv[0]
stamp()
run_phase(200, 300, 1)
g("s_barrier")
nlate = [0]
def late_wo():
    n0 = nv[0]
    late_wo2()
    if opt['lw']:
        nlate[0] = nv[0] - n0
def late_wo2():
    for s2 in range(15, 19):
        if (opt['wat'] // 10 ** (18 - s2)) % 10 == 5:
            enqueue(dma_ops(s2))
    enqueue(dma_ops(19))
    while queue:
        pop()
if not opt['lw']:
    late_wo()
stamp()
g("v_cmp_eq_u32 vcc, s38, v33")
g("s_cmp_eq_u64 vcc, -1")
g("s_cselect_b32 s80, 1, 0")
g("s_cmp_eq_u32 s81, 0")
br("s_cbranch_scc1 L_midok")
if not opt['early']:
    mid_test()
    br("s_cbranch_scc1 L_midgo")
def _ld():
    g("buffer_load_dword v36, v25, s[24:27], s57 offen sc1")
spin_wait(_ld, mid_test, "mid")
g.label("L_midgo")
mid_loads(1)
g.label("L_midok")
if opt['lw']:
    late_wo()
bstamp(0)
g("s_cmp_eq_u32 s28, 1")
br("s_cbranch_scc1 L_m2b")
with g.extra():
    g("s_or_b32 s3, s29, s31")
    g("s_cmp_lg_u32 s3, 0")
    br("s_cbranch_scc1 L_halo1")
    for r in range(40):
        g(f"v_mov_b32 v{64+r}, 0")
    g.label("L_halo1")
    for t in range(5):
        for p in range(2):
            a = 144 + (t * 2 + p) * 4
            d = 184 + (p * 5 + t) * 2
            g(f"v_cvt_pk_bf16_f32 v{d}, v{a}, v{a+1}")
            g(f"v_cvt_pk_bf16_f32 v{d+1}, v{a+2}, v{a+3}")
    g("s_cmp_eq_u32 s3, 0")
    g("s_cselect_b32 s4, 0, 64")
    g(f"v_mov_b32 v6, 0x{NEG:08x}")
    g("v_lshlrev_b32 v7, 2, v49")
    g("v_add_u32 v7, s4, v7")
    for c in range(3):
        for r in range(4):
            d = 52 + c * 4 + r
            if c == 0:
                g(f"v_cmp_le_u32 vcc, {r}, v50")
                g(f"v_cndmask_b32 v{d}, v6, 0, vcc")
            elif c == 1:
                g(f"v_cmp_le_u32 vcc, {4-r}, v7")
                g(f"v_cndmask_b32 v{d}, v6, 0, vcc")
            else:
                g(f"v_cmp_le_u32 vcc, {8-r}, v7")
                g(f"v_cndmask_b32 v{d}, v6, 0, vcc")
                g(f"v_cmp_gt_u32 vcc, {r}, v50")
                g(f"v_cndmask_b32 v{d}, v6, v{d}, vcc")
    g("v_mov_b32 v240, 0x3f803f80")
    g("v_mov_b32 v241, 0x3f803f80")
    g(f"s_mov_b32 s4, 0x{SCL:08x}")
    g("s_cmp_lg_u32 s31, 0")
    br("s_cbranch_scc1 L_halodone")
    g("v_subrev_u32 v23, 32, v37")
    g.force_wait(vm=nlate[0])
    g("s_mov_b32 exec_lo, 0")
    for sec in range(2):
        for t in range(5):
            idx = sec * 5 + t
            for p in range(2):
                d = 64 + idx * 4 + 2 * p
                g(f"ds_write_b64 v23, v[{d}:{d+1}] offset:{sec*SECS+t*1152+p*144}")
    g("s_mov_b32 exec_lo, -1")
    g.force_wait(lg=0)
    g.label("L_halodone")
    bstamp(1)
    def kreg(p, c, t):
        b = ((p * 3 + c) * 5 + t) * 2
        return f"a[{b}:{b+1}]"
    def vreg(p, c, t):
        b = 60 + ((p * 3 + c) * 5 + t) * 2
        return f"a[{b}:{b+1}]"
    for t in range(5):
        for p in range(2):
            for c in range(3):
                g(f"ds_read_b64_tr_b16 {kreg(p,c,t)}, v38 offset:{t*1152+p*144+16-8*c}")
    for t in range(5):
        for p in range(2):
            for c in range(3):
                g(f"ds_read_b64 {vreg(p,c,t)}, v39 offset:{t*1152+p*144+16-8*c}")
    for t in range(5):
        for p in range(2):
            for c in range(3):
                s = 204 + (p * 3 + c) * 4
                q = 184 + (p * 5 + t) * 2
                cc = f"v[{52+4*c}:{55+4*c}]" if t == 0 else f"v[{s}:{s+3}]"
                g(f"v_mfma_f32_4x4x4_16b_bf16 v[{s}:{s+3}], {kreg(p,c,t)}, v[{q}:{q+1}], {cc}")
    bstamp(2)
    for p in range(2):
        s = 204 + p * 12
        m = 242 + p * 4
        for k in range(4):
            g(f"v_max3_f32 v{m+k}, v{s+3*k}, v{s+3*k+1}, v{s+3*k+2}")
        g(f"v_max3_f32 v{m}, v{m}, v{m+1}, v{m+2}")
        g(f"v_max_f32 v{m}, v{m}, v{m+3}")
        g(f"v_mul_f32 v{m}, s4, v{m}")
    for p in range(2):
        s = 204 + p * 12
        m = 242 + p * 4
        for k in range(12):
            g(f"v_fma_f32 v{s+k}, v{s+k}, s4, -v{m}")
        for k in range(12):
            g(f"v_exp_f32 v{s+k}, v{s+k}")
    for p in range(2):
        s = 204 + p * 12
        for k in range(6):
            g(f"v_cvt_pk_bf16_f32 v{228+p*6+k}, v{s+2*k}, v{s+2*k+1}")
    bstamp(3)
    for c in range(3):
        for p in range(2):
            pr = 228 + (p * 3 + c) * 2
            for t in range(6):
                o = 64 + (p * 6 + t) * 4
                a = vreg(p, c, t) if t < 5 else "v[240:241]"
                cc = "0" if c == 0 else f"v[{o}:{o+3}]"
                g(f"v_mfma_f32_4x4x4_16b_bf16 v[{o}:{o+3}], {a}, v[{pr}:{pr+1}], {cc}")
    br("s_branch L_m2done")
g.label("L_m2b")
with g.extra():
    phi(list(range(144, 184)), list(range(184, 224)))
    for t in range(5):
        for p in range(2):
            a = 144 + (t * 2 + p) * 4
            g(f"v_cvt_pk_bf16_f32 v{a}, v{a}, v{a+1}")
            g(f"v_cvt_pk_bf16_f32 v{a+1}, v{a+2}, v{a+3}")
    g("s_lshl_b32 s3, s31, 5")
    g(f"s_add_u32 s3, s3, {KVF}")
    g("v_lshl_add_u32 v6, v50, 3, s3")
    g("v_mul_u32_u24 v7, 768, v4")
    g("v_lshl_add_u32 v23, v49, 7, v6")
    g("v_add_u32 v23, v23, v7")
    g("s_mov_b32 s4, 0x00ffff00")
    g("s_mov_b32 s5, 0xff00ff00")
    g("v_mov_b32 v24, 3072")
    g("v_cndmask_b32 v7, v7, v24, s[4:5]")
    g("v_and_b32 v24, 1, v49")
    g("v_add_u32 v24, 4, v24")
    g("s_mov_b32 s5, 0")
    g("v_cndmask_b32 v24, v24, v49, s[4:5]")
    g("v_lshl_add_u32 v24, v24, 7, v6")
    g("v_add_u32 v24, v24, v7")
    g("v_lshl_add_u32 v7, v4, 2, v50")
    g("v_lshlrev_b32 v7, 3, v7")
    g(f"v_add_u32 v7, {KVF}, v7")
    bstamp(1)
    g.force_wait(vm=nlate[0])
    bstamp(2)
    for k in range(4):
        g(f"v_cvt_pk_bf16_f32 v{72+k}, v{64+2*k}, v{65+2*k}")
    g("ds_write_b64 v23, v[72:73]")
    g("ds_write_b64 v24, v[74:75]")
    g.force_wait(lg=0)
    g("s_barrier")
    bstamp(3)
    for T in range(30):
        g(f"ds_read_b64 a[{2*T}:{2*T+1}], v7 offset:{T*128}")
    for t in range(5):
        for t2 in range(6):
            T = t * 6 + t2
            for p in range(2):
                o = 64 + (p * 6 + t2) * 4
                q = 144 + (t * 2 + p) * 4
                cc = "0" if t == 0 else f"v[{o}:{o+3}]"
                g(f"v_mfma_f32_4x4x4_16b_bf16 v[{o}:{o+3}], a[{2*T}:{2*T+1}], v[{q}:{q+1}], {cc}")
    for p in range(2):
        o = 64 + (p * 6 + 5) * 4
        g(f"v_add_f32 v{o}, s53, v{o}")
g.label("L_m2done")
bstamp(4)
for p in range(2):
    o = 64 + (p * 6 + 5) * 4
    g(f"v_rcp_f32 v{o}, v{o}")
for p in range(2):
    dn = 64 + (p * 6 + 5) * 4
    for t in range(5):
        o = 64 + (p * 6 + t) * 4
        for r in range(0, 4, 2):
            g(f"v_pk_mul_f32 v[{o+r}:{o+r+1}], v[{o+r}:{o+r+1}], v[{dn}:{dn+1}] op_sel_hi:[1,0]")
        d = 112 + p * 10 + 2 * t
        g(f"v_cvt_pk_bf16_f32 v{d}, v{o}, v{o+1}")
        g(f"v_cvt_pk_bf16_f32 v{d+1}, v{o+2}, v{o+3}")
g("s_lshr_b32 s3, s30, 1")
g("s_mul_i32 s3, s3, 10240")
g("s_add_u32 s3, s3, s44")
g("s_add_u32 s4, s3, 8192")
g("s_and_b32 s5, s30, 1")
g("s_lshl_b32 s5, s5, 12")
g("s_add_u32 s3, s3, s5")
g("s_lshl_b32 s5, s30, 2")
g("s_add_u32 s5, s5, s49")
g("v_mov_b32 v6, s39")
g("v_mov_b32 v7, 0")
def publish_o(OSC):
    for p in range(2):
        d = 112 + p * 10
        g(f"buffer_store_dwordx4 v[{d}:{d+3}], v46, s[24:27], s3 offen offset:{p*1024} {OSC}", tag='o')
        g(f"buffer_store_dwordx4 v[{d+4}:{d+7}], v46, s[24:27], s3 offen offset:{2048+p*1024} {OSC}", tag='o')
        g(f"buffer_store_dwordx2 v[{d+8}:{d+9}], v47, s[24:27], s4 offen offset:{p*1024} {OSC}", tag='o')
    bstamp(5)
    g.force_wait(vm=0)
    g("s_mov_b64 exec, 1")
    g(f"buffer_store_dword v6, v7, s[24:27], s5 offen {OSC}")
    g("s_mov_b64 exec, -1")
if opt['fo']:
    g("s_cmp_eq_u32 s80, 0")
    br("s_cbranch_scc1 L_slowo")
    with g.extra():
        publish_o('')
        br("s_branch L_pubo")
    g.label("L_slowo")
publish_o('sc1')
g.label("L_pubo")
stamp()
g("s_barrier")
p3 = []
for ks in range(20):
    for t in range(5):
        p3.append((ks, t))
def p3_read(i, half=None):
    ks, t = p3[i]
    j, q = ks // 5, ks % 5
    b = wreg(i)
    if q < 4:
        va = "v28" if j < 2 else "v29"
        imm = (160 * (j & 1) + (0, 8, 80, 88)[q]) * 160 + 8 * t
        d2 = 640
    else:
        va = "v30" if j < 2 else "v31"
        imm = (160 * (j & 1) + 16) * 160 + 8 * t
        d2 = 6400
    if half in (None, 0):
        g(f"ds_read_b64_tr_b16 a[{b}:{b+1}], {va} offset:{imm}")
    if half in (None, 1):
        g(f"ds_read_b64_tr_b16 a[{b+2}:{b+3}], {va} offset:{imm+d2}")
for i in range(D):
    p3_read(i)
g("v_min_u32 v7, 28, v51")
def _ld():
    g("buffer_load_dword v36, v7, s[24:27], s49 offen sc1")
spin_wait(_ld, mid_test, "o")
g.force_wait(vm=0)
stamp()
g("s_mov_b32 s3, s44")
nol = [0]
def o_load():
    k = nol[0]; nol[0] += 1
    g(f"buffer_load_dwordx4 a[{4*k}:{4*k+3}], v46, s[24:27], s3 offen offset:{(k%4)*1024} sc1")
    if k % 4 == 3 and k < 39:
        g("s_add_u32 s3, s3, 4096")
for k in range(opt['oa']):
    o_load()
for i in range(100):
    ks, t = p3[i]
    b = wreg(i)
    for p in range(2):
        acc = 144 + (t * 2 + p) * 4
        c = "0" if ks == 0 else f"v[{acc}:{acc+3}]"
        o = (ks * 2 + p) * 4
        assert ks * 2 + p < nol[0]
        g(f"v_mfma_f32_16x16x32_bf16 v[{acc}:{acc+3}], a[{b}:{b+3}], a[{o}:{o+3}], {c}")
        if i + D < 100:
            if opt['order']:
                p3_read(i + D, p)
            elif p == 0:
                p3_read(i + D)
        if p == 1 and i % opt['og'] == 0 and nol[0] < 40:
            o_load()
stamp()
g("s_mul_i32 s3, s48, 2560")
g("s_mul_i32 s4, s28, 1280")
g("s_add_u32 s3, s3, s4")
g("s_mul_i32 s4, s30, 160")
g("s_add_u32 s3, s3, s4")
for p in range(2):
    for t in range(5):
        a = 144 + (t * 2 + p) * 4
        d = 112 + p * 10 + 2 * t
        g(f"v_cvt_pk_bf16_f32 v{d}, v{a}, v{a+1}")
        g(f"v_cvt_pk_bf16_f32 v{d+1}, v{a+2}, v{a+3}")
    d = 112 + p * 10
    g(f"buffer_store_dwordx4 v[{d}:{d+3}], v48, s[20:23], s3 offen offset:{p*2560}")
    g(f"buffer_store_dwordx4 v[{d+4}:{d+7}], v48, s[20:23], s3 offen offset:{p*2560+16}")
    g(f"buffer_store_dwordx2 v[{d+8}:{d+9}], v48, s[20:23], s3 offen offset:{p*2560+32}")
if opt['prof']:
    g.force_wait(vm=0)
    stamp()
    g("s_memrealtime s[88:89]")
    g.wait_lg(0)
    g("v_writelane_b32 v5, s92, 62")
    g("v_writelane_b32 v5, s88, 63")
    g("s_lshl_b32 s3, s2, 2")
    g("s_add_u32 s3, s3, s31")
    g("s_lshl_b32 s3, s3, 8")
    g(f"s_add_u32 s3, s3, {WS_P}")
    g("buffer_store_dword v5, v51, s[24:27], s3 offen")
g.label("L_end")
g("s_endpgm")
g.raw(f""".section .rodata,"a"
.p2align 6
.amdhsa_kernel {NAME}
  .amdhsa_next_free_vgpr 512
  .amdhsa_next_free_sgpr 102
  .amdhsa_accum_offset 256
  .amdhsa_group_segment_fixed_size 0
  .amdhsa_kernarg_size 72
  .amdhsa_user_sgpr_count 2
  .amdhsa_user_sgpr_kernarg_segment_ptr 1
  .amdhsa_system_sgpr_workgroup_id_x 1
.end_amdhsa_kernel""")
sys.stdout.write(g.text())
sys.stderr.write(f"bytes~{g.nbytes} stats={g.stats}\n")
```

```python
import sys
from asmgen import Asm

opt = dict(dist=6, nbuf=8, dmagap=2, barf=14, prof=0, fst=11, cf=4, brx=1, t5=1, tq=-1, qd=0, two=1,
           order=1, early=0, pst=13, pf=8, cf2=6, ff=14, nb=0, pts=11, ptf=16, ptn=1, ptd=20, po=0, fo=1, xst=12, pa=0, dg=0, wat=1234, lw=0, rot=1, tl=0, t0=0, tmax=14, te=1, sch=3034, qa=5, qn=1, oa=6, og=2, xo=0, tr=1)
for a in sys.argv[1:]:
    k, v = a.split('=')
    opt[k] = int(v)

NAME = "concat_heads__sliding_local_dilated__linear_attn_block__prompt_kernel"
SLOT = 20544
XBASE = 5 * SLOT
KVB = XBASE
HS = 5768
SECS = 4 * HS
RS = 10304
KVF = XBASE + 4 * RS
WS_O, WS_H, WS_K, WS_F, WS_P = 0, 0x500000, 0x600000, 0x700000, 0x800000
SPIN = 1 << 14
LOG2E = 0x3FB8AA3B
SCL = 0x3EA52B5C
EPS = 0x358637BD
NEG = 0xF149F2CA

g = Asm()
def br(text):
    g.flush_hazards()
    g(text)
g.raw("; @launch grid=(256,1,1) block=(256,1,1) lds=163840")
g.raw('.amdgcn_target "amdgcn-amd-amdhsa--gfx950"')
g.raw(f".text\n.globl {NAME}\n.p2align 8\n.type {NAME},@function\n{NAME}:")

nstamp = [0]
lst = []
def lstamp():
    if opt['prof'] > 2:
        r = 100 - 2 * len(lst)
        lst.append(r)
        g.raw(f"  s_memtime s[{r}:{r+1}]")
def lflush():
    if opt['prof'] > 2:
        g.raw("  s_waitcnt lgkmcnt(0)")
        for r in lst:
            k = nstamp[0]; nstamp[0] += 1
            g(f"s_sub_u32 s88, s{r}, s90")
            g(f"v_writelane_b32 v5, s88, {k}")
def stamp():
    if opt['prof']:
        k = nstamp[0]; nstamp[0] += 1
        g("s_memtime s[88:89]")
        g.wait_lg(0)
        g("s_sub_u32 s88, s88, s90")
        g(f"v_writelane_b32 v5, s88, {k}")
def bstamp(k):
    if opt['prof'] > 3:
        g("s_memtime s[88:89]")
        g.wait_lg(0)
        g("s_sub_u32 s88, s88, s90")
        g(f"v_writelane_b32 v5, s88, {32+k}")
def tload(text):
    g(text)
    g.vm[-1] = (None, set())
    nv[0] += 1
def setexec(lo, hi):
    m = ((1 << hi) - 1) & ~((1 << lo) - 1)
    g(f"s_mov_b32 exec_lo, 0x{m & 0xffffffff:x}")
    g(f"s_mov_b32 exec_hi, 0x{m >> 32:x}")
nv = [0]

if opt['prof']:
    g("s_memrealtime s[92:93]")
    g("s_memtime s[90:91]")
g("s_cmp_ge_u32 s2, 256")
br("s_cbranch_scc1 L_end")
g("s_bfe_u32 s28, s2, 0x10002")
if opt['brx']:
    g("s_xor_b32 s28, s28, 1")
g("s_mul_i32 s5, s28, 24")
g("s_add_u32 s6, s0, s5")
g("s_addc_u32 s7, s1, 0")
g("s_load_dwordx2 s[8:9], s[6:7], 0")
g("s_load_dwordx2 s[12:13], s[6:7], 8")
g("s_load_dwordx2 s[16:17], s[6:7], 16")
g("s_load_dwordx2 s[20:21], s[0:1], 48")
g("s_load_dwordx2 s[40:41], s[0:1], 56")
g("s_load_dwordx2 s[24:25], s[0:1], 64")
g("s_getpc_b64 s[86:87]")
g.raw("L_pc0:")
g("s_bfe_u32 s30, s2, 0x30003")
g("s_lshl_b32 s3, s30, 12")
g("v_lshlrev_b32 v6, 4, v0")
g("v_add_u32 v6, s3, v6")
g("v_min_u32 v6, L_end-L_pc0-16, v6")
tload("global_load_dwordx4 v[60:63], v6, s[86:87]")
g("v_and_b32 v1, 63, v0")
g("v_lshrrev_b32 v2, 6, v0")
g("s_and_b32 s3, s2, 3")
g("v_readfirstlane_b32 s31, v2")
g("s_lshl_b32 s3, s3, 2")
g("s_lshr_b32 s78, s2, 6")
g("s_add_u32 s29, s3, s78")
if opt['rot'] == 1:
    g("s_add_u32 s3, s30, s78")
elif opt['rot'] == 0:
    g("s_mov_b32 s3, 0")
elif opt['rot'] == 2:
    g("s_mov_b32 s3, s78")
elif opt['rot'] == 3:
    g("s_mov_b32 s3, s30")
elif opt['rot'] == 4:
    g("s_add_u32 s3, s30, s78")
    g("s_and_b32 s3, s3, 1")
g("s_lshl_b32 s3, s3, 2")
g("s_mov_b32 s84, 0x21043210")
g("s_mov_b32 s85, 0x04321043")
g("s_lshr_b64 s[84:85], s[84:85], s3")
def T_kv(lo, n):
    assert n <= 6
    g(f"s_mov_b32 s3, {lo*64*3840}")
    setexec(0, 10 * n)
    tload("buffer_load_dword v32, v57, s[12:15], s3 offen")
    setexec(0, 4 * n)
    tload(f"buffer_load_dword v32, v58, s[8:11], 0 offen offset:{128*lo}")
    g("s_mov_b64 exec, -1")
def T_q(lo, n):
    setexec(10 * lo, 10 * (lo + n))
    tload("buffer_load_dword v32, v34, s[12:15], 0 offen")
    g("s_mov_b64 exec, -1")
tsch = {}
if opt['tl']:
    nxt = 0 if opt['t0'] else 1
    for k, c in enumerate(str(opt['sch'])):
        n = min(int(c), 10 - nxt)
        if n:
            tsch.setdefault(k, []).append(lambda lo=nxt, n=n: T_kv(lo, n))
        nxt += n
    assert nxt == 10
    for b in range(0, 5, opt['qn']):
        tsch.setdefault(opt['qa'] + b // opt['qn'], []).append(lambda b=b: T_q(b, min(opt['qn'], 5 - b)))
    g("s_lshr_b32 s3, s2, 3")
    g("s_lshl_b32 s3, s3, 2")
    g("s_add_u32 s3, s3, s31")
    g("v_mul_u32_u24 v6, 6554, v1")
    g("s_lshr_b32 s4, s3, 1")
    g("s_mul_i32 s4, s4, 3840")
    g("v_lshrrev_b32 v6, 16, v6")
    g("s_and_b32 s5, s3, 1")
    g("s_mul_i32 s5, s5, 1280")
    g("s_add_u32 s4, s4, s5")
    g("s_add_u32 s4, s4, 1280")
    g("v_lshl_add_u32 v57, v1, 7, s4")
    g(f"s_mov_b32 s5, {64*3840-1280}")
    g("v_mad_u32_u24 v57, v6, s5, v57")
    g("s_and_b32 s4, s2, 3")
    g("s_lshl_b32 s4, s4, 7")
    g("s_add_u32 s4, s4, s3")
    g("s_mul_i32 s4, s4, 5120")
    g("v_and_b32 v7, 3, v1")
    g("v_mul_u32_u24 v7, 1248, v7")
    g("v_lshl_add_u32 v58, v1, 5, v7")
    g("v_add_u32 v58, s4, v58")
    g("s_mov_b32 s10, 2621440")
    g("s_mov_b32 s11, 0x00020000")
    g("s_mov_b32 s14, 2457600")
    g("s_mov_b32 s15, 0x00020000")
    g("s_mul_i32 s4, s3, 3840")
    g("v_lshl_add_u32 v34, v1, 7, s4")
    g(f"s_mov_b32 s5, {128*3840-1280}")
    g("v_mad_u32_u24 v34, v6, s5, v34")
    g.wait_lg(0)
    for f in tsch.pop(0, []):
        f()
g("v_bfe_u32 v4, v0, 4, 2")
g("v_lshrrev_b32 v6, 3, v1")
g("v_mul_u32_u24 v6, 2560, v6")
g("v_and_b32 v7, 7, v1")
g("v_and_b32 v23, 1, v4")
g("v_xor_b32 v7, v7, v23")
g("v_lshl_add_u32 v40, v7, 4, v6")
g("v_add_u32 v41, 256, v40")
g("v_xor_b32 v7, 4, v7")
g("v_lshl_add_u32 v42, v7, 4, v6")
g(f"v_add_u32 v42, {16*1280-2048}, v42")
g("v_add_u32 v43, 256, v42")
g("s_lshl_b32 s3, s29, 7")
g("s_lshl_b32 s4, s31, 5")
g("s_add_u32 s48, s3, s4")
g("s_mul_i32 s32, s48, 1280")
g("s_and_b32 s3, s84, 7")
g("s_lshl_b32 s58, s3, 8")
g("s_add_u32 s58, s58, s32")
g("s_mul_i32 s79, s31, 12288")
g(f"s_add_u32 s79, s79, {XBASE}")
g("s_mov_b32 m0, s79")
g("s_mov_b32 s10, 2621440")
g("s_mov_b32 s11, 0x00020000")
g("s_mov_b32 s14, 2457600")
g("s_mov_b32 s15, 0x00020000")
g("v_mul_u32_u24 v24, 6554, v1")
g("v_lshlrev_b32 v46, 4, v1")
g("v_add_u32 v25, 1280, v46")
g("s_movk_i32 s4, 1120")
g("s_movk_i32 s5, 1280")
def wvoff(i):
    if i:
        g(f"v_add_u32 v6, {64*i*6554}, v24")
    src = "v6" if i else "v24"
    g(f"v_lshrrev_b32 v{52+i}, 16, {src}")
    g(f"v_lshrrev_b32 v7, 17, {src}")
    g(f"v_mad_u32_u24 v{8+i}, v{52+i}, s4, v25")
    g(f"v_mad_u32_u24 v{8+i}, v7, s5, v{8+i}")
    if i == 4:
        g(f"v_add_u32 v{8+i}, 4096, v{8+i}")
for i in range(5):
    wvoff(i)
g("s_mul_i32 s4, s30, 160")
g("s_mul_i32 s5, s31, 61440")
g("s_add_u32 s34, s5, s4")
g("s_mul_i32 s68, s3, 491520")
g("s_add_u32 s68, s68, s34")
g("s_add_u32 s5, s31, 1")
g("s_lshr_b32 s5, s5, 1")
g("s_lshl_b32 s5, s5, 5")
g("s_mul_i32 s45, s31, 5120")
g("s_add_u32 s36, s5, s45")
lstamp()
g.wait_lg(0)
lstamp()

cur_m0 = ["s79+0"]
def setm0(key):
    if cur_m0[0] != key:
        r, off = key.split('+')
        if int(off):
            g(f"s_add_u32 m0, {r}, {off}")
        else:
            g(f"s_mov_b32 m0, {r}")
        cur_m0[0] = key

class Op:
    def __init__(self, tag, m0, fn):
        self.tag, self.m0, self.fn = tag, m0, fn
queue = []
def pop():
    op = queue.pop(0)
    if op.m0:
        setm0(op.m0)
    op.fn()
    for o in queue[:1]:
        if o.m0:
            setm0(o.m0)
def enqueue(ops):
    was = bool(queue)
    queue.extend(ops)
    if not was and queue and queue[0].m0:
        setm0(queue[0].m0)

def t_ops(st):
    return [Op(None, None, f) for f in tsch.pop(st, [])]
def dma_ops(st):
    sl = st % 5
    ops = []
    ops += t_ops(st)
    for i in range(5):
        off = 1024 * (i & 3)
        hi = 4096 if i == 4 else 0
        if st < 10:
            txt = f"buffer_load_dwordx4 v{8+i}, s[12:15], s{68+st} offen offset:{off} lds"
            m0 = f"s36+{sl*SLOT+hi}"
        elif st < 15:
            txt = f"buffer_load_dwordx4 v{13+i}, s[12:15], s{68+2*(st-10)} offen offset:{off} lds"
            m0 = f"s36+{sl*SLOT+hi}"
        else:
            uu = st - 15
            txt = f"buffer_load_dwordx4 v{18+i}, s[16:19], s37 offen offset:{off} lds"
            m0 = f"s45+{uu*20480+hi}"
        def fn(txt=txt, i=i, st=st):
            if st >= 15 and i == 0:
                g(f"s_add_u32 s37, s35, {(st-15)*128*1280}")
            g(txt, tag=('w', st))
            nv[0] += 1
        ops.append(Op(('w', st), m0, fn))
    return ops

def xreg(B, s, p):
    b = ((B * 2 + s) * 2 + p) * 4
    return f"a[{b}:{b+3}]"
def xregs(B):
    return {('a', i) for i in range(B * 16, B * 16 + 16)}
def x_ops(B):
    ops = []
    for i in range(4):
        def fn(i=i):
            if i == 0 and B >= 3:
                g._auto_wait(xregs(B - 3))
            g(f"buffer_load_dwordx4 v{40+i}, s[8:11], s{58+B} offen offset:{1024*i} lds", tag=('x', B))
            nv[0] += 1
        ops.append(Op(('x', B), f"s79+{(B%3)*4096}", fn))
    return ops
def x_read(B):
    for s in range(2):
        for p in range(2):
            g(f"ds_read_b128 {xreg(B,s,p)}, v{44+s} offset:{(B%3)*4096+1024*p}")

enqueue(x_ops(0) + dma_ops(0))
while queue:
    pop()
lstamp()
for base, n in ((16, 819200), (20, 5242880), (24, 1 << 24), (40, 256)):
    g(f"s_mov_b32 s{base+2}, {n}")
    g(f"s_mov_b32 s{base+3}, 0x00020000")
g("s_or_b32 s3, s2, s31")
g("s_cmp_lg_u32 s3, 0")
br("s_cbranch_scc1 L_notag")
with g.extra():
    g("s_memrealtime s[4:5]")
    g.wait_lg(0)
    g("s_lshl_b32 s4, s4, 6")
    g("s_or_b32 s4, s4, 1")
    g("v_mov_b32 v6, s4")
    g("v_mov_b32 v7, 0")
    g("s_mov_b64 exec, 1")
    g("buffer_store_dword v6, v7, s[40:43], 0 offen sc1")
    g("s_mov_b64 exec, -1")
g.label("L_notag")
g("s_add_u32 s59, s58, 128")
g(f"s_add_u32 s69, s68, {64*3840}")
for u in range(1, 5):
    g(f"s_bfe_u32 s3, s84, 0x{(3<<16)|(4*u):x}")
    g(f"s_lshl_b32 s{58+2*u}, s3, 8")
    g(f"s_add_u32 s{58+2*u}, s{58+2*u}, s32")
    g(f"s_add_u32 s{59+2*u}, s{58+2*u}, 128")
    g(f"s_mul_i32 s{68+2*u}, s3, 491520")
    g(f"s_add_u32 s{68+2*u}, s{68+2*u}, s34")
    g(f"s_add_u32 s{69+2*u}, s{68+2*u}, {64*3840}")
g("v_and_b32 v3, 15, v0")
g("v_bfe_u32 v49, v0, 2, 2")
g("v_and_b32 v50, 3, v0")
g("v_mul_u32_u24 v6, 320, v49")
g("v_mul_u32_u24 v7, 5120, v4")
g("v_add_u32 v6, v6, v7")
g("v_add_u32 v7, 1, v4")
g("v_lshrrev_b32 v7, 1, v7")
g("v_lshl_add_u32 v6, v7, 5, v6")
g("v_mul_u32_u24 v7, 40, v50")
g("v_add_u32 v26, v6, v7")
g(f"v_add_u32 v27, {3*SLOT}, v26")
g("s_cmp_eq_u32 s28, 0")
g("s_cselect_b32 s3, 40, 8")
g("s_cselect_b32 s4, 8, 40")
g("v_mad_u32_u24 v184, v50, s3, v6")
for t in range(1, 4):
    g(f"v_add_u32 v{184+2*t}, s4, v{182+2*t}")
g("v_add_u32 v192, 32, v26")
for t in range(5):
    g(f"v_add_u32 v{185+2*t}, {3*SLOT}, v{184+2*t}")
g("v_lshrrev_b32 v6, 3, v3")
g("v_lshlrev_b32 v6, 4, v6")
g("v_and_b32 v7, 7, v3")
g("v_add_u32 v6, v6, v7")
g("v_lshlrev_b32 v6, 7, v6")
g("v_lshrrev_b32 v7, 1, v3")
g("v_and_b32 v7, 5, v7")
g("v_lshlrev_b32 v23, 1, v4")
g("v_xor_b32 v7, v7, v23")
g("v_lshl_add_u32 v6, v7, 4, v6")
g("v_add_u32 v44, s79, v6")
g("v_xor_b32 v45, 16, v44")
g("s_lshl_b32 s54, s30, 13")
g("s_lshl_b32 s3, s31, 11")
g("s_add_u32 s54, s54, s3")
g(f"s_add_u32 s54, s54, {WS_K}")
g("s_lshl_b32 s55, s30, 7")
g("s_lshl_b32 s3, s31, 2")
g("s_add_u32 s55, s55, s3")
g(f"s_add_u32 s55, s55, {WS_F+0xA000}")
g("s_xor_b32 s3, s28, 1")
g("s_or_b32 s56, s3, s29")
g("v_lshlrev_b32 v51, 2, v1")
g("s_cmp_lg_u32 s56, 0")
br("s_cbranch_scc1 L_nozero")
with g.extra():
    for r in range(4):
        g(f"v_mov_b32 v{64+r}, 0")
    for k in range(2):
        g(f"buffer_store_dwordx4 v[64:67], v46, s[24:27], s54 offen offset:{k*1024} sc1")
g.label("L_nozero")
g("s_movk_i32 s4, 1120")
g(f"s_mov_b32 s5, {64*3840-160}")
g(f"s_mov_b32 s6, {128*3840-3840}")
for i in range(5):
    g(f"v_mad_u32_u24 v{18+i}, v{52+i}, s4, v46")
    g(f"v_mad_u32_u24 v{13+i}, v{52+i}, s5, v46")
    g(f"v_lshrrev_b32 v7, 1, v{52+i}")
    g(f"v_mul_u32_u24 v7, s6, v7")
    g(f"v_sub_u32 v{13+i}, v{13+i}, v7")
g("v_add_u32 v17, 4096, v17")
g("v_add_u32 v22, 4096, v22")
g("s_mul_i32 s5, s31, 40960")
g("s_mul_i32 s4, s30, 160")
g("s_add_u32 s35, s5, s4")
g("s_lshr_b32 s3, s2, 3")
g("s_lshl_b32 s3, s3, 2")
g("s_add_u32 s3, s3, s31")
g("v_mul_u32_u24 v7, 10, v52")
g("v_sub_u32 v7, v1, v7")
g("v_lshlrev_b32 v7, 7, v7")
g("v_lshl_add_u32 v6, v52, 7, s3")
g("v_mul_u32_u24 v35, 1280, v6")
g("v_add_u32 v35, v35, v7")
g("s_add_u32 s3, s30, 4")
g("s_lshl_b32 s3, s3, 2")
g("s_mov_b32 s6, 0x21043210")
g("s_mov_b32 s7, 0x04321043")
g("s_lshr_b64 s[6:7], s[6:7], s3")
g("s_and_b32 s3, s6, 7")
g("s_lshl_b32 s3, s3, 2")
g("s_add_u32 s3, s3, s78")
g("s_lshl_b32 s3, s3, 2")
g("s_add_u32 s3, s3, s31")
g(f"s_mul_i32 s3, s3, {8*3840}")
g("s_add_u32 s3, s3, s4")
g("s_add_u32 s3, s3, 1280")
g("v_lshrrev_b32 v6, 2, v1")
g("v_mul_u32_u24 v6, 3840, v6")
g("v_bfe_u32 v7, v1, 1, 1")
g("v_mul_u32_u24 v7, 1280, v7")
g("v_and_b32 v23, 1, v1")
g("v_mul_u32_u24 v23, 156, v23")
g("v_add3_u32 v6, v6, v7, v23")
if not opt['tl']:
    g("v_add_u32 v58, s3, v6")
def ptouch(lo=0, hi=41):
    setexec(lo, hi)
    tload("buffer_load_dword v32, v59, s[24:27], 0 offen sc1")
    g("s_mov_b64 exec, -1")
def touch(va, base, n):
    setexec(0, n)
    tload(f"global_load_dword v32, {va}, {base}")
    g("s_mov_b64 exec, -1")
g("v_mul_u32_u24 v6, 160, v49")
g("v_mul_u32_u24 v7, 40, v50")
g("v_add_u32 v6, v6, v7")
g("v_mul_u32_u24 v7, 3200, v4")
g("v_add_u32 v28, v6, v7")
g("v_add_u32 v29, 51200, v28")
g("v_lshrrev_b32 v7, 1, v4")
g("v_mul_u32_u24 v7, 12800, v7")
g("v_add_u32 v6, v6, v7")
g("v_and_b32 v7, 1, v4")
g("v_mul_u32_u24 v7, 3200, v7")
g("v_add_u32 v30, v6, v7")
g("v_add_u32 v31, 51200, v30")
g("s_and_b32 s3, s30, 1")
g("s_lshl_b32 s3, s3, 9")
g("v_and_b32 v6, 1, v4")
g("v_lshlrev_b32 v6, 8, v6")
g("v_lshl_add_u32 v6, v3, 4, v6")
g("v_lshrrev_b32 v7, 1, v4")
g("v_lshl_add_u32 v6, v7, 3, v6")
g("v_add_u32 v47, s3, v6")
g("v_mul_u32_u24 v6, 5120, v3")
g("v_mul_u32_u24 v7, 40, v4")
g("v_add_u32 v48, v6, v7")
g("s_lshl_b32 s3, s31, 5")
g(f"s_add_u32 s3, s3, {KVB}")
g(f"v_mul_u32_u24 v6, {HS}, v49")
g("v_mul_u32_u24 v7, 288, v50")
g("v_add_u32 v6, v6, v7")
g("v_lshl_add_u32 v6, v4, 3, v6")
g("v_add_u32 v37, s3, v6")
g("v_add_u32 v37, 16, v37")
g(f"v_mul_u32_u24 v23, {HS}, v4")
g("v_mul_u32_u24 v6, 288, v49")
g("v_add_u32 v6, v6, v23")
g("v_lshl_add_u32 v6, v50, 3, v6")
g("v_add_u32 v38, s3, v6")
g("v_add_u32 v6, v7, v23")
g("v_lshl_add_u32 v6, v49, 3, v6")
g("v_add_u32 v39, s3, v6")
g(f"v_add_u32 v39, {SECS}, v39")
g("s_lshl_b32 s3, s28, 4")
g("s_add_u32 s3, s3, s29")
g("s_lshl_b32 s3, s3, 2")
g("s_add_u32 s3, s3, s31")
g("s_mul_i32 s44, s3, 40960")
g("s_lshl_b32 s49, s3, 7")
g(f"s_add_u32 s49, s49, {WS_F}")
g("s_lshr_b32 s33, s3, 2")
g("s_lshl_b32 s33, s33, 7")
g(f"s_add_u32 s33, s33, {WS_F+0xC000}")
g("s_getreg_b32 s38, hwreg(HW_REG_XCC_ID, 0, 4)")
g("s_lshl_b32 s38, s38, 1")
g("s_lshr_b32 s3, s30, 1")
g("s_mul_i32 s3, s3, 10240")
g("s_add_u32 s3, s3, s44")
g("s_and_b32 s5, s30, 1")
g("s_lshl_b32 s4, s5, 12")
g("s_add_u32 s4, s4, s3")
g("s_lshl_b32 s5, s5, 9")
g("s_add_u32 s5, s5, s3")
g("s_add_u32 s5, s5, 8192")
g("v_lshl_add_u32 v59, v1, 7, s4")
g("v_and_b32 v6, 4, v1")
g("v_lshlrev_b32 v6, 8, v6")
g("v_lshl_add_u32 v6, v50, 7, v6")
g("v_add_u32 v6, s5, v6")
g("v_cmp_gt_u32 vcc, 32, v1")
g("v_cndmask_b32 v59, v6, v59, vcc")
g("v_mov_b32 v6, s49")
g("v_cmp_gt_u32 vcc, 40, v1")
g("v_cndmask_b32 v59, v6, v59, vcc")
g("s_lshl_b32 s3, s29, 3")
g("s_add_u32 s3, s3, s30")
g("s_lshl_b32 s4, s3, 7")
g(f"s_add_u32 s4, s4, {WS_F+0x4000}")
g("s_mul_i32 s50, s3, 5120")
g(f"s_add_u32 s50, s50, {WS_H}")
g("s_lshl_b32 s5, s30, 8")
g("s_lshl_b32 s6, s31, 6")
g("s_add_u32 s5, s5, s6")
g(f"s_add_u32 s5, s5, {WS_F+0x8000}")
g("s_lshl_b32 s6, s29, 2")
g("s_add_u32 s6, s6, s5")
g("s_sub_u32 s3, s4, 1024")
g("s_cmp_eq_u32 s28, 0")
g("s_cselect_b32 s47, s4, s6")
g("s_cselect_b32 s57, s3, s5")
g("v_lshlrev_b32 v25, 2, v3")
g("v_mul_u32_u24 v25, s28, v25")
g("s_cmp_eq_u32 s31, 3")
g("s_cselect_b32 s51, 1, 0")
g("s_or_b32 s51, s51, s28")
g("s_cmp_eq_u32 s31, 0")
g("s_cselect_b32 s81, 1, 0")
g("s_cmp_lg_u32 s29, 0")
g("s_cselect_b32 s81, s81, 0")
g("s_or_b32 s81, s81, s28")
g(f"s_mov_b32 s52, 0x{LOG2E:08x}")
g(f"s_mov_b32 s53, 0x{EPS:08x}")
g("s_mov_b32 s82, s52")
g("s_mov_b32 s83, s52")
g("s_mov_b32 s86, s53")
g("s_mov_b32 s87, s53")
lstamp()
enqueue(t_ops(1) + x_ops(1) + dma_ops(1))
while queue:
    pop()
if opt['t5']:
    touch("v58", "s[12:13]", 32)
if opt['pts'] == 98:
    ptouch()
enqueue(t_ops(2) + x_ops(2) + dma_ops(2) + dma_ops(3) + dma_ops(4))

frags = []
for st in range(15):
    for f in range(20):
        if st < 10:
            s, sec, t = f // 10, (f // 5) % 2, f % 5
            B = st
        else:
            sec, s, t = f // 10, (f // 5) % 2, f % 5
            B = 2 * (st - 10) + sec
        frags.append((st, f, s, sec, t, B))

NB = opt['nbuf']
def wreg(i):
    return 160 + 4 * (i % NB)

def issue_read(i, half=None):
    st, f, s, sec, t, B = frags[i]
    sl = st % 5
    imm = (sl % 3) * SLOT + s * 2560 + sec * 160
    if st < 10:
        va = f"v{184 + 2*t + (sl >= 3)}"
    else:
        va = "v26" if sl < 3 else "v27"
        imm += 8 * t
    b = wreg(i)
    if half in (None, 0):
        g(f"ds_read_b64_tr_b16 a[{b}:{b+1}], {va} offset:{imm}")
    if half in (None, 1):
        g(f"ds_read_b64_tr_b16 a[{b+2}:{b+3}], {va} offset:{imm+1280}")

D = opt['dist']
first = {}
def need(tag):
    while any(o.tag == tag for o in queue):
        pop()
    g.wait_tag(tag)

mark = [0]
lab = [0]
def spin_wait(load, test, what):
    n = lab[0]; lab[0] += 1
    g(f"s_mov_b32 s46, {SPIN}")
    g.label(f"L_spin{n}")
    with g.extra():
        load()
        g.force_wait(vm=0)
        test()
        br(f"s_cbranch_scc1 L_spun{n}")
        g("s_sleep 1")
        g("s_sub_u32 s46, s46, 1")
        g("s_cmp_lg_u32 s46, 0")
        br(f"s_cbranch_scc1 L_spin{n}")
    g.label(f"L_spun{n}")

def mid_test():
    g("v_cmp_eq_u32 vcc, s39, v36")
    g("s_cmp_eq_u64 vcc, -1")
def mid_loads(lbl):
    g("s_cmp_eq_u32 s28, 1")
    br(f"s_cbranch_scc1 L_mlb{lbl}")
    g("s_sub_u32 s3, s50, 40960")
    g("s_add_u32 s4, s3, 2560")
    g("v_subrev_u32 v6, 512, v46")
    g("s_mov_b32 exec_lo, 0")
    g.flush_hazards()
    for idx in range(10):
        d = 64 + idx * 4
        g.raw(f"  buffer_load_dwordx4 v[{d}:{d+3}], v6, s[24:27], {'s3' if idx < 5 else 's4'} offen offset:{(idx%5)*512} sc1")
    g("s_mov_b32 exec_lo, -1")
    br(f"s_branch L_mld{lbl}")
    g.label(f"L_mlb{lbl}")
    for k in range(8):
        g.raw(f"  buffer_load_dword v{64+k}, v51, s[24:27], s54 offen offset:{k*256} sc1")
    g.label(f"L_mld{lbl}")
    g("s_mov_b32 s81, 0")

def publish_mid():
    g.force_wait(vm=min(63, min(len(g.vm), nv[0] - mark[0])))
    g("s_cmp_eq_u32 s51, 0")
    br("s_cbranch_scc1 L_nof1")
    with g.extra():
        g("v_mov_b32 v6, s39")
        g("v_mov_b32 v7, 0")
        g("s_mov_b64 exec, 1")
        g("buffer_store_dword v6, v7, s[24:27], s47 offen sc1")
        g("s_mov_b64 exec, -1")
    g.label("L_nof1")

def run_phase(lo, hi, sid):
    st0 = frags[lo][0]
    if sid == 0:
        lflush()
        stamp()
    need(('w', st0))
    if sid == 0:
        need(('x', 0))
        x_read(0)
        enqueue(x_ops(3))
    g("s_barrier")
    stamp()
    for i in range(lo, lo + D):
        issue_read(i)
    for i in range(lo, hi):
        st, f, s, sec, t, B = frags[i]
        last = (i + 20 - f) >= hi
        if f == opt['barf']:
            if not last:
                need(('w', st + 1))
                if sid == 0:
                    need(('x', st + 1))
            if st == 4:
                g("v_readfirstlane_b32 s39, v36")
                g("s_cmp_lg_u32 s39, 0")
                br("s_cbranch_scc1 L_havetag")
                def _ld():
                    g("v_mov_b32 v7, 0")
                    g("buffer_load_dword v36, v7, s[40:43], 0 offen sc1")
                def _tst():
                    g("v_readfirstlane_b32 s39, v36")
                    g("s_cmp_lg_u32 s39, 0")
                spin_wait(_ld, _tst, "tag")
                g.label("L_havetag")
                g("s_cmp_lg_u32 s56, 0")
                br("s_cbranch_scc1 L_nozf")
                with g.extra():
                    g("v_mov_b32 v6, s39")
                    g("v_mov_b32 v7, 0")
                    g("s_mov_b64 exec, 1")
                    g("buffer_store_dword v6, v7, s[24:27], s55 offen sc1")
                    g("s_mov_b64 exec, -1")
                g.label("L_nozf")
                g("s_or_b32 s38, s38, s39")
                g("s_cmp_lg_u32 s31, 0")
                br("s_cbranch_scc1 L_noxg")
                with g.extra():
                    g("s_lshl_b32 s3, s30, 2")
                    g("v_mov_b32 v6, s38")
                    g("v_mov_b32 v7, s3")
                    g("s_mov_b64 exec, 1")
                    g("buffer_store_dword v6, v7, s[24:27], s33 offen sc1")
                    g("s_mov_b64 exec, -1")
                g.label("L_noxg")
            if st == opt['fst'] and opt['ff'] == opt['barf']:
                publish_mid()
            g("s_barrier")
            if opt['prof'] > 1:
                stamp()
            if sid == 0 and not last:
                x_read(st + 1)
            if st == 1:
                g("v_mov_b32 v7, 0")
                g("buffer_load_dword v36, v7, s[40:43], 0 offen sc1")
                nv[0] += 1
            if st == 8:
                g("v_mov_b32 v7, 0")
                g("buffer_load_dword v36, v7, s[24:27], s55 offen sc1")
                nv[0] += 1
            for s2 in range(5, 19):
                at = s2 - 4
                if 10 <= s2 <= 13:
                    at = max(at, opt['qd'])
                if s2 >= 15:
                    at = 10 + (opt['wat'] // 10 ** (18 - s2)) % 10
                if at == st:
                    enqueue(dma_ops(s2))
            if sid == 0 and st + 4 < 10:
                enqueue(x_ops(st + 4))
        for k in range(opt['ptn']):
            if i == opt['pts'] * 20 + opt['ptf'] + k * opt['ptd']:
                enqueue([Op(None, None, lambda k=k: ptouch(41 * k // opt['ptn'], 41 * (k + 1) // opt['ptn']))])
        if st == opt['xst'] and f == 2:
            g("v_min_u32 v7, 28, v51")
            g("buffer_load_dword v33, v7, s[24:27], s33 offen sc1")
            nv[0] += 1
        if st == opt['fst'] and f == opt['ff'] and f != opt['barf']:
            publish_mid()
        if opt['early']:
            if st == opt['pst'] and f == opt['pf']:
                g("buffer_load_dword v36, v25, s[24:27], s57 offen sc1")
                nv[0] += 1
            if st == 14 and f == opt['cf2']:
                mid_test()
                g("s_cselect_b32 s3, s81, 0")
                g("s_cmp_eq_u32 s3, 0")
                br("s_cbranch_scc1 L_noearly")
                mid_loads(0)
                g.label("L_noearly")
        elif st == 14 and f == opt['cf']:
            g("buffer_load_dword v36, v25, s[24:27], s57 offen sc1")
            nv[0] += 1
        b = wreg(i)
        for p in range(2):
            if st < 10:
                acc = 64 + ((sec * 5 + t) * 2 + p) * 4
            else:
                acc = 144 + (t * 2 + p) * 4
            key = (sid, acc)
            c = f"v[{acc}:{acc+3}]" if key in first else "0"
            first[key] = 1
            if st < 10:
                g(f"v_mfma_f32_16x16x32_bf16 v[{acc}:{acc+3}], {xreg(B,s,p)}, a[{b}:{b+3}], {c}")
            else:
                g(f"v_mfma_f32_16x16x32_bf16 v[{acc}:{acc+3}], a[{b}:{b+3}], {xreg(B,s,p)}, {c}")
            if i + D < hi:
                if opt['order']:
                    issue_read(i + D, p)
                elif p == 0:
                    issue_read(i + D)
            if p == 1 and queue and (i % opt['dmagap'] == 0 or len(queue) > 9):
                pop()
    while queue:
        pop()

def phi(regs, tmp):
    n = len(regs)
    for k in range(0, n, 2):
        r, t = regs[k], tmp[k]
        g(f"v_pk_mul_f32 v[{t}:{t+1}], v[{r}:{r+1}], s[82:83]")
        g(f"v_pk_add_f32 v[{r}:{r+1}], v[{r}:{r+1}], 1.0 op_sel_hi:[1,0]")
    for r, t in zip(regs, tmp):
        g(f"v_exp_f32_e64 v{t}, v{t} clamp")
    for r, t in zip(regs, tmp):
        g(f"v_max_f32 v{r}, v{r}, v{t}")
    for k in range(0, n, 2):
        r = regs[k]
        g(f"v_pk_add_f32 v[{r}:{r+1}], v[{r}:{r+1}], s[86:87]")

run_phase(0, 200, 0)
stamp()
if opt['dg']:
    g.force_wait(vm=0)
    bstamp(9)
    if opt['dg'] == 1:
        ptouch()
    elif opt['dg'] == 2:
        touch("v35", "s[16:17]", 50)
    elif opt['dg'] == 3:
        setexec(0, 1)
        tload("buffer_load_dword v32, v59, s[24:27], 0 offen sc1")
        g("s_mov_b64 exec, -1")
    elif opt['dg'] == 4:
        setexec(0, 8)
        tload("buffer_load_dword v32, v59, s[24:27], 0 offen sc1")
        g("s_mov_b64 exec, -1")
    elif opt['dg'] == 5:
        setexec(0, 1)
        tload("buffer_load_dword v32, v59, s[24:27], 0 offen sc1")
        g("s_mov_b64 exec, -1")
        g.force_wait(vm=0)
        bstamp(9)
        ptouch()
    g.force_wait(vm=0)
    bstamp(10)
if opt['pts'] == 99:
    ptouch()
if opt['two']:
    touch("v35", "s[16:17]", 50)
if opt['pts'] == 100:
    ptouch()
if opt['po']:
    g("s_mul_i32 s3, s48, 2560")
    g("s_mul_i32 s4, s28, 1280")
    g("s_add_u32 s3, s3, s4")
    g("s_mul_i32 s4, s30, 160")
    g("s_add_u32 s3, s3, s4")
    g("v_lshrrev_b32 v6, 1, v1")
    g("v_mul_u32_u24 v6, 2560, v6")
    g("v_and_b32 v7, 1, v1")
    g("v_mul_u32_u24 v7, 156, v7")
    g("v_add_u32 v6, v6, v7")
    if opt['po'] == 2:
        setexec(0, 1)
    tload("buffer_load_dword v32, v6, s[20:23], s3 offen")
    g("s_mov_b64 exec, -1")
g("s_cmp_eq_u32 s28, 1")
br("s_cbranch_scc1 L_m1b")
with g.extra():
    for sec in range(2):
        for t in range(5):
            idx = sec * 5 + t
            for p in range(2):
                a = 64 + (idx * 2 + p) * 4
                d = 184 + idx * 4 + 2 * p
                g(f"v_cvt_pk_bf16_f32 v{d}, v{a}, v{a+1}")
                g(f"v_cvt_pk_bf16_f32 v{d+1}, v{a+2}, v{a+3}")
            for p in range(2):
                d = 184 + idx * 4 + 2 * p
                g(f"ds_write_b64 v37, v[{d}:{d+1}] offset:{sec*SECS+t*1152+p*144}")
    bstamp(6)
    g("s_cmp_lg_u32 s31, 3")
    br("s_cbranch_scc1 L_nohalo")
    g("s_add_u32 s3, s50, 2560")
    g("v_subrev_u32 v6, 512, v46")
    g("s_mov_b32 exec_lo, 0")
    for idx in range(10):
        d = 184 + idx * 4
        g(f"buffer_store_dwordx4 v[{d}:{d+3}], v6, s[24:27], {'s50' if idx < 5 else 's3'} offen offset:{(idx%5)*512} sc1")
    g("s_mov_b32 exec_lo, -1")
    g.label("L_nohalo")
    g.force_wait(lg=0)
    br("s_branch L_m1done")
g.label("L_m1b")
with g.extra():
    g(f"s_mul_i32 s3, s31, {RS}")
    g(f"s_add_u32 s3, s3, {XBASE}")
    g("v_add_u32 v6, s3, v46")
    for idx in list(range(5, 10)) + list(range(5)):
        if idx == 0:
            for r in range(4):
                g(f"v_mov_b32 v{224+r}, 0x3f803f80")
            g("v_mov_b32 v7, s3")
            g("ds_write_b128 v7, v[224:227] offset:10240")
            phi(list(range(64, 104)), list(range(208, 248)))
        d = 184 + (idx % 5) * 4 + (0 if idx >= 5 else 0)
        d = 184 + (idx % 6) * 4
        for p in range(2):
            a = 64 + (idx * 2 + p) * 4
            g(f"v_cvt_pk_bf16_f32 v{d+2*p}, v{a}, v{a+1}")
            g(f"v_cvt_pk_bf16_f32 v{d+2*p+1}, v{a+2}, v{a+3}")
        g(f"ds_write_b128 v6, v[{d}:{d+3}] offset:{idx*1024}")
    bstamp(6)
    g("s_lshl_b32 s3, s31, 10")
    g(f"s_add_u32 s3, s3, {XBASE}")
    g("v_add_u32 v6, s3, v46")
    g("s_lshl_b32 s3, s31, 6")
    g(f"s_add_u32 s3, s3, {XBASE+4096}")
    g("v_lshlrev_b32 v7, 8, v4")
    g("v_lshl_add_u32 v7, v50, 4, v7")
    g("v_add_u32 v7, s3, v7")
    g("v_add_u32 v23, 5120, v7")
    g(f"v_mov_b32 v24, {XBASE+10240}")
    g("v_and_b32 v34, 4, v1")
    g("v_cmp_eq_u32 vcc, 0, v34")
    g("v_cndmask_b32 v23, v24, v23, vcc")
    g.force_wait(lg=0)
    g("s_barrier")
    bstamp(7)
    for w2 in range(4):
        b = 64 + w2 * 16
        g(f"ds_read_b128 v[{b}:{b+3}], v6 offset:{w2*RS}")
        g(f"ds_read_b128 v[{b+4}:{b+7}], v6 offset:{w2*RS+5120}")
        g(f"ds_read_b128 v[{b+8}:{b+11}], v23 offset:{w2*RS}")
        g(f"ds_read_b128 v[{b+12}:{b+15}], v7 offset:{w2*RS}")
    for w2 in range(4):
        b = 64 + w2 * 16
        pk, vh, b2, a2 = (f"v[{b+4*k}:{b+4*k+3}]" for k in range(4))
        for k, (A, Bo) in enumerate(((pk, vh), (pk, b2), (a2, vh), (a2, b2))):
            d = 184 + 4 * k
            c = f"v[{d}:{d+3}]" if w2 else "0"
            g(f"v_mfma_f32_16x16x32_bf16 v[{d}:{d+3}], {A}, {Bo}, {c}")
    g("v_readfirstlane_b32 s3, v36")
    g("s_cmp_eq_u32 s3, s39")
    br("s_cbranch_scc1 L_zok")
    def _ld():
        g("v_mov_b32 v7, 0")
        g("buffer_load_dword v36, v7, s[24:27], s55 offen sc1")
    def _tst():
        g("v_readfirstlane_b32 s3, v36")
        g("s_cmp_eq_u32 s3, s39")
    spin_wait(_ld, _tst, "zero")
    g.label("L_zok")
    bstamp(8)
    g("s_mov_b32 s4, 0x00ffff00")
    g("s_mov_b32 s5, 0")
    g("s_mov_b32 s6, 0")
    g("s_mov_b32 s7, 0xff00ff00")
    for r in range(4):
        g(f"buffer_atomic_add_f32 v{184+r}, v51, s[24:27], s54 offen offset:{r*256} sc1")
    for r in range(4):
        g(f"v_cndmask_b32 v{188+r}, v{188+r}, v{192+r}, s[4:5]")
        g(f"v_cndmask_b32 v{188+r}, v{188+r}, v{196+r}, s[6:7]")
    for r in range(4):
        g(f"buffer_atomic_add_f32 v{188+r}, v51, s[24:27], s54 offen offset:{1024+r*256} sc1")
g.label("L_m1done")
mark[0] = nv[0]
stamp()
run_phase(200, 300, 1)
g("s_barrier")
nlate = [0]
def late_wo():
    n0 = nv[0]
    late_wo2()
    if opt['lw']:
        nlate[0] = nv[0] - n0
def late_wo2():
    for s2 in range(15, 19):
        if (opt['wat'] // 10 ** (18 - s2)) % 10 == 5:
            enqueue(dma_ops(s2))
    enqueue(dma_ops(19))
    while queue:
        pop()
if not opt['lw']:
    late_wo()
stamp()
g("v_cmp_eq_u32 vcc, s38, v33")
g("s_cmp_eq_u64 vcc, -1")
g("s_cselect_b32 s80, 1, 0")
g("s_cmp_eq_u32 s81, 0")
br("s_cbranch_scc1 L_midok")
if not opt['early']:
    mid_test()
    br("s_cbranch_scc1 L_midgo")
def _ld():
    g("buffer_load_dword v36, v25, s[24:27], s57 offen sc1")
spin_wait(_ld, mid_test, "mid")
g.label("L_midgo")
mid_loads(1)
g.label("L_midok")
if opt['lw']:
    late_wo()
bstamp(0)
g("s_cmp_eq_u32 s28, 1")
br("s_cbranch_scc1 L_m2b")
with g.extra():
    g("s_or_b32 s3, s29, s31")
    g("s_cmp_lg_u32 s3, 0")
    br("s_cbranch_scc1 L_halo1")
    for r in range(40):
        g(f"v_mov_b32 v{64+r}, 0")
    g.label("L_halo1")
    for t in range(5):
        for p in range(2):
            a = 144 + (t * 2 + p) * 4
            d = 184 + (p * 5 + t) * 2
            g(f"v_cvt_pk_bf16_f32 v{d}, v{a}, v{a+1}")
            g(f"v_cvt_pk_bf16_f32 v{d+1}, v{a+2}, v{a+3}")
    g("s_cmp_eq_u32 s3, 0")
    g("s_cselect_b32 s4, 0, 64")
    g(f"v_mov_b32 v6, 0x{NEG:08x}")
    g("v_lshlrev_b32 v7, 2, v49")
    g("v_add_u32 v7, s4, v7")
    for c in range(3):
        for r in range(4):
            d = 52 + c * 4 + r
            if c == 0:
                g(f"v_cmp_le_u32 vcc, {r}, v50")
                g(f"v_cndmask_b32 v{d}, v6, 0, vcc")
            elif c == 1:
                g(f"v_cmp_le_u32 vcc, {4-r}, v7")
                g(f"v_cndmask_b32 v{d}, v6, 0, vcc")
            else:
                g(f"v_cmp_le_u32 vcc, {8-r}, v7")
                g(f"v_cndmask_b32 v{d}, v6, 0, vcc")
                g(f"v_cmp_gt_u32 vcc, {r}, v50")
                g(f"v_cndmask_b32 v{d}, v6, v{d}, vcc")
    g("v_mov_b32 v240, 0x3f803f80")
    g("v_mov_b32 v241, 0x3f803f80")
    g(f"s_mov_b32 s4, 0x{SCL:08x}")
    g("s_cmp_lg_u32 s31, 0")
    br("s_cbranch_scc1 L_halodone")
    g("v_subrev_u32 v23, 32, v37")
    g.force_wait(vm=nlate[0])
    g("s_mov_b32 exec_lo, 0")
    for sec in range(2):
        for t in range(5):
            idx = sec * 5 + t
            for p in range(2):
                d = 64 + idx * 4 + 2 * p
                g(f"ds_write_b64 v23, v[{d}:{d+1}] offset:{sec*SECS+t*1152+p*144}")
    g("s_mov_b32 exec_lo, -1")
    g.force_wait(lg=0)
    g.label("L_halodone")
    bstamp(1)
    def kreg(p, c, t):
        b = ((p * 3 + c) * 5 + t) * 2
        return f"a[{b}:{b+1}]"
    def vreg(p, c, t):
        b = 60 + ((p * 3 + c) * 5 + t) * 2
        return f"a[{b}:{b+1}]"
    for t in range(5):
        for p in range(2):
            for c in range(3):
                g(f"ds_read_b64_tr_b16 {kreg(p,c,t)}, v38 offset:{t*1152+p*144+16-8*c}")
    for t in range(5):
        for p in range(2):
            for c in range(3):
                g(f"ds_read_b64 {vreg(p,c,t)}, v39 offset:{t*1152+p*144+16-8*c}")
    for t in range(5):
        for p in range(2):
            for c in range(3):
                s = 204 + (p * 3 + c) * 4
                q = 184 + (p * 5 + t) * 2
                cc = f"v[{52+4*c}:{55+4*c}]" if t == 0 else f"v[{s}:{s+3}]"
                g(f"v_mfma_f32_4x4x4_16b_bf16 v[{s}:{s+3}], {kreg(p,c,t)}, v[{q}:{q+1}], {cc}")
    bstamp(2)
    for p in range(2):
        s = 204 + p * 12
        m = 242 + p * 4
        for k in range(4):
            g(f"v_max3_f32 v{m+k}, v{s+3*k}, v{s+3*k+1}, v{s+3*k+2}")
        g(f"v_max3_f32 v{m}, v{m}, v{m+1}, v{m+2}")
        g(f"v_max_f32 v{m}, v{m}, v{m+3}")
        g(f"v_mul_f32 v{m}, s4, v{m}")
    for p in range(2):
        s = 204 + p * 12
        m = 242 + p * 4
        for k in range(12):
            g(f"v_fma_f32 v{s+k}, v{s+k}, s4, -v{m}")
        for k in range(12):
            g(f"v_exp_f32 v{s+k}, v{s+k}")
    for p in range(2):
        s = 204 + p * 12
        for k in range(6):
            g(f"v_cvt_pk_bf16_f32 v{228+p*6+k}, v{s+2*k}, v{s+2*k+1}")
    bstamp(3)
    for c in range(3):
        for p in range(2):
            pr = 228 + (p * 3 + c) * 2
            for t in range(6):
                o = 64 + (p * 6 + t) * 4
                a = vreg(p, c, t) if t < 5 else "v[240:241]"
                cc = "0" if c == 0 else f"v[{o}:{o+3}]"
                g(f"v_mfma_f32_4x4x4_16b_bf16 v[{o}:{o+3}], {a}, v[{pr}:{pr+1}], {cc}")
    br("s_branch L_m2done")
g.label("L_m2b")
with g.extra():
    phi(list(range(144, 184)), list(range(184, 224)))
    for t in range(5):
        for p in range(2):
            a = 144 + (t * 2 + p) * 4
            g(f"v_cvt_pk_bf16_f32 v{a}, v{a}, v{a+1}")
            g(f"v_cvt_pk_bf16_f32 v{a+1}, v{a+2}, v{a+3}")
    g("s_lshl_b32 s3, s31, 5")
    g(f"s_add_u32 s3, s3, {KVF}")
    g("v_lshl_add_u32 v6, v50, 3, s3")
    g("v_mul_u32_u24 v7, 768, v4")
    g("v_lshl_add_u32 v23, v49, 7, v6")
    g("v_add_u32 v23, v23, v7")
    g("s_mov_b32 s4, 0x00ffff00")
    g("s_mov_b32 s5, 0xff00ff00")
    g("v_mov_b32 v24, 3072")
    g("v_cndmask_b32 v7, v7, v24, s[4:5]")
    g("v_and_b32 v24, 1, v49")
    g("v_add_u32 v24, 4, v24")
    g("s_mov_b32 s5, 0")
    g("v_cndmask_b32 v24, v24, v49, s[4:5]")
    g("v_lshl_add_u32 v24, v24, 7, v6")
    g("v_add_u32 v24, v24, v7")
    g("v_lshl_add_u32 v7, v4, 2, v50")
    g("v_lshlrev_b32 v7, 3, v7")
    g(f"v_add_u32 v7, {KVF}, v7")
    bstamp(1)
    g.force_wait(vm=nlate[0])
    bstamp(2)
    for k in range(4):
        g(f"v_cvt_pk_bf16_f32 v{72+k}, v{64+2*k}, v{65+2*k}")
    g("ds_write_b64 v23, v[72:73]")
    g("ds_write_b64 v24, v[74:75]")
    g.force_wait(lg=0)
    g("s_barrier")
    bstamp(3)
    for T in range(30):
        g(f"ds_read_b64 a[{2*T}:{2*T+1}], v7 offset:{T*128}")
    for t in range(5):
        for t2 in range(6):
            T = t * 6 + t2
            for p in range(2):
                o = 64 + (p * 6 + t2) * 4
                q = 144 + (t * 2 + p) * 4
                cc = "0" if t == 0 else f"v[{o}:{o+3}]"
                g(f"v_mfma_f32_4x4x4_16b_bf16 v[{o}:{o+3}], a[{2*T}:{2*T+1}], v[{q}:{q+1}], {cc}")
    for p in range(2):
        o = 64 + (p * 6 + 5) * 4
        g(f"v_add_f32 v{o}, s53, v{o}")
g.label("L_m2done")
bstamp(4)
for p in range(2):
    o = 64 + (p * 6 + 5) * 4
    g(f"v_rcp_f32 v{o}, v{o}")
for p in range(2):
    dn = 64 + (p * 6 + 5) * 4
    for t in range(5):
        o = 64 + (p * 6 + t) * 4
        for r in range(0, 4, 2):
            g(f"v_pk_mul_f32 v[{o+r}:{o+r+1}], v[{o+r}:{o+r+1}], v[{dn}:{dn+1}] op_sel_hi:[1,0]")
        d = 112 + p * 10 + 2 * t
        g(f"v_cvt_pk_bf16_f32 v{d}, v{o}, v{o+1}")
        g(f"v_cvt_pk_bf16_f32 v{d+1}, v{o+2}, v{o+3}")
g("s_lshr_b32 s3, s30, 1")
g("s_mul_i32 s3, s3, 10240")
g("s_add_u32 s3, s3, s44")
g("s_add_u32 s4, s3, 8192")
g("s_and_b32 s5, s30, 1")
g("s_lshl_b32 s5, s5, 12")
g("s_add_u32 s3, s3, s5")
g("s_lshl_b32 s5, s30, 2")
g("s_add_u32 s5, s5, s49")
g("v_mov_b32 v6, s39")
g("v_mov_b32 v7, 0")
def publish_o(OSC):
    for p in range(2):
        d = 112 + p * 10
        g(f"buffer_store_dwordx4 v[{d}:{d+3}], v46, s[24:27], s3 offen offset:{p*1024} {OSC}", tag='o')
        g(f"buffer_store_dwordx4 v[{d+4}:{d+7}], v46, s[24:27], s3 offen offset:{2048+p*1024} {OSC}", tag='o')
        g(f"buffer_store_dwordx2 v[{d+8}:{d+9}], v47, s[24:27], s4 offen offset:{p*1024} {OSC}", tag='o')
    bstamp(5)
    g.force_wait(vm=0)
    g("s_mov_b64 exec, 1")
    g(f"buffer_store_dword v6, v7, s[24:27], s5 offen {OSC}")
    g("s_mov_b64 exec, -1")
if opt['fo']:
    g("s_cmp_eq_u32 s80, 0")
    br("s_cbranch_scc1 L_slowo")
    with g.extra():
        publish_o('')
        br("s_branch L_pubo")
    g.label("L_slowo")
publish_o('sc1')
g.label("L_pubo")
stamp()
g("s_barrier")
p3 = []
for ks in range(20):
    for t in range(5):
        p3.append((ks, t))
def p3_read(i, half=None):
    ks, t = p3[i]
    j, q = ks // 5, ks % 5
    b = wreg(i)
    if q < 4:
        va = "v28" if j < 2 else "v29"
        imm = (160 * (j & 1) + (0, 8, 80, 88)[q]) * 160 + 8 * t
        d2 = 640
    else:
        va = "v30" if j < 2 else "v31"
        imm = (160 * (j & 1) + 16) * 160 + 8 * t
        d2 = 6400
    if half in (None, 0):
        g(f"ds_read_b64_tr_b16 a[{b}:{b+1}], {va} offset:{imm}")
    if half in (None, 1):
        g(f"ds_read_b64_tr_b16 a[{b+2}:{b+3}], {va} offset:{imm+d2}")
for i in range(D):
    p3_read(i)
if opt['tr']:
    g("v_mul_u32_u24 v6, 6554, v1")
    g("v_add_u32 v7, s79, v46")
    g("s_movk_i32 s3, 4960")
    g("s_mov_b32 s4, 79360")
    for i in range(5):
        if i:
            g(f"v_add_u32 v195, {64*i*6554}, v6")
        g(f"v_lshrrev_b32 v195, 16, {'v195' if i else 'v6'}")
        g(f"v_lshl_add_u32 v{184+i}, v195, 4, v7")
        g(f"v_mad_u32_u24 v{189+i}, v195, s3, v46")
        if i == 2:
            g("v_lshrrev_b32 v195, 4, v195")
            g("v_mul_u32_u24 v195, s4, v195")
            g(f"v_sub_u32 v{189+i}, v{189+i}, v195")
        elif i > 2:
            g(f"v_subrev_u32 v{189+i}, {79360 - (4096 if i == 4 else 0)}, v{189+i}")
    g("v_mul_u32_u24 v194, 176, v3")
    g("v_mul_u32_u24 v195, 40, v4")
    g("v_add3_u32 v194, v194, v195, s79")
g("v_min_u32 v7, 28, v51")
def _ld():
    g("buffer_load_dword v36, v7, s[24:27], s49 offen sc1")
spin_wait(_ld, mid_test, "o")
g.force_wait(vm=0)
stamp()
g("s_mov_b32 s3, s44")
nol = [0]
def o_load():
    k = nol[0]; nol[0] += 1
    g(f"buffer_load_dwordx4 a[{4*k}:{4*k+3}], v46, s[24:27], s3 offen offset:{(k%4)*1024} sc1")
    if k % 4 == 3 and k < 39:
        g("s_add_u32 s3, s3, 4096")
for k in range(opt['oa']):
    o_load()
for i in range(100):
    ks, t = p3[i]
    b = wreg(i)
    for p in range(2):
        acc = 144 + (t * 2 + p) * 4
        c = "0" if ks == 0 else f"v[{acc}:{acc+3}]"
        o = (ks * 2 + p) * 4
        assert ks * 2 + p < nol[0]
        g(f"v_mfma_f32_16x16x32_bf16 v[{acc}:{acc+3}], a[{b}:{b+3}], a[{o}:{o+3}], {c}")
        if i + D < 100:
            if opt['order']:
                p3_read(i + D, p)
            elif p == 0:
                p3_read(i + D)
        if p == 1 and i % opt['og'] == 0 and nol[0] < 40:
            o_load()
stamp()
g("s_mul_i32 s3, s48, 2560")
g("s_mul_i32 s4, s28, 1280")
g("s_add_u32 s3, s3, s4")
g("s_mul_i32 s4, s30, 160")
g("s_add_u32 s3, s3, s4")
for p in range(2 if opt['tr'] else 0):
    for t in range(5):
        a = 144 + (t * 2 + p) * 4
        d = 112 + p * 10 + 2 * t
        g(f"v_cvt_pk_bf16_f32 v{d}, v{a}, v{a+1}")
        g(f"v_cvt_pk_bf16_f32 v{d+1}, v{a+2}, v{a+3}")
        g(f"ds_write_b64 v194, v[{d}:{d+1}] offset:{p*2816+8*t}")
    for i in ((0, 1), (2, 3, 4))[p]:
        g(f"ds_read_b128 v[{64+4*i}:{67+4*i}], v{184+i} offset:{1024*i}")
for i in range(5 if opt['tr'] else 0):
    g(f"buffer_store_dwordx4 v[{64+4*i}:{67+4*i}], v{189+i}, s[20:23], s3 offen offset:{1024*(i&3)}")
for p in range(0 if opt['tr'] else 2):
    for t in range(5):
        a = 144 + (t * 2 + p) * 4
        d = 112 + p * 10 + 2 * t
        g(f"v_cvt_pk_bf16_f32 v{d}, v{a}, v{a+1}")
        g(f"v_cvt_pk_bf16_f32 v{d+1}, v{a+2}, v{a+3}")
    d = 112 + p * 10
    if opt['xo'] == 1:
        continue
    if opt['xo'] == 6:
        if p == 0:
            g("v_mul_u32_u24 v6, 2560, v3")
            g("v_mul_u32_u24 v7, 40, v4")
            g("v_add_u32 v6, v6, v7")
            g("s_add_u32 s3, s44, s4")
        g(f"buffer_store_dwordx4 v[{d}:{d+3}], v6, s[24:27], s3 offen offset:{p*1280}")
        g(f"buffer_store_dwordx4 v[{d+4}:{d+7}], v6, s[24:27], s3 offen offset:{p*1280+16}")
        g(f"buffer_store_dwordx2 v[{d+8}:{d+9}], v6, s[24:27], s3 offen offset:{p*1280+32}")
        continue
    if opt['xo'] in (7, 8):
        if p == 1:
            rs = 2560 if opt['xo'] == 7 else 1280
            g(f"s_movk_i32 s5, {rs-160}")
            if opt['xo'] == 8:
                g("s_add_u32 s3, s44, s4")
            for i in range(5):
                g(f"v_add_u32 v6, {64*i}, v1")
                g("v_mul_u32_u24 v7, 6554, v6")
                g("v_lshrrev_b32 v7, 16, v7")
                g("v_lshlrev_b32 v6, 4, v6")
                g("v_mad_u32_u24 v6, v7, s5, v6")
                g(f"buffer_store_dwordx4 v[{112+4*i}:{115+4*i}], v6, {'s[20:23]' if opt['xo'] == 7 else 's[24:27]'}, s3 offen")
        continue
    OM = {0: '', 2: ' sc1', 3: ' nt', 4: ' sc0 sc1', 5: ' sc1 nt'}[opt['xo']]
    g(f"buffer_store_dwordx4 v[{d}:{d+3}], v48, s[20:23], s3 offen offset:{p*2560}{OM}")
    g(f"buffer_store_dwordx4 v[{d+4}:{d+7}], v48, s[20:23], s3 offen offset:{p*2560+16}{OM}")
    g(f"buffer_store_dwordx2 v[{d+8}:{d+9}], v48, s[20:23], s3 offen offset:{p*2560+32}{OM}")
if opt['prof']:
    g.force_wait(vm=0)
    stamp()
    g("s_memrealtime s[88:89]")
    g.wait_lg(0)
    g("v_writelane_b32 v5, s92, 62")
    g("v_writelane_b32 v5, s88, 63")
    g("s_lshl_b32 s3, s2, 2")
    g("s_add_u32 s3, s3, s31")
    g("s_lshl_b32 s3, s3, 8")
    g(f"s_add_u32 s3, s3, {WS_P}")
    g("buffer_store_dword v5, v51, s[24:27], s3 offen")
g.label("L_end")
g("s_endpgm")
g.raw(f""".section .rodata,"a"
.p2align 6
.amdhsa_kernel {NAME}
  .amdhsa_next_free_vgpr 512
  .amdhsa_next_free_sgpr 102
  .amdhsa_accum_offset 256
  .amdhsa_group_segment_fixed_size 0
  .amdhsa_kernarg_size 72
  .amdhsa_user_sgpr_count 2
  .amdhsa_user_sgpr_kernarg_segment_ptr 1
  .amdhsa_system_sgpr_workgroup_id_x 1
.end_amdhsa_kernel""")
sys.stdout.write(g.text())
sys.stderr.write(f"bytes~{g.nbytes} stats={g.stats}\n")
```

```python
import sys
from asmgen import Asm

opt = dict(dist=6, nbuf=8, dmagap=2, barf=14, prof=0, fst=11, cf=4, brx=1, t5=1, tq=-1, qd=0, two=1,
           order=1, early=0, pst=13, pf=8, cf2=6, ff=14, nb=0, pts=11, ptf=16, ptn=1, ptd=20, po=0, fo=1, xst=12, pa=0, dg=0, wat=1234, lw=0, rot=1, tl=0, t0=0, tmax=14, te=1, sch=3034, qa=5, qn=1, oa=6, og=2, xo=0, tr=1, pb=2, ob=1, own=1, li=84, pi=95, nx=1)
for a in sys.argv[1:]:
    k, v = a.split('=')
    opt[k] = int(v)

NAME = "concat_heads__sliding_local_dilated__linear_attn_block__prompt_kernel"
SLOT = 20544
XBASE = 5 * SLOT
KVB = XBASE
HS = 5768
SECS = 4 * HS
RS = 10304
KVF = XBASE + 4 * RS
WS_O, WS_H, WS_K, WS_F, WS_P = 0, 0x500000, 0x600000, 0x700000, 0x800000
SPIN = 1 << 14
LOG2E = 0x3FB8AA3B
SCL = 0x3EA52B5C
EPS = 0x358637BD
NEG = 0xF149F2CA

g = Asm()
def br(text):
    g.flush_hazards()
    g(text)
g.raw("; @launch grid=(256,1,1) block=(256,1,1) lds=163840")
g.raw('.amdgcn_target "amdgcn-amd-amdhsa--gfx950"')
g.raw(f".text\n.globl {NAME}\n.p2align 8\n.type {NAME},@function\n{NAME}:")

nstamp = [0]
lst = []
def lstamp():
    if opt['prof'] > 2:
        r = 100 - 2 * len(lst)
        lst.append(r)
        g.raw(f"  s_memtime s[{r}:{r+1}]")
def lflush():
    if opt['prof'] > 2:
        g.raw("  s_waitcnt lgkmcnt(0)")
        for r in lst:
            k = nstamp[0]; nstamp[0] += 1
            g(f"s_sub_u32 s88, s{r}, s90")
            g(f"v_writelane_b32 v5, s88, {k}")
def stamp():
    if opt['prof']:
        k = nstamp[0]; nstamp[0] += 1
        g("s_memtime s[88:89]")
        g.wait_lg(0)
        g("s_sub_u32 s88, s88, s90")
        g(f"v_writelane_b32 v5, s88, {k}")
def bstamp(k):
    if opt['prof'] > 3:
        g("s_memtime s[88:89]")
        g.wait_lg(0)
        g("s_sub_u32 s88, s88, s90")
        g(f"v_writelane_b32 v5, s88, {32+k}")
def tload(text):
    g(text)
    g.vm[-1] = (None, set())
    nv[0] += 1
def setexec(lo, hi):
    m = ((1 << hi) - 1) & ~((1 << lo) - 1)
    g(f"s_mov_b32 exec_lo, 0x{m & 0xffffffff:x}")
    g(f"s_mov_b32 exec_hi, 0x{m >> 32:x}")
nv = [0]

if opt['prof']:
    g("s_memrealtime s[92:93]")
    g("s_memtime s[90:91]")
g("s_cmp_ge_u32 s2, 256")
br("s_cbranch_scc1 L_end")
g("s_bfe_u32 s28, s2, 0x10002")
if opt['brx']:
    g("s_xor_b32 s28, s28, 1")
g("s_mul_i32 s5, s28, 24")
g("s_add_u32 s6, s0, s5")
g("s_addc_u32 s7, s1, 0")
g("s_load_dwordx2 s[8:9], s[6:7], 0")
g("s_load_dwordx2 s[12:13], s[6:7], 8")
g("s_load_dwordx2 s[16:17], s[6:7], 16")
g("s_load_dwordx2 s[20:21], s[0:1], 48")
g("s_load_dwordx2 s[40:41], s[0:1], 56")
g("s_load_dwordx2 s[24:25], s[0:1], 64")
g("s_getpc_b64 s[86:87]")
g.raw("L_pc0:")
g("s_bfe_u32 s30, s2, 0x30003")
g("s_lshl_b32 s3, s30, 12")
g("v_lshlrev_b32 v6, 4, v0")
g("v_add_u32 v6, s3, v6")
g("v_min_u32 v6, L_end-L_pc0-16, v6")
tload("global_load_dwordx4 v[60:63], v6, s[86:87]")
g("v_and_b32 v1, 63, v0")
g("v_lshrrev_b32 v2, 6, v0")
g("s_and_b32 s3, s2, 3")
g("v_readfirstlane_b32 s31, v2")
g("s_lshl_b32 s3, s3, 2")
g("s_lshr_b32 s78, s2, 6")
g("s_add_u32 s29, s3, s78")
if opt['rot'] == 1:
    g("s_add_u32 s3, s30, s78")
elif opt['rot'] == 0:
    g("s_mov_b32 s3, 0")
elif opt['rot'] == 2:
    g("s_mov_b32 s3, s78")
elif opt['rot'] == 3:
    g("s_mov_b32 s3, s30")
elif opt['rot'] == 4:
    g("s_add_u32 s3, s30, s78")
    g("s_and_b32 s3, s3, 1")
g("s_lshl_b32 s3, s3, 2")
g("s_mov_b32 s84, 0x21043210")
g("s_mov_b32 s85, 0x04321043")
g("s_lshr_b64 s[84:85], s[84:85], s3")
def T_kv(lo, n):
    assert n <= 6
    g(f"s_mov_b32 s3, {lo*64*3840}")
    setexec(0, 10 * n)
    tload("buffer_load_dword v32, v57, s[12:15], s3 offen")
    setexec(0, 4 * n)
    tload(f"buffer_load_dword v32, v58, s[8:11], 0 offen offset:{128*lo}")
    g("s_mov_b64 exec, -1")
def T_q(lo, n):
    setexec(10 * lo, 10 * (lo + n))
    tload("buffer_load_dword v32, v34, s[12:15], 0 offen")
    g("s_mov_b64 exec, -1")
tsch = {}
if opt['tl']:
    nxt = 0 if opt['t0'] else 1
    for k, c in enumerate(str(opt['sch'])):
        n = min(int(c), 10 - nxt)
        if n:
            tsch.setdefault(k, []).append(lambda lo=nxt, n=n: T_kv(lo, n))
        nxt += n
    assert nxt == 10
    for b in range(0, 5, opt['qn']):
        tsch.setdefault(opt['qa'] + b // opt['qn'], []).append(lambda b=b: T_q(b, min(opt['qn'], 5 - b)))
    g("s_lshr_b32 s3, s2, 3")
    g("s_lshl_b32 s3, s3, 2")
    g("s_add_u32 s3, s3, s31")
    g("v_mul_u32_u24 v6, 6554, v1")
    g("s_lshr_b32 s4, s3, 1")
    g("s_mul_i32 s4, s4, 3840")
    g("v_lshrrev_b32 v6, 16, v6")
    g("s_and_b32 s5, s3, 1")
    g("s_mul_i32 s5, s5, 1280")
    g("s_add_u32 s4, s4, s5")
    g("s_add_u32 s4, s4, 1280")
    g("v_lshl_add_u32 v57, v1, 7, s4")
    g(f"s_mov_b32 s5, {64*3840-1280}")
    g("v_mad_u32_u24 v57, v6, s5, v57")
    g("s_and_b32 s4, s2, 3")
    g("s_lshl_b32 s4, s4, 7")
    g("s_add_u32 s4, s4, s3")
    g("s_mul_i32 s4, s4, 5120")
    g("v_and_b32 v7, 3, v1")
    g("v_mul_u32_u24 v7, 1248, v7")
    g("v_lshl_add_u32 v58, v1, 5, v7")
    g("v_add_u32 v58, s4, v58")
    g("s_mov_b32 s10, 2621440")
    g("s_mov_b32 s11, 0x00020000")
    g("s_mov_b32 s14, 2457600")
    g("s_mov_b32 s15, 0x00020000")
    g("s_mul_i32 s4, s3, 3840")
    g("v_lshl_add_u32 v34, v1, 7, s4")
    g(f"s_mov_b32 s5, {128*3840-1280}")
    g("v_mad_u32_u24 v34, v6, s5, v34")
    g.wait_lg(0)
    for f in tsch.pop(0, []):
        f()
g("v_bfe_u32 v4, v0, 4, 2")
g("v_lshrrev_b32 v6, 3, v1")
g("v_mul_u32_u24 v6, 2560, v6")
g("v_and_b32 v7, 7, v1")
g("v_and_b32 v23, 1, v4")
g("v_xor_b32 v7, v7, v23")
g("v_lshl_add_u32 v40, v7, 4, v6")
g("v_add_u32 v41, 256, v40")
g("v_xor_b32 v7, 4, v7")
g("v_lshl_add_u32 v42, v7, 4, v6")
g(f"v_add_u32 v42, {16*1280-2048}, v42")
g("v_add_u32 v43, 256, v42")
g("s_lshl_b32 s3, s29, 7")
g("s_lshl_b32 s4, s31, 5")
g("s_add_u32 s48, s3, s4")
g("s_mul_i32 s32, s48, 1280")
g("s_and_b32 s3, s84, 7")
g("s_lshl_b32 s58, s3, 8")
g("s_add_u32 s58, s58, s32")
g("s_mul_i32 s79, s31, 12288")
g(f"s_add_u32 s79, s79, {XBASE}")
g("s_mov_b32 m0, s79")
g("s_mov_b32 s10, 2621440")
g("s_mov_b32 s11, 0x00020000")
g("s_mov_b32 s14, 2457600")
g("s_mov_b32 s15, 0x00020000")
g("v_mul_u32_u24 v24, 6554, v1")
g("v_lshlrev_b32 v46, 4, v1")
g("v_add_u32 v25, 1280, v46")
g("s_movk_i32 s4, 1120")
g("s_movk_i32 s5, 1280")
def wvoff(i):
    if i:
        g(f"v_add_u32 v6, {64*i*6554}, v24")
    src = "v6" if i else "v24"
    g(f"v_lshrrev_b32 v{52+i}, 16, {src}")
    g(f"v_lshrrev_b32 v7, 17, {src}")
    g(f"v_mad_u32_u24 v{8+i}, v{52+i}, s4, v25")
    g(f"v_mad_u32_u24 v{8+i}, v7, s5, v{8+i}")
    if i == 4:
        g(f"v_add_u32 v{8+i}, 4096, v{8+i}")
for i in range(5):
    wvoff(i)
g("s_mul_i32 s4, s30, 160")
g("s_mul_i32 s5, s31, 61440")
g("s_add_u32 s34, s5, s4")
g("s_mul_i32 s68, s3, 491520")
g("s_add_u32 s68, s68, s34")
g("s_add_u32 s5, s31, 1")
g("s_lshr_b32 s5, s5, 1")
g("s_lshl_b32 s5, s5, 5")
g("s_mul_i32 s45, s31, 5120")
g("s_add_u32 s36, s5, s45")
lstamp()
g.wait_lg(0)
lstamp()

cur_m0 = ["s79+0"]
def setm0(key):
    if cur_m0[0] != key:
        r, off = key.split('+')
        if int(off):
            g(f"s_add_u32 m0, {r}, {off}")
        else:
            g(f"s_mov_b32 m0, {r}")
        cur_m0[0] = key

class Op:
    def __init__(self, tag, m0, fn):
        self.tag, self.m0, self.fn = tag, m0, fn
queue = []
def pop():
    op = queue.pop(0)
    if op.m0:
        setm0(op.m0)
    op.fn()
    for o in queue[:1]:
        if o.m0:
            setm0(o.m0)
def enqueue(ops):
    was = bool(queue)
    queue.extend(ops)
    if not was and queue and queue[0].m0:
        setm0(queue[0].m0)

def t_ops(st):
    return [Op(None, None, f) for f in tsch.pop(st, [])]
def dma_ops(st):
    sl = st % 5
    ops = []
    ops += t_ops(st)
    for i in range(5):
        off = 1024 * (i & 3)
        hi = 4096 if i == 4 else 0
        if st < 10:
            txt = f"buffer_load_dwordx4 v{8+i}, s[12:15], s{68+st} offen offset:{off} lds"
            m0 = f"s36+{sl*SLOT+hi}"
        elif st < 15:
            txt = f"buffer_load_dwordx4 v{13+i}, s[12:15], s{68+2*(st-10)} offen offset:{off} lds"
            m0 = f"s36+{sl*SLOT+hi}"
        else:
            uu = st - 15
            txt = f"buffer_load_dwordx4 v{18+i}, s[16:19], s37 offen offset:{off} lds"
            m0 = f"s45+{uu*20480+hi}"
        def fn(txt=txt, i=i, st=st):
            if st >= 15 and i == 0:
                g(f"s_add_u32 s37, s35, {(st-15)*128*1280}")
            g(txt, tag=('w', st))
            nv[0] += 1
        ops.append(Op(('w', st), m0, fn))
    return ops

def xreg(B, s, p):
    b = ((B * 2 + s) * 2 + p) * 4
    return f"a[{b}:{b+3}]"
def xregs(B):
    return {('a', i) for i in range(B * 16, B * 16 + 16)}
def x_ops(B):
    ops = []
    for i in range(4):
        def fn(i=i):
            if i == 0 and B >= 3:
                g._auto_wait(xregs(B - 3))
            g(f"buffer_load_dwordx4 v{40+i}, s[8:11], s{58+B} offen offset:{1024*i} lds", tag=('x', B))
            nv[0] += 1
        ops.append(Op(('x', B), f"s79+{(B%3)*4096}", fn))
    return ops
def x_read(B):
    for s in range(2):
        for p in range(2):
            g(f"ds_read_b128 {xreg(B,s,p)}, v{44+s} offset:{(B%3)*4096+1024*p}")

enqueue(x_ops(0) + dma_ops(0))
while queue:
    pop()
lstamp()
for base, n in ((16, 819200), (20, 5242880), (24, 1 << 24), (40, 256)):
    g(f"s_mov_b32 s{base+2}, {n}")
    g(f"s_mov_b32 s{base+3}, 0x00020000")
g("s_or_b32 s3, s2, s31")
g("s_cmp_lg_u32 s3, 0")
br("s_cbranch_scc1 L_notag")
with g.extra():
    g("s_memrealtime s[4:5]")
    g.wait_lg(0)
    g("s_lshl_b32 s4, s4, 6")
    g("s_or_b32 s4, s4, 1")
    g("v_mov_b32 v6, s4")
    g("v_mov_b32 v7, 0")
    g("s_mov_b64 exec, 1")
    g("buffer_store_dword v6, v7, s[40:43], 0 offen sc1")
    g("s_mov_b64 exec, -1")
g.label("L_notag")
g("s_add_u32 s59, s58, 128")
g(f"s_add_u32 s69, s68, {64*3840}")
for u in range(1, 5):
    g(f"s_bfe_u32 s3, s84, 0x{(3<<16)|(4*u):x}")
    g(f"s_lshl_b32 s{58+2*u}, s3, 8")
    g(f"s_add_u32 s{58+2*u}, s{58+2*u}, s32")
    g(f"s_add_u32 s{59+2*u}, s{58+2*u}, 128")
    g(f"s_mul_i32 s{68+2*u}, s3, 491520")
    g(f"s_add_u32 s{68+2*u}, s{68+2*u}, s34")
    g(f"s_add_u32 s{69+2*u}, s{68+2*u}, {64*3840}")
g("v_and_b32 v3, 15, v0")
g("v_bfe_u32 v49, v0, 2, 2")
g("v_and_b32 v50, 3, v0")
g("v_mul_u32_u24 v6, 320, v49")
g("v_mul_u32_u24 v7, 5120, v4")
g("v_add_u32 v6, v6, v7")
g("v_add_u32 v7, 1, v4")
g("v_lshrrev_b32 v7, 1, v7")
g("v_lshl_add_u32 v6, v7, 5, v6")
g("v_mul_u32_u24 v7, 40, v50")
g("v_add_u32 v26, v6, v7")
g(f"v_add_u32 v27, {3*SLOT}, v26")
g("s_cmp_eq_u32 s28, 0")
g("s_cselect_b32 s3, 40, 8")
g("s_cselect_b32 s4, 8, 40")
g("v_mad_u32_u24 v184, v50, s3, v6")
for t in range(1, 4):
    g(f"v_add_u32 v{184+2*t}, s4, v{182+2*t}")
g("v_add_u32 v192, 32, v26")
for t in range(5):
    g(f"v_add_u32 v{185+2*t}, {3*SLOT}, v{184+2*t}")
g("v_lshrrev_b32 v6, 3, v3")
g("v_lshlrev_b32 v6, 4, v6")
g("v_and_b32 v7, 7, v3")
g("v_add_u32 v6, v6, v7")
g("v_lshlrev_b32 v6, 7, v6")
g("v_lshrrev_b32 v7, 1, v3")
g("v_and_b32 v7, 5, v7")
g("v_lshlrev_b32 v23, 1, v4")
g("v_xor_b32 v7, v7, v23")
g("v_lshl_add_u32 v6, v7, 4, v6")
g("v_add_u32 v44, s79, v6")
g("v_xor_b32 v45, 16, v44")
g("s_lshl_b32 s54, s30, 13")
g("s_lshl_b32 s3, s31, 11")
g("s_add_u32 s54, s54, s3")
g(f"s_add_u32 s54, s54, {WS_K}")
g("s_lshl_b32 s55, s30, 7")
g("s_lshl_b32 s3, s31, 2")
g("s_add_u32 s55, s55, s3")
g(f"s_add_u32 s55, s55, {WS_F+0xA000}")
g("s_xor_b32 s3, s28, 1")
g("s_or_b32 s56, s3, s29")
g("v_lshlrev_b32 v51, 2, v1")
g("s_cmp_lg_u32 s56, 0")
br("s_cbranch_scc1 L_nozero")
with g.extra():
    for r in range(4):
        g(f"v_mov_b32 v{64+r}, 0")
    for k in range(2):
        g(f"buffer_store_dwordx4 v[64:67], v46, s[24:27], s54 offen offset:{k*1024} sc1")
g.label("L_nozero")
g("s_movk_i32 s4, 1120")
g(f"s_mov_b32 s5, {64*3840-160}")
g(f"s_mov_b32 s6, {128*3840-3840}")
for i in range(5):
    g(f"v_mad_u32_u24 v{18+i}, v{52+i}, s4, v46")
    g(f"v_mad_u32_u24 v{13+i}, v{52+i}, s5, v46")
    g(f"v_lshrrev_b32 v7, 1, v{52+i}")
    g(f"v_mul_u32_u24 v7, s6, v7")
    g(f"v_sub_u32 v{13+i}, v{13+i}, v7")
g("v_add_u32 v17, 4096, v17")
g("v_add_u32 v22, 4096, v22")
g("s_mul_i32 s5, s31, 40960")
g("s_mul_i32 s4, s30, 160")
g("s_add_u32 s35, s5, s4")
g("s_lshr_b32 s3, s2, 3")
g("s_lshl_b32 s3, s3, 2")
g("s_add_u32 s3, s3, s31")
g("v_mul_u32_u24 v7, 10, v52")
g("v_sub_u32 v7, v1, v7")
g("v_lshlrev_b32 v7, 7, v7")
g("v_lshl_add_u32 v6, v52, 7, s3")
g("v_mul_u32_u24 v35, 1280, v6")
g("v_add_u32 v35, v35, v7")
g("s_add_u32 s3, s30, 4")
g("s_lshl_b32 s3, s3, 2")
g("s_mov_b32 s6, 0x21043210")
g("s_mov_b32 s7, 0x04321043")
g("s_lshr_b64 s[6:7], s[6:7], s3")
g("s_and_b32 s3, s6, 7")
g("s_lshl_b32 s3, s3, 2")
g("s_add_u32 s3, s3, s78")
g("s_lshl_b32 s3, s3, 2")
g("s_add_u32 s3, s3, s31")
g(f"s_mul_i32 s3, s3, {8*3840}")
g("s_add_u32 s3, s3, s4")
g("s_add_u32 s3, s3, 1280")
g("v_lshrrev_b32 v6, 2, v1")
g("v_mul_u32_u24 v6, 3840, v6")
g("v_bfe_u32 v7, v1, 1, 1")
g("v_mul_u32_u24 v7, 1280, v7")
g("v_and_b32 v23, 1, v1")
g("v_mul_u32_u24 v23, 156, v23")
g("v_add3_u32 v6, v6, v7, v23")
if not opt['tl']:
    g("v_add_u32 v58, s3, v6")
def ptouch(lo=0, hi=41):
    setexec(0, 40)
    tload("buffer_load_dword v32, v252, s[8:11], s44 offen sc1")
    g("s_mov_b64 exec, 1")
    tload("buffer_load_dword v32, v51, s[24:27], s49 offen sc1")
    g("s_mov_b64 exec, -1")
def otouch():
    g("s_mul_i32 s88, s48, 2560")
    g("s_mul_i32 s89, s28, 1280")
    g("s_add_u32 s88, s88, s89")
    g("s_mul_i32 s89, s30, 160")
    g("s_add_u32 s88, s88, s89")
    g("v_lshrrev_b32 v254, 1, v1")
    g("v_mul_u32_u24 v254, 2560, v254")
    g("v_and_b32 v255, 1, v1")
    g("v_mul_u32_u24 v255, 156, v255")
    g("v_add_u32 v254, v254, v255")
    tload("buffer_load_dword v32, v254, s[20:23], s88 offen")
def ptouchA():
    g("s_cmp_eq_u32 s28, 1")
    br("s_cbranch_scc1 L_npt")
    with g.extra():
        ptouch()
        nv[0] -= 1
    g.label("L_npt")
def m2touch(b=0):
    if b == 0 or opt['pb'] == b:
        ptouch()
    if opt['po'] == 4:
        otouch()
def touch(va, base, n):
    setexec(0, n)
    tload(f"global_load_dword v32, {va}, {base}")
    g("s_mov_b64 exec, -1")
g("v_mul_u32_u24 v6, 160, v49")
g("v_mul_u32_u24 v7, 40, v50")
g("v_add_u32 v6, v6, v7")
g("v_mul_u32_u24 v7, 3200, v4")
g("v_add_u32 v28, v6, v7")
g("v_add_u32 v29, 51200, v28")
g("v_lshrrev_b32 v7, 1, v4")
g("v_mul_u32_u24 v7, 12800, v7")
g("v_add_u32 v6, v6, v7")
g("v_and_b32 v7, 1, v4")
g("v_mul_u32_u24 v7, 3200, v7")
g("v_add_u32 v30, v6, v7")
g("v_add_u32 v31, 51200, v30")
g("s_and_b32 s3, s30, 1")
g("s_mul_i32 s3, s3, 5120")
g("s_add_u32 s3, s3, 1024")
g("v_and_b32 v6, 1, v4")
g("v_mul_u32_u24 v6, 2560, v6")
g("v_lshl_add_u32 v6, v3, 4, v6")
g("v_lshrrev_b32 v7, 1, v4")
g("v_lshl_add_u32 v6, v7, 3, v6")
g("v_add_u32 v47, s3, v6")
g("v_mul_u32_u24 v6, 5120, v3")
g("v_mul_u32_u24 v7, 40, v4")
g("v_add_u32 v48, v6, v7")
g("s_lshl_b32 s3, s31, 5")
g(f"s_add_u32 s3, s3, {KVB}")
g(f"v_mul_u32_u24 v6, {HS}, v49")
g("v_mul_u32_u24 v7, 288, v50")
g("v_add_u32 v6, v6, v7")
g("v_lshl_add_u32 v6, v4, 3, v6")
g("v_add_u32 v37, s3, v6")
g("v_add_u32 v37, 16, v37")
g(f"v_mul_u32_u24 v23, {HS}, v4")
g("v_mul_u32_u24 v6, 288, v49")
g("v_add_u32 v6, v6, v23")
g("v_lshl_add_u32 v6, v50, 3, v6")
g("v_add_u32 v38, s3, v6")
g("v_add_u32 v6, v7, v23")
g("v_lshl_add_u32 v6, v49, 3, v6")
g("v_add_u32 v39, s3, v6")
g(f"v_add_u32 v39, {SECS}, v39")
g("s_lshl_b32 s3, s28, 4")
g("s_add_u32 s3, s3, s29")
g("s_lshl_b32 s3, s3, 2")
g("s_add_u32 s3, s3, s31")
g("s_mul_i32 s44, s48, 2560")
g("s_mul_i32 s4, s28, 1280")
g("s_add_u32 s44, s44, s4")
g("s_lshl_b32 s49, s3, 7")
g(f"s_add_u32 s49, s49, {WS_F}")
g("s_lshr_b32 s33, s3, 2")
g("s_lshl_b32 s33, s33, 7")
g(f"s_add_u32 s33, s33, {WS_F+0xC000}")
g("s_getreg_b32 s38, hwreg(HW_REG_XCC_ID, 0, 4)")
g("s_lshl_b32 s38, s38, 1")
g("s_mul_i32 s4, s30, 10240")
g("v_lshrrev_b32 v6, 3, v1")
g("v_mul_u32_u24 v6, 1536, v6")
g("v_lshl_add_u32 v6, v1, 7, v6")
g("v_add_u32 v252, s4, v6")
g("s_lshr_b32 s3, s30, 1")
g("s_mul_i32 s3, s3, 20480")
g("s_and_b32 s5, s30, 1")
g("s_mul_i32 s5, s5, 5120")
g("s_add_u32 s5, s5, s3")
g("s_add_u32 s5, s5, 1024")
g("v_and_b32 v6, 4, v1")
g("v_mul_u32_u24 v6, 2560, v6")
g("v_and_b32 v7, 2, v1")
g("v_mul_u32_u24 v7, 1280, v7")
g("v_add3_u32 v6, v6, v7, s5")
g("v_and_b32 v7, 1, v1")
g("v_lshl_add_u32 v6, v7, 7, v6")
g("v_cmp_gt_u32 vcc, 32, v1")
g("v_cndmask_b32 v252, v6, v252, vcc")
g("s_lshl_b32 s3, s29, 3")
g("s_add_u32 s3, s3, s30")
g("s_lshl_b32 s4, s3, 7")
g(f"s_add_u32 s4, s4, {WS_F+0x4000}")
g("s_mul_i32 s50, s3, 5120")
g(f"s_add_u32 s50, s50, {WS_H}")
g("s_lshl_b32 s5, s30, 8")
g("s_lshl_b32 s6, s31, 6")
g("s_add_u32 s5, s5, s6")
g(f"s_add_u32 s5, s5, {WS_F+0x8000}")
g("s_lshl_b32 s6, s29, 2")
g("s_add_u32 s6, s6, s5")
g("s_sub_u32 s3, s4, 1024")
g("s_cmp_eq_u32 s28, 0")
g("s_cselect_b32 s47, s4, s6")
g("s_cselect_b32 s57, s3, s5")
g("v_lshlrev_b32 v25, 2, v3")
g("v_mul_u32_u24 v25, s28, v25")
g("s_cmp_eq_u32 s31, 3")
g("s_cselect_b32 s51, 1, 0")
g("s_or_b32 s51, s51, s28")
g("s_cmp_eq_u32 s31, 0")
g("s_cselect_b32 s81, 1, 0")
g("s_cmp_lg_u32 s29, 0")
g("s_cselect_b32 s81, s81, 0")
g("s_or_b32 s81, s81, s28")
g(f"s_mov_b32 s52, 0x{LOG2E:08x}")
g(f"s_mov_b32 s53, 0x{EPS:08x}")
g("s_mov_b32 s82, s52")
g("s_mov_b32 s83, s52")
g("s_mov_b32 s86, s53")
g("s_mov_b32 s87, s53")
lstamp()
enqueue(t_ops(1) + x_ops(1) + dma_ops(1))
while queue:
    pop()
if opt['t5']:
    touch("v58", "s[12:13]", 32)
if opt['pts'] == 98:
    ptouch()
enqueue(t_ops(2) + x_ops(2) + dma_ops(2) + dma_ops(3) + dma_ops(4))

frags = []
for st in range(15):
    for f in range(20):
        if st < 10:
            s, sec, t = f // 10, (f // 5) % 2, f % 5
            B = st
        else:
            sec, s, t = f // 10, (f // 5) % 2, f % 5
            B = 2 * (st - 10) + sec
        frags.append((st, f, s, sec, t, B))

NB = opt['nbuf']
def wreg(i):
    return 160 + 4 * (i % NB)

def issue_read(i, half=None):
    st, f, s, sec, t, B = frags[i]
    sl = st % 5
    imm = (sl % 3) * SLOT + s * 2560 + sec * 160
    if st < 10:
        va = f"v{184 + 2*t + (sl >= 3)}"
    else:
        va = "v26" if sl < 3 else "v27"
        imm += 8 * t
    b = wreg(i)
    if half in (None, 0):
        g(f"ds_read_b64_tr_b16 a[{b}:{b+1}], {va} offset:{imm}")
    if half in (None, 1):
        g(f"ds_read_b64_tr_b16 a[{b+2}:{b+3}], {va} offset:{imm+1280}")

D = opt['dist']
first = {}
def need(tag):
    while any(o.tag == tag for o in queue):
        pop()
    g.wait_tag(tag)

mark = [0]
lab = [0]
def spin_wait(load, test, what):
    n = lab[0]; lab[0] += 1
    g(f"s_mov_b32 s46, {SPIN}")
    g.label(f"L_spin{n}")
    with g.extra():
        load()
        g.force_wait(vm=0)
        test()
        br(f"s_cbranch_scc1 L_spun{n}")
        g("s_sleep 1")
        g("s_sub_u32 s46, s46, 1")
        g("s_cmp_lg_u32 s46, 0")
        br(f"s_cbranch_scc1 L_spin{n}")
    g.label(f"L_spun{n}")

def mid_test():
    g("v_cmp_eq_u32 vcc, s39, v36")
    g("s_cmp_eq_u64 vcc, -1")
def mid_loads(lbl):
    g("s_cmp_eq_u32 s28, 1")
    br(f"s_cbranch_scc1 L_mlb{lbl}")
    g("s_sub_u32 s3, s50, 40960")
    g("s_add_u32 s4, s3, 2560")
    g("v_subrev_u32 v6, 512, v46")
    g("s_mov_b32 exec_lo, 0")
    g.flush_hazards()
    for idx in range(10):
        d = 64 + idx * 4
        g.raw(f"  buffer_load_dwordx4 v[{d}:{d+3}], v6, s[24:27], {'s3' if idx < 5 else 's4'} offen offset:{(idx%5)*512} sc1")
    g("s_mov_b32 exec_lo, -1")
    br(f"s_branch L_mld{lbl}")
    g.label(f"L_mlb{lbl}")
    for k in range(8):
        g.raw(f"  buffer_load_dword v{64+k}, v51, s[24:27], s54 offen offset:{k*256} sc1")
    g.label(f"L_mld{lbl}")
    g("s_mov_b32 s81, 0")

def publish_mid():
    g.force_wait(vm=min(63, min(len(g.vm), nv[0] - mark[0])))
    g("s_cmp_eq_u32 s51, 0")
    br("s_cbranch_scc1 L_nof1")
    with g.extra():
        g("v_mov_b32 v6, s39")
        g("v_mov_b32 v7, 0")
        g("s_mov_b64 exec, 1")
        g("buffer_store_dword v6, v7, s[24:27], s47 offen sc1")
        g("s_mov_b64 exec, -1")
    g.label("L_nof1")

def run_phase(lo, hi, sid):
    st0 = frags[lo][0]
    if sid == 0:
        lflush()
        stamp()
    need(('w', st0))
    if sid == 0:
        need(('x', 0))
        x_read(0)
        enqueue(x_ops(3))
    g("s_barrier")
    stamp()
    for i in range(lo, lo + D):
        issue_read(i)
    for i in range(lo, hi):
        st, f, s, sec, t, B = frags[i]
        last = (i + 20 - f) >= hi
        if f == opt['barf']:
            if not last:
                need(('w', st + 1))
                if sid == 0:
                    need(('x', st + 1))
            if st == 4:
                g("v_readfirstlane_b32 s39, v36")
                g("s_cmp_lg_u32 s39, 0")
                br("s_cbranch_scc1 L_havetag")
                def _ld():
                    g("v_mov_b32 v7, 0")
                    g("buffer_load_dword v36, v7, s[40:43], 0 offen sc1")
                def _tst():
                    g("v_readfirstlane_b32 s39, v36")
                    g("s_cmp_lg_u32 s39, 0")
                spin_wait(_ld, _tst, "tag")
                g.label("L_havetag")
                g("s_cmp_lg_u32 s56, 0")
                br("s_cbranch_scc1 L_nozf")
                with g.extra():
                    g("v_mov_b32 v6, s39")
                    g("v_mov_b32 v7, 0")
                    g("s_mov_b64 exec, 1")
                    g("buffer_store_dword v6, v7, s[24:27], s55 offen sc1")
                    g("s_mov_b64 exec, -1")
                g.label("L_nozf")
                g("s_or_b32 s38, s38, s39")
                g("s_cmp_lg_u32 s31, 0")
                br("s_cbranch_scc1 L_noxg")
                with g.extra():
                    g("s_lshl_b32 s3, s30, 2")
                    g("v_mov_b32 v6, s38")
                    g("v_mov_b32 v7, s3")
                    g("s_mov_b64 exec, 1")
                    g("buffer_store_dword v6, v7, s[24:27], s33 offen sc1")
                    g("s_mov_b64 exec, -1")
                g.label("L_noxg")
            if st == opt['fst'] and opt['ff'] == opt['barf']:
                publish_mid()
            g("s_barrier")
            if opt['prof'] > 1:
                stamp()
            if sid == 0 and not last:
                x_read(st + 1)
            if st == 1:
                g("v_mov_b32 v7, 0")
                g("buffer_load_dword v36, v7, s[40:43], 0 offen sc1")
                nv[0] += 1
            if st == 8:
                g("v_mov_b32 v7, 0")
                g("buffer_load_dword v36, v7, s[24:27], s55 offen sc1")
                nv[0] += 1
            for s2 in range(5, 19):
                at = s2 - 4
                if 10 <= s2 <= 13:
                    at = max(at, opt['qd'])
                if s2 >= 15:
                    at = 10 + (opt['wat'] // 10 ** (18 - s2)) % 10
                if at == st:
                    enqueue(dma_ops(s2))
            if sid == 0 and st + 4 < 10:
                enqueue(x_ops(st + 4))
        for k in range(opt['ptn']):
            if i == opt['pts'] * 20 + opt['ptf'] + k * opt['ptd']:
                pass
        if st == opt['xst'] and f == 2:
            g("v_min_u32 v7, 28, v51")
            g("buffer_load_dword v33, v7, s[24:27], s33 offen sc1")
            nv[0] += 1
        if st == opt['fst'] and f == opt['ff'] and f != opt['barf']:
            publish_mid()
        if opt['early']:
            if st == opt['pst'] and f == opt['pf']:
                g("buffer_load_dword v36, v25, s[24:27], s57 offen sc1")
                nv[0] += 1
            if st == 14 and f == opt['cf2']:
                mid_test()
                g("s_cselect_b32 s3, s81, 0")
                g("s_cmp_eq_u32 s3, 0")
                br("s_cbranch_scc1 L_noearly")
                mid_loads(0)
                g.label("L_noearly")
        elif st == 14 and f == opt['cf']:
            g("buffer_load_dword v36, v25, s[24:27], s57 offen sc1")
            nv[0] += 1
        b = wreg(i)
        for p in range(2):
            if st < 10:
                acc = 64 + ((sec * 5 + t) * 2 + p) * 4
            else:
                acc = 144 + (t * 2 + p) * 4
            key = (sid, acc)
            c = f"v[{acc}:{acc+3}]" if key in first else "0"
            first[key] = 1
            if st < 10:
                g(f"v_mfma_f32_16x16x32_bf16 v[{acc}:{acc+3}], {xreg(B,s,p)}, a[{b}:{b+3}], {c}")
            else:
                g(f"v_mfma_f32_16x16x32_bf16 v[{acc}:{acc+3}], a[{b}:{b+3}], {xreg(B,s,p)}, {c}")
            if i + D < hi:
                if opt['order']:
                    issue_read(i + D, p)
                elif p == 0:
                    issue_read(i + D)
            if p == 1 and queue and (i % opt['dmagap'] == 0 or len(queue) > 9):
                pop()
    while queue:
        pop()

def phi(regs, tmp):
    n = len(regs)
    for k in range(0, n, 2):
        r, t = regs[k], tmp[k]
        g(f"v_pk_mul_f32 v[{t}:{t+1}], v[{r}:{r+1}], s[82:83]")
        g(f"v_pk_add_f32 v[{r}:{r+1}], v[{r}:{r+1}], 1.0 op_sel_hi:[1,0]")
    for r, t in zip(regs, tmp):
        g(f"v_exp_f32_e64 v{t}, v{t} clamp")
    for r, t in zip(regs, tmp):
        g(f"v_max_f32 v{r}, v{r}, v{t}")
    for k in range(0, n, 2):
        r = regs[k]
        g(f"v_pk_add_f32 v[{r}:{r+1}], v[{r}:{r+1}], s[86:87]")

run_phase(0, 200, 0)
stamp()
if opt['dg']:
    g.force_wait(vm=0)
    bstamp(9)
    if opt['dg'] == 1:
        ptouch()
    elif opt['dg'] == 2:
        touch("v35", "s[16:17]", 50)
    elif opt['dg'] == 3:
        setexec(0, 1)
        tload("buffer_load_dword v32, v59, s[24:27], 0 offen sc1")
        g("s_mov_b64 exec, -1")
    elif opt['dg'] == 4:
        setexec(0, 8)
        tload("buffer_load_dword v32, v59, s[24:27], 0 offen sc1")
        g("s_mov_b64 exec, -1")
    elif opt['dg'] == 5:
        setexec(0, 1)
        tload("buffer_load_dword v32, v59, s[24:27], 0 offen sc1")
        g("s_mov_b64 exec, -1")
        g.force_wait(vm=0)
        bstamp(9)
        ptouch()
    g.force_wait(vm=0)
    bstamp(10)
if opt['pts'] == 99:
    ptouch()
if opt['two']:
    touch("v35", "s[16:17]", 50)
if opt['pts'] == 100:
    ptouch()
if opt['po'] in (1, 2):
    g("s_mul_i32 s3, s48, 2560")
    g("s_mul_i32 s4, s28, 1280")
    g("s_add_u32 s3, s3, s4")
    g("s_mul_i32 s4, s30, 160")
    g("s_add_u32 s3, s3, s4")
    g("v_lshrrev_b32 v6, 1, v1")
    g("v_mul_u32_u24 v6, 2560, v6")
    g("v_and_b32 v7, 1, v1")
    g("v_mul_u32_u24 v7, 156, v7")
    g("v_add_u32 v6, v6, v7")
    if opt['po'] == 2:
        setexec(0, 1)
    tload("buffer_load_dword v32, v6, s[20:23], s3 offen")
    g("s_mov_b64 exec, -1")
g("s_cmp_eq_u32 s28, 1")
br("s_cbranch_scc1 L_m1b")
with g.extra():
    for sec in range(2):
        for t in range(5):
            idx = sec * 5 + t
            for p in range(2):
                a = 64 + (idx * 2 + p) * 4
                d = 184 + idx * 4 + 2 * p
                g(f"v_cvt_pk_bf16_f32 v{d}, v{a}, v{a+1}")
                g(f"v_cvt_pk_bf16_f32 v{d+1}, v{a+2}, v{a+3}")
            for p in range(2):
                d = 184 + idx * 4 + 2 * p
                g(f"ds_write_b64 v37, v[{d}:{d+1}] offset:{sec*SECS+t*1152+p*144}")
    bstamp(6)
    g("s_cmp_lg_u32 s31, 3")
    br("s_cbranch_scc1 L_nohalo")
    g("s_add_u32 s3, s50, 2560")
    g("v_subrev_u32 v6, 512, v46")
    g("s_mov_b32 exec_lo, 0")
    for idx in range(10):
        d = 184 + idx * 4
        g(f"buffer_store_dwordx4 v[{d}:{d+3}], v6, s[24:27], {'s50' if idx < 5 else 's3'} offen offset:{(idx%5)*512} sc1")
    g("s_mov_b32 exec_lo, -1")
    g.label("L_nohalo")
    g.force_wait(lg=0)
    br("s_branch L_m1done")
g.label("L_m1b")
with g.extra():
    g(f"s_mul_i32 s3, s31, {RS}")
    g(f"s_add_u32 s3, s3, {XBASE}")
    g("v_add_u32 v6, s3, v46")
    for idx in list(range(5, 10)) + list(range(5)):
        if idx == 0:
            for r in range(4):
                g(f"v_mov_b32 v{224+r}, 0x3f803f80")
            g("v_mov_b32 v7, s3")
            g("ds_write_b128 v7, v[224:227] offset:10240")
            phi(list(range(64, 104)), list(range(208, 248)))
        d = 184 + (idx % 5) * 4 + (0 if idx >= 5 else 0)
        d = 184 + (idx % 6) * 4
        for p in range(2):
            a = 64 + (idx * 2 + p) * 4
            g(f"v_cvt_pk_bf16_f32 v{d+2*p}, v{a}, v{a+1}")
            g(f"v_cvt_pk_bf16_f32 v{d+2*p+1}, v{a+2}, v{a+3}")
        g(f"ds_write_b128 v6, v[{d}:{d+3}] offset:{idx*1024}")
    bstamp(6)
    g("s_lshl_b32 s3, s31, 10")
    g(f"s_add_u32 s3, s3, {XBASE}")
    g("v_add_u32 v6, s3, v46")
    g("s_lshl_b32 s3, s31, 6")
    g(f"s_add_u32 s3, s3, {XBASE+4096}")
    g("v_lshlrev_b32 v7, 8, v4")
    g("v_lshl_add_u32 v7, v50, 4, v7")
    g("v_add_u32 v7, s3, v7")
    g("v_add_u32 v23, 5120, v7")
    g(f"v_mov_b32 v24, {XBASE+10240}")
    g("v_and_b32 v34, 4, v1")
    g("v_cmp_eq_u32 vcc, 0, v34")
    g("v_cndmask_b32 v23, v24, v23, vcc")
    g.force_wait(lg=0)
    g("s_barrier")
    bstamp(7)
    for w2 in range(4):
        b = 64 + w2 * 16
        g(f"ds_read_b128 v[{b}:{b+3}], v6 offset:{w2*RS}")
        g(f"ds_read_b128 v[{b+4}:{b+7}], v6 offset:{w2*RS+5120}")
        g(f"ds_read_b128 v[{b+8}:{b+11}], v23 offset:{w2*RS}")
        g(f"ds_read_b128 v[{b+12}:{b+15}], v7 offset:{w2*RS}")
    for w2 in range(4):
        b = 64 + w2 * 16
        pk, vh, b2, a2 = (f"v[{b+4*k}:{b+4*k+3}]" for k in range(4))
        for k, (A, Bo) in enumerate(((pk, vh), (pk, b2), (a2, vh), (a2, b2))):
            d = 184 + 4 * k
            c = f"v[{d}:{d+3}]" if w2 else "0"
            g(f"v_mfma_f32_16x16x32_bf16 v[{d}:{d+3}], {A}, {Bo}, {c}")
    g("v_readfirstlane_b32 s3, v36")
    g("s_cmp_eq_u32 s3, s39")
    br("s_cbranch_scc1 L_zok")
    def _ld():
        g("v_mov_b32 v7, 0")
        g("buffer_load_dword v36, v7, s[24:27], s55 offen sc1")
    def _tst():
        g("v_readfirstlane_b32 s3, v36")
        g("s_cmp_eq_u32 s3, s39")
    spin_wait(_ld, _tst, "zero")
    g.label("L_zok")
    bstamp(8)
    g("s_mov_b32 s4, 0x00ffff00")
    g("s_mov_b32 s5, 0")
    g("s_mov_b32 s6, 0")
    g("s_mov_b32 s7, 0xff00ff00")
    for r in range(4):
        g(f"buffer_atomic_add_f32 v{184+r}, v51, s[24:27], s54 offen offset:{r*256} sc1")
    for r in range(4):
        g(f"v_cndmask_b32 v{188+r}, v{188+r}, v{192+r}, s[4:5]")
        g(f"v_cndmask_b32 v{188+r}, v{188+r}, v{196+r}, s[6:7]")
    for r in range(4):
        g(f"buffer_atomic_add_f32 v{188+r}, v51, s[24:27], s54 offen offset:{1024+r*256} sc1")
g.label("L_m1done")
mark[0] = nv[0]
stamp()
run_phase(200, 300, 1)
g("s_barrier")
nlate = [0]
def late_wo():
    n0 = nv[0]
    late_wo2()
    if opt['lw']:
        nlate[0] = nv[0] - n0
def late_wo2():
    for s2 in range(15, 19):
        if (opt['wat'] // 10 ** (18 - s2)) % 10 == 5:
            enqueue(dma_ops(s2))
    enqueue(dma_ops(19))
    while queue:
        pop()
if not opt['lw']:
    late_wo()
stamp()
def xg_test():
    g("v_and_b32 v6, 0xffffffe1, v33")
    g("v_cmp_eq_u32 vcc, s39, v6")
    g("s_cmp_eq_u64 vcc, -1")
xg_test()
br("s_cbranch_scc1 L_xgok")
def _ld():
    g("v_min_u32 v7, 28, v51")
    g("buffer_load_dword v33, v7, s[24:27], s33 offen sc1")
spin_wait(_ld, xg_test, "xg")
g.label("L_xgok")
g("v_cmp_eq_u32 vcc, s38, v33")
g("s_cmp_eq_u64 vcc, -1")
g("s_cselect_b32 s80, 1, 0")
if opt['ob']:
    g("s_cselect_b32 s8, s20, s24")
    g("s_cselect_b32 s9, s21, s25")
else:
    g("s_mov_b32 s8, s24")
    g("s_mov_b32 s9, s25")
g("s_mov_b32 s10, 5242880")
g("s_cmp_eq_u32 s81, 0")
br("s_cbranch_scc1 L_midok")
if not opt['early']:
    mid_test()
    br("s_cbranch_scc1 L_midgo")
def _ld():
    g("buffer_load_dword v36, v25, s[24:27], s57 offen sc1")
spin_wait(_ld, mid_test, "mid")
g.label("L_midgo")
mid_loads(1)
g.label("L_midok")
if opt['lw']:
    late_wo()
bstamp(0)
g("s_cmp_eq_u32 s28, 1")
br("s_cbranch_scc1 L_m2b")
with g.extra():
    g("s_or_b32 s3, s29, s31")
    g("s_cmp_lg_u32 s3, 0")
    br("s_cbranch_scc1 L_halo1")
    for r in range(40):
        g(f"v_mov_b32 v{64+r}, 0")
    g.label("L_halo1")
    for t in range(5):
        for p in range(2):
            a = 144 + (t * 2 + p) * 4
            d = 184 + (p * 5 + t) * 2
            g(f"v_cvt_pk_bf16_f32 v{d}, v{a}, v{a+1}")
            g(f"v_cvt_pk_bf16_f32 v{d+1}, v{a+2}, v{a+3}")
    g("s_cmp_eq_u32 s3, 0")
    g("s_cselect_b32 s4, 0, 64")
    g(f"v_mov_b32 v6, 0x{NEG:08x}")
    g("v_lshlrev_b32 v7, 2, v49")
    g("v_add_u32 v7, s4, v7")
    for c in range(3):
        for r in range(4):
            d = 52 + c * 4 + r
            if c == 0:
                g(f"v_cmp_le_u32 vcc, {r}, v50")
                g(f"v_cndmask_b32 v{d}, v6, 0, vcc")
            elif c == 1:
                g(f"v_cmp_le_u32 vcc, {4-r}, v7")
                g(f"v_cndmask_b32 v{d}, v6, 0, vcc")
            else:
                g(f"v_cmp_le_u32 vcc, {8-r}, v7")
                g(f"v_cndmask_b32 v{d}, v6, 0, vcc")
                g(f"v_cmp_gt_u32 vcc, {r}, v50")
                g(f"v_cndmask_b32 v{d}, v6, v{d}, vcc")
    g("v_mov_b32 v240, 0x3f803f80")
    g("v_mov_b32 v241, 0x3f803f80")
    g(f"s_mov_b32 s4, 0x{SCL:08x}")
    g("s_cmp_lg_u32 s31, 0")
    br("s_cbranch_scc1 L_halodone")
    g("v_subrev_u32 v23, 32, v37")
    g.force_wait(vm=nlate[0])
    g("s_mov_b32 exec_lo, 0")
    for sec in range(2):
        for t in range(5):
            idx = sec * 5 + t
            for p in range(2):
                d = 64 + idx * 4 + 2 * p
                g(f"ds_write_b64 v23, v[{d}:{d+1}] offset:{sec*SECS+t*1152+p*144}")
    g("s_mov_b32 exec_lo, -1")
    g.force_wait(lg=0)
    g.label("L_halodone")
    m2touch()
    bstamp(1)
    def kreg(p, c, t):
        b = ((p * 3 + c) * 5 + t) * 2
        return f"a[{b}:{b+1}]"
    def vreg(p, c, t):
        b = 60 + ((p * 3 + c) * 5 + t) * 2
        return f"a[{b}:{b+1}]"
    for t in range(5):
        for p in range(2):
            for c in range(3):
                g(f"ds_read_b64_tr_b16 {kreg(p,c,t)}, v38 offset:{t*1152+p*144+16-8*c}")
    for t in range(5):
        for p in range(2):
            for c in range(3):
                g(f"ds_read_b64 {vreg(p,c,t)}, v39 offset:{t*1152+p*144+16-8*c}")
    for t in range(5):
        for p in range(2):
            for c in range(3):
                s = 204 + (p * 3 + c) * 4
                q = 184 + (p * 5 + t) * 2
                cc = f"v[{52+4*c}:{55+4*c}]" if t == 0 else f"v[{s}:{s+3}]"
                g(f"v_mfma_f32_4x4x4_16b_bf16 v[{s}:{s+3}], {kreg(p,c,t)}, v[{q}:{q+1}], {cc}")
    bstamp(2)
    for p in range(2):
        s = 204 + p * 12
        m = 242 + p * 4
        for k in range(4):
            g(f"v_max3_f32 v{m+k}, v{s+3*k}, v{s+3*k+1}, v{s+3*k+2}")
        g(f"v_max3_f32 v{m}, v{m}, v{m+1}, v{m+2}")
        g(f"v_max_f32 v{m}, v{m}, v{m+3}")
        g(f"v_mul_f32 v{m}, s4, v{m}")
    for p in range(2):
        s = 204 + p * 12
        m = 242 + p * 4
        for k in range(12):
            g(f"v_fma_f32 v{s+k}, v{s+k}, s4, -v{m}")
        for k in range(12):
            g(f"v_exp_f32 v{s+k}, v{s+k}")
    for p in range(2):
        s = 204 + p * 12
        for k in range(6):
            g(f"v_cvt_pk_bf16_f32 v{228+p*6+k}, v{s+2*k}, v{s+2*k+1}")
    bstamp(3)
    for c in range(3):
        for p in range(2):
            pr = 228 + (p * 3 + c) * 2
            for t in range(6):
                o = 64 + (p * 6 + t) * 4
                a = vreg(p, c, t) if t < 5 else "v[240:241]"
                cc = "0" if c == 0 else f"v[{o}:{o+3}]"
                g(f"v_mfma_f32_4x4x4_16b_bf16 v[{o}:{o+3}], {a}, v[{pr}:{pr+1}], {cc}")
    if opt['own']:
        g.force_wait(vm=2)
        g("s_barrier")
    br("s_branch L_m2done")
g.label("L_m2b")
with g.extra():
    if opt['pb'] == 3:
        ptouch()
    phi(list(range(144, 184)), list(range(184, 224)))
    if opt['pb'] == 2:
        ptouch()
    for t in range(5):
        for p in range(2):
            a = 144 + (t * 2 + p) * 4
            g(f"v_cvt_pk_bf16_f32 v{a}, v{a}, v{a+1}")
            g(f"v_cvt_pk_bf16_f32 v{a+1}, v{a+2}, v{a+3}")
    g("s_lshl_b32 s3, s31, 5")
    g(f"s_add_u32 s3, s3, {KVF}")
    g("v_lshl_add_u32 v6, v50, 3, s3")
    g("v_mul_u32_u24 v7, 768, v4")
    g("v_lshl_add_u32 v23, v49, 7, v6")
    g("v_add_u32 v23, v23, v7")
    g("s_mov_b32 s4, 0x00ffff00")
    g("s_mov_b32 s5, 0xff00ff00")
    g("v_mov_b32 v24, 3072")
    g("v_cndmask_b32 v7, v7, v24, s[4:5]")
    g("v_and_b32 v24, 1, v49")
    g("v_add_u32 v24, 4, v24")
    g("s_mov_b32 s5, 0")
    g("v_cndmask_b32 v24, v24, v49, s[4:5]")
    g("v_lshl_add_u32 v24, v24, 7, v6")
    g("v_add_u32 v24, v24, v7")
    g("v_lshl_add_u32 v7, v4, 2, v50")
    g("v_lshlrev_b32 v7, 3, v7")
    g(f"v_add_u32 v7, {KVF}, v7")
    bstamp(1)
    g.force_wait(vm=nlate[0] + 2 * (opt['pb'] in (2, 3)))
    if opt['pb'] == 4:
        ptouch()
    bstamp(2)
    for k in range(4):
        g(f"v_cvt_pk_bf16_f32 v{72+k}, v{64+2*k}, v{65+2*k}")
    g("ds_write_b64 v23, v[72:73]")
    g("ds_write_b64 v24, v[74:75]")
    g.force_wait(lg=0)
    g("s_barrier")
    m2touch(1)
    bstamp(3)
    for T in range(30):
        g(f"ds_read_b64 a[{2*T}:{2*T+1}], v7 offset:{T*128}")
    for t in range(5):
        for t2 in range(6):
            T = t * 6 + t2
            for p in range(2):
                o = 64 + (p * 6 + t2) * 4
                q = 144 + (t * 2 + p) * 4
                cc = "0" if t == 0 else f"v[{o}:{o+3}]"
                g(f"v_mfma_f32_4x4x4_16b_bf16 v[{o}:{o+3}], a[{2*T}:{2*T+1}], v[{q}:{q+1}], {cc}")
    for p in range(2):
        o = 64 + (p * 6 + 5) * 4
        g(f"v_add_f32 v{o}, s53, v{o}")
g.label("L_m2done")
bstamp(4)
p3 = []
for i8 in range(8):
    for qq in range(2):
        for t in range(5):
            p3.append((i8, qq, t))
for j in range(4):
    for t in range(5):
        p3.append((8, j, t))
def p3_read(i, half=None):
    i8, qq, t = p3[i]
    b = wreg(i)
    if i8 < 8:
        va = f"v{196+i8}"
        imm = qq * 1280 + 8 * t
        d2 = 640
    else:
        va = "v30" if qq < 2 else "v31"
        imm = (160 * (qq & 1) + 16) * 160 + 8 * t
        d2 = 6400
    if half in (None, 0):
        g(f"ds_read_b64_tr_b16 a[{b}:{b+1}], {va} offset:{imm}")
    if half in (None, 1):
        g(f"ds_read_b64_tr_b16 a[{b+2}:{b+3}], {va} offset:{imm+d2}")
def p3_addr(i8):
    g(f"s_add_u32 s3, s30, {i8}")
    g("s_and_b32 s3, s3, 7")
    g("s_mul_i32 s4, s3, 12800")
    g(f"s_mul_i32 s{58+i8}, s3, 10240")
    g(f"v_add_u32 v{196+i8}, s4, v28")
    g(f"s_add_u32 s{58+i8}, s{58+i8}, s44")
for p in range(2):
    o = 64 + (p * 6 + 5) * 4
    g(f"v_rcp_f32 v{o}, v{o}")
p3_addr(0)
if opt['own'] == 1:
    p3_addr(1)
    for i in range(D):
        p3_read(i)
g("v_add_u32 v253, 5120, v46")
g("s_lshr_b32 s3, s30, 1")
g("s_mul_i32 s3, s3, 20480")
g("s_add_u32 s3, s3, s44")
g("s_add_u32 s4, s3, 10240")
g("s_lshl_b32 s5, s30, 2")
g("s_add_u32 s5, s5, s49")
for p in range(2):
    dn = 64 + (p * 6 + 5) * 4
    for t in range(5):
        o = 64 + (p * 6 + t) * 4
        for r in range(0, 4, 2):
            g(f"v_pk_mul_f32 v[{o+r}:{o+r+1}], v[{o+r}:{o+r+1}], v[{dn}:{dn+1}] op_sel_hi:[1,0]")
        d = 112 + p * 10 + 2 * t
        g(f"v_cvt_pk_bf16_f32 v{d}, v{o}, v{o+1}")
        g(f"v_cvt_pk_bf16_f32 v{d+1}, v{o+2}, v{o+3}")
g("v_mov_b32 v6, s39")
g("v_mov_b32 v7, 0")
nol = [0]
NOL = 36 if opt['own'] else 40
KO = 40 - NOL
def o_load():
    k = nol[0]; nol[0] += 1
    kk = k + KO
    if kk < 32:
        i8, bb = kk // 4, kk % 4
        g(f"buffer_load_dwordx4 a[{4*k}:{4*k+3}], {'v253' if bb >= 2 else 'v46'}, s[8:11], s{58+i8} offen offset:{(bb&1)*2560} sc1")
    else:
        if kk == 32:
            g("s_mov_b32 s3, s44")
        else:
            g("s_add_u32 s3, s3, 10240")
        g(f"buffer_load_dwordx4 a[{4*k}:{4*k+3}], v251, s[8:11], s3 offen sc1")
def p3_step(i):
    i8, qq, t = p3[i]
    ks = i // 5
    b = wreg(i)
    for p in range(2):
        acc = 144 + (t * 2 + p) * 4
        c = "0" if ks == 0 else f"v[{acc}:{acc+3}]"
        if opt['own'] and i8 == 0:
            o = 112 + p * 10 + 4 * qq
            ob_ = f"v[{o}:{o+3}]"
        else:
            k = ks * 2 + p - KO
            assert k < nol[0]
            ob_ = f"a[{4*k}:{4*k+3}]"
        g(f"v_mfma_f32_16x16x32_bf16 v[{acc}:{acc+3}], a[{b}:{b+3}], {ob_}, {c}")
        if i + D < 100:
            p3_read(i + D, p)
        if p == 1 and nol[0] and i % opt['og'] == 0 and nol[0] < NOL:
            o_load()
def o_stores(OSC):
    for p in range(2):
        d = 112 + p * 10
        g(f"buffer_store_dwordx4 v[{d}:{d+3}], v46, s[8:11], s58 offen offset:{p*2560} {OSC}", tag='o')
        g(f"buffer_store_dwordx4 v[{d+4}:{d+7}], v253, s[8:11], s58 offen offset:{p*2560} {OSC}", tag='o')
        g(f"buffer_store_dwordx2 v[{d+8}:{d+9}], v47, s[8:11], {'s4' if p else 's3'} offen {OSC}", tag='o')
def o_flag(OSC):
    g("s_mov_b64 exec, 1")
    g(f"buffer_store_dword v6, v7, s[24:27], s5 offen {OSC}")
    g("s_mov_b64 exec, -1")
def both(fn, n):
    g("s_cmp_eq_u32 s80, 0")
    br(f"s_cbranch_scc1 L_slow{n}")
    with g.extra():
        fn('')
        br(f"s_branch L_pub{n}")
    g.label(f"L_slow{n}")
    fn('sc1')
    g.label(f"L_pub{n}")
both(o_stores, 0)
bstamp(5)
if opt['own'] != 1:
    if opt['own']:
        for i in range(D):
            p3_read(i)
    p3_addr(1)
I0 = 10 if opt['own'] else 0
for i in range(I0):
    p3_step(i)
g.force_wait(vm=0)
both(o_flag, 1)
stamp()
g("s_barrier")
for i8 in range(2, 8):
    p3_addr(i8)
if not opt['own']:
    for i in range(D):
        p3_read(i)
g("v_mul_u32_u24 v251, 2304, v4")
g("v_add_u32 v251, v251, v46")
g("v_add_u32 v251, 1024, v251")
if opt['tr']:
    g("v_mul_u32_u24 v23, 6554, v1")
    g("v_add_u32 v7, s79, v46")
    g("s_movk_i32 s3, 4960")
    g("s_mov_b32 s4, 79360")
    for i in range(5):
        if i:
            g(f"v_add_u32 v195, {64*i*6554}, v23")
        g(f"v_lshrrev_b32 v195, 16, {'v195' if i else 'v23'}")
        g(f"v_lshl_add_u32 v{184+i}, v195, 4, v7")
        g(f"v_mad_u32_u24 v{189+i}, v195, s3, v46")
        if i == 2:
            g("v_lshrrev_b32 v195, 4, v195")
            g("v_mul_u32_u24 v195, s4, v195")
            g(f"v_sub_u32 v{189+i}, v{189+i}, v195")
        elif i > 2:
            g(f"v_subrev_u32 v{189+i}, {79360 - (4096 if i == 4 else 0)}, v{189+i}")
    g("v_mul_u32_u24 v194, 176, v3")
    g("v_mul_u32_u24 v195, 40, v4")
    g("v_add3_u32 v194, v194, v195, s79")
g("v_min_u32 v7, 28, v51")
def _ld():
    g("buffer_load_dword v36, v7, s[24:27], s49 offen sc1")
spin_wait(_ld, mid_test, "o")
g.force_wait(vm=0)
stamp()
for k in range(opt['oa']):
    o_load()
for i in range(I0, 100):
    if opt['ob'] and i == opt['li']:
        assert nol[0] == NOL
        g.force_wait(vm=0)
        bstamp(9)
        g("s_mov_b64 exec, 1")
        g("buffer_store_dword v6, v51, s[24:27], s5 offen offset:32")
        g("s_mov_b64 exec, -1")
    if opt['ob'] and i == opt['pi']:
        g("buffer_load_dword v36, v7, s[24:27], s49 offen offset:32 sc1")
    p3_step(i)
stamp()
g("s_mul_i32 s3, s48, 2560")
g("s_mul_i32 s4, s28, 1280")
g("s_add_u32 s3, s3, s4")
g("s_mul_i32 s4, s30, 160")
g("s_add_u32 s3, s3, s4")
for p in range(2 if opt['tr'] else 0):
    for t in range(5):
        a = 144 + (t * 2 + p) * 4
        d = 112 + p * 10 + 2 * t
        g(f"v_cvt_pk_bf16_f32 v{d}, v{a}, v{a+1}")
        g(f"v_cvt_pk_bf16_f32 v{d+1}, v{a+2}, v{a+3}")
        g(f"ds_write_b64 v194, v[{d}:{d+1}] offset:{p*2816+8*t}")
    for i in ((0, 1), (2, 3, 4))[p]:
        g(f"ds_read_b128 v[{64+4*i}:{67+4*i}], v{184+i} offset:{1024*i}")
if opt['ob']:
    bstamp(10)
    mid_test()
    g("s_cselect_b32 s4, 0, s80")
    g("s_cmp_eq_u32 s4, 0")
    br("s_cbranch_scc1 L_rdok")
    def _ld():
        g("buffer_load_dword v36, v7, s[24:27], s49 offen offset:32 sc1")
    spin_wait(_ld, mid_test, "read")
    g.label("L_rdok")
    bstamp(11)
for i in range(5 if opt['tr'] else 0):
    g(f"buffer_store_dwordx4 v[{64+4*i}:{67+4*i}], v{189+i}, s[20:23], s3 offen offset:{1024*(i&3)}")
for p in range(0 if opt['tr'] else 2):
    for t in range(5):
        a = 144 + (t * 2 + p) * 4
        d = 112 + p * 10 + 2 * t
        g(f"v_cvt_pk_bf16_f32 v{d}, v{a}, v{a+1}")
        g(f"v_cvt_pk_bf16_f32 v{d+1}, v{a+2}, v{a+3}")
    d = 112 + p * 10
    if opt['xo'] == 1:
        continue
    if opt['xo'] == 6:
        if p == 0:
            g("v_mul_u32_u24 v6, 2560, v3")
            g("v_mul_u32_u24 v7, 40, v4")
            g("v_add_u32 v6, v6, v7")
            g("s_add_u32 s3, s44, s4")
        g(f"buffer_store_dwordx4 v[{d}:{d+3}], v6, s[24:27], s3 offen offset:{p*1280}")
        g(f"buffer_store_dwordx4 v[{d+4}:{d+7}], v6, s[24:27], s3 offen offset:{p*1280+16}")
        g(f"buffer_store_dwordx2 v[{d+8}:{d+9}], v6, s[24:27], s3 offen offset:{p*1280+32}")
        continue
    if opt['xo'] in (7, 8):
        if p == 1:
            rs = 2560 if opt['xo'] == 7 else 1280
            g(f"s_movk_i32 s5, {rs-160}")
            if opt['xo'] == 8:
                g("s_add_u32 s3, s44, s4")
            for i in range(5):
                g(f"v_add_u32 v6, {64*i}, v1")
                g("v_mul_u32_u24 v7, 6554, v6")
                g("v_lshrrev_b32 v7, 16, v7")
                g("v_lshlrev_b32 v6, 4, v6")
                g("v_mad_u32_u24 v6, v7, s5, v6")
                g(f"buffer_store_dwordx4 v[{112+4*i}:{115+4*i}], v6, {'s[20:23]' if opt['xo'] == 7 else 's[24:27]'}, s3 offen")
        continue
    OM = {0: '', 2: ' sc1', 3: ' nt', 4: ' sc0 sc1', 5: ' sc1 nt'}[opt['xo']]
    g(f"buffer_store_dwordx4 v[{d}:{d+3}], v48, s[20:23], s3 offen offset:{p*2560}{OM}")
    g(f"buffer_store_dwordx4 v[{d+4}:{d+7}], v48, s[20:23], s3 offen offset:{p*2560+16}{OM}")
    g(f"buffer_store_dwordx2 v[{d+8}:{d+9}], v48, s[20:23], s3 offen offset:{p*2560+32}{OM}")
if opt['prof']:
    g.force_wait(vm=0)
    stamp()
    g("s_memrealtime s[88:89]")
    g.wait_lg(0)
    g("v_writelane_b32 v5, s92, 62")
    g("v_writelane_b32 v5, s88, 63")
    g("s_lshl_b32 s3, s2, 2")
    g("s_add_u32 s3, s3, s31")
    g("s_lshl_b32 s3, s3, 8")
    g(f"s_add_u32 s3, s3, {WS_P}")
    g("buffer_store_dword v5, v51, s[24:27], s3 offen")
g.label("L_end")
g("s_endpgm")
g.raw(f""".section .rodata,"a"
.p2align 6
.amdhsa_kernel {NAME}
  .amdhsa_next_free_vgpr 512
  .amdhsa_next_free_sgpr 102
  .amdhsa_accum_offset 256
  .amdhsa_group_segment_fixed_size 0
  .amdhsa_kernarg_size 72
  .amdhsa_user_sgpr_count 2
  .amdhsa_user_sgpr_kernarg_segment_ptr 1
  .amdhsa_system_sgpr_workgroup_id_x 1
.end_amdhsa_kernel""")
sys.stdout.write(g.text())
sys.stderr.write(f"bytes~{g.nbytes} stats={g.stats}\n")
```

```python
import sys
from asmgen import Asm

opt = dict(dist=6, nbuf=8, dmagap=2, barf=14, prof=0, fst=11, cf=4, brx=1, t5=1, tq=-1, qd=0, two=1,
           order=1, early=0, pst=13, pf=8, cf2=6, ff=14, nb=0, pts=11, ptf=16, ptn=1, ptd=20, po=0, fo=1, xst=12, pa=0, dg=0, wat=1234, lw=0, rot=1, tl=0, t0=0, tmax=14, te=1, sch=3034, qa=5, qn=1, oa=6, og=2, xo=0, tr=1, pb=2, ob=1, own=1, li=84, pi=95, nx=1, fs=0, et=0, dyn=0, n1=4, ci=32, p2=24)
for a in sys.argv[1:]:
    k, v = a.split('=')
    opt[k] = int(v)

NAME = "concat_heads__sliding_local_dilated__linear_attn_block__prompt_kernel"
SLOT = 20544
XBASE = 5 * SLOT
KVB = XBASE
HS = 5768
SECS = 4 * HS
RS = 10304
KVF = XBASE + 4 * RS
WS_O, WS_H, WS_K, WS_F, WS_P = 0, 0x500000, 0x600000, 0x700000, 0x800000
SPIN = 1 << 14
LOG2E = 0x3FB8AA3B
SCL = 0x3EA52B5C
EPS = 0x358637BD
NEG = 0xF149F2CA

g = Asm()
def br(text):
    g.flush_hazards()
    g(text)
g.raw("; @launch grid=(256,1,1) block=(256,1,1) lds=163840")
g.raw('.amdgcn_target "amdgcn-amd-amdhsa--gfx950"')
g.raw(f".text\n.globl {NAME}\n.p2align 8\n.type {NAME},@function\n{NAME}:")

nstamp = [0]
lst = []
def lstamp():
    if opt['prof'] > 2:
        r = 100 - 2 * len(lst)
        lst.append(r)
        g.raw(f"  s_memtime s[{r}:{r+1}]")
def lflush():
    if opt['prof'] > 2:
        g.raw("  s_waitcnt lgkmcnt(0)")
        for r in lst:
            k = nstamp[0]; nstamp[0] += 1
            g(f"s_sub_u32 s88, s{r}, s90")
            g(f"v_writelane_b32 v5, s88, {k}")
def stamp():
    if opt['prof']:
        k = nstamp[0]; nstamp[0] += 1
        g("s_memtime s[88:89]")
        g.wait_lg(0)
        g("s_sub_u32 s88, s88, s90")
        g(f"v_writelane_b32 v5, s88, {k}")
def bstamp(k):
    if opt['prof'] > 3:
        g("s_memtime s[88:89]")
        g.wait_lg(0)
        g("s_sub_u32 s88, s88, s90")
        g(f"v_writelane_b32 v5, s88, {32+k}")
def tload(text):
    g(text)
    g.vm[-1] = (None, set())
    nv[0] += 1
def setexec(lo, hi):
    m = ((1 << hi) - 1) & ~((1 << lo) - 1)
    g(f"s_mov_b32 exec_lo, 0x{m & 0xffffffff:x}")
    g(f"s_mov_b32 exec_hi, 0x{m >> 32:x}")
nv = [0]

if opt['prof']:
    g("s_memrealtime s[92:93]")
    g("s_memtime s[90:91]")
g("s_cmp_ge_u32 s2, 256")
br("s_cbranch_scc1 L_end")
g("s_bfe_u32 s28, s2, 0x10002")
if opt['brx']:
    g("s_xor_b32 s28, s28, 1")
g("s_mul_i32 s5, s28, 24")
g("s_add_u32 s6, s0, s5")
g("s_addc_u32 s7, s1, 0")
g("s_load_dwordx2 s[8:9], s[6:7], 0")
g("s_load_dwordx2 s[12:13], s[6:7], 8")
g("s_load_dwordx2 s[16:17], s[6:7], 16")
g("s_load_dwordx2 s[20:21], s[0:1], 48")
g("s_load_dwordx2 s[40:41], s[0:1], 56")
g("s_load_dwordx2 s[24:25], s[0:1], 64")
g("s_getpc_b64 s[86:87]")
g.raw("L_pc0:")
g("s_bfe_u32 s30, s2, 0x30003")
g("s_lshl_b32 s3, s30, 12")
g("v_lshlrev_b32 v6, 4, v0")
g("v_add_u32 v6, s3, v6")
g("v_min_u32 v6, L_end-L_pc0-16, v6")
tload("global_load_dwordx4 v[60:63], v6, s[86:87]")
g("v_and_b32 v1, 63, v0")
g("v_lshrrev_b32 v2, 6, v0")
g("s_and_b32 s3, s2, 3")
g("v_readfirstlane_b32 s31, v2")
g("s_lshl_b32 s3, s3, 2")
g("s_lshr_b32 s78, s2, 6")
g("s_add_u32 s29, s3, s78")
if opt['rot'] == 1:
    g("s_add_u32 s3, s30, s78")
elif opt['rot'] == 0:
    g("s_mov_b32 s3, 0")
elif opt['rot'] == 2:
    g("s_mov_b32 s3, s78")
elif opt['rot'] == 3:
    g("s_mov_b32 s3, s30")
elif opt['rot'] == 4:
    g("s_add_u32 s3, s30, s78")
    g("s_and_b32 s3, s3, 1")
g("s_lshl_b32 s3, s3, 2")
g("s_mov_b32 s84, 0x21043210")
g("s_mov_b32 s85, 0x04321043")
g("s_lshr_b64 s[84:85], s[84:85], s3")
def T_kv(lo, n):
    assert n <= 6
    g(f"s_mov_b32 s3, {lo*64*3840}")
    setexec(0, 10 * n)
    tload("buffer_load_dword v32, v57, s[12:15], s3 offen")
    setexec(0, 4 * n)
    tload(f"buffer_load_dword v32, v58, s[8:11], 0 offen offset:{128*lo}")
    g("s_mov_b64 exec, -1")
def T_q(lo, n):
    setexec(10 * lo, 10 * (lo + n))
    tload("buffer_load_dword v32, v34, s[12:15], 0 offen")
    g("s_mov_b64 exec, -1")
tsch = {}
if opt['tl']:
    nxt = 0 if opt['t0'] else 1
    for k, c in enumerate(str(opt['sch'])):
        n = min(int(c), 10 - nxt)
        if n:
            tsch.setdefault(k, []).append(lambda lo=nxt, n=n: T_kv(lo, n))
        nxt += n
    assert nxt == 10
    for b in range(0, 5, opt['qn']):
        tsch.setdefault(opt['qa'] + b // opt['qn'], []).append(lambda b=b: T_q(b, min(opt['qn'], 5 - b)))
    g("s_lshr_b32 s3, s2, 3")
    g("s_lshl_b32 s3, s3, 2")
    g("s_add_u32 s3, s3, s31")
    g("v_mul_u32_u24 v6, 6554, v1")
    g("s_lshr_b32 s4, s3, 1")
    g("s_mul_i32 s4, s4, 3840")
    g("v_lshrrev_b32 v6, 16, v6")
    g("s_and_b32 s5, s3, 1")
    g("s_mul_i32 s5, s5, 1280")
    g("s_add_u32 s4, s4, s5")
    g("s_add_u32 s4, s4, 1280")
    g("v_lshl_add_u32 v57, v1, 7, s4")
    g(f"s_mov_b32 s5, {64*3840-1280}")
    g("v_mad_u32_u24 v57, v6, s5, v57")
    g("s_and_b32 s4, s2, 3")
    g("s_lshl_b32 s4, s4, 7")
    g("s_add_u32 s4, s4, s3")
    g("s_mul_i32 s4, s4, 5120")
    g("v_and_b32 v7, 3, v1")
    g("v_mul_u32_u24 v7, 1248, v7")
    g("v_lshl_add_u32 v58, v1, 5, v7")
    g("v_add_u32 v58, s4, v58")
    g("s_mov_b32 s10, 2621440")
    g("s_mov_b32 s11, 0x00020000")
    g("s_mov_b32 s14, 2457600")
    g("s_mov_b32 s15, 0x00020000")
    g("s_mul_i32 s4, s3, 3840")
    g("v_lshl_add_u32 v34, v1, 7, s4")
    g(f"s_mov_b32 s5, {128*3840-1280}")
    g("v_mad_u32_u24 v34, v6, s5, v34")
    g.wait_lg(0)
    for f in tsch.pop(0, []):
        f()
g("v_bfe_u32 v4, v0, 4, 2")
g("v_lshrrev_b32 v6, 3, v1")
g("v_mul_u32_u24 v6, 2560, v6")
g("v_and_b32 v7, 7, v1")
g("v_and_b32 v23, 1, v4")
g("v_xor_b32 v7, v7, v23")
g("v_lshl_add_u32 v40, v7, 4, v6")
g("v_add_u32 v41, 256, v40")
g("v_xor_b32 v7, 4, v7")
g("v_lshl_add_u32 v42, v7, 4, v6")
g(f"v_add_u32 v42, {16*1280-2048}, v42")
g("v_add_u32 v43, 256, v42")
g("s_lshl_b32 s3, s29, 7")
g("s_lshl_b32 s4, s31, 5")
g("s_add_u32 s48, s3, s4")
g("s_mul_i32 s32, s48, 1280")
g("s_and_b32 s3, s84, 7")
g("s_lshl_b32 s58, s3, 8")
g("s_add_u32 s58, s58, s32")
g("s_mul_i32 s79, s31, 12288")
g(f"s_add_u32 s79, s79, {XBASE}")
g("s_mov_b32 m0, s79")
g("s_mov_b32 s10, 2621440")
g("s_mov_b32 s11, 0x00020000")
g("s_mov_b32 s14, 2457600")
g("s_mov_b32 s15, 0x00020000")
g("v_mul_u32_u24 v24, 6554, v1")
g("v_lshlrev_b32 v46, 4, v1")
g("v_add_u32 v25, 1280, v46")
g("s_movk_i32 s4, 1120")
g("s_movk_i32 s5, 1280")
def wvoff(i):
    if i:
        g(f"v_add_u32 v6, {64*i*6554}, v24")
    src = "v6" if i else "v24"
    g(f"v_lshrrev_b32 v{52+i}, 16, {src}")
    g(f"v_lshrrev_b32 v7, 17, {src}")
    g(f"v_mad_u32_u24 v{8+i}, v{52+i}, s4, v25")
    g(f"v_mad_u32_u24 v{8+i}, v7, s5, v{8+i}")
    if i == 4:
        g(f"v_add_u32 v{8+i}, 4096, v{8+i}")
for i in range(5):
    wvoff(i)
g("s_mul_i32 s4, s30, 160")
g("s_mul_i32 s5, s31, 61440")
g("s_add_u32 s34, s5, s4")
g("s_mul_i32 s68, s3, 491520")
g("s_add_u32 s68, s68, s34")
g("s_add_u32 s5, s31, 1")
g("s_lshr_b32 s5, s5, 1")
g("s_lshl_b32 s5, s5, 5")
g("s_mul_i32 s45, s31, 5120")
g("s_add_u32 s36, s5, s45")
lstamp()
g.wait_lg(0)
lstamp()

cur_m0 = ["s79+0"]
def setm0(key):
    if cur_m0[0] != key:
        r, off = key.split('+')
        if int(off):
            g(f"s_add_u32 m0, {r}, {off}")
        else:
            g(f"s_mov_b32 m0, {r}")
        cur_m0[0] = key

class Op:
    def __init__(self, tag, m0, fn):
        self.tag, self.m0, self.fn = tag, m0, fn
queue = []
def pop():
    op = queue.pop(0)
    if op.m0:
        setm0(op.m0)
    op.fn()
    for o in queue[:1]:
        if o.m0:
            setm0(o.m0)
def enqueue(ops):
    was = bool(queue)
    queue.extend(ops)
    if not was and queue and queue[0].m0:
        setm0(queue[0].m0)

def t_ops(st):
    return [Op(None, None, f) for f in tsch.pop(st, [])]
def dma_ops(st):
    sl = st % 5
    ops = []
    ops += t_ops(st)
    for i in range(5):
        off = 1024 * (i & 3)
        hi = 4096 if i == 4 else 0
        if st < 10:
            txt = f"buffer_load_dwordx4 v{8+i}, s[12:15], s{68+st} offen offset:{off} lds"
            m0 = f"s36+{sl*SLOT+hi}"
        elif st < 15:
            txt = f"buffer_load_dwordx4 v{13+i}, s[12:15], s{68+2*(st-10)} offen offset:{off} lds"
            m0 = f"s36+{sl*SLOT+hi}"
        else:
            uu = st - 15
            txt = f"buffer_load_dwordx4 v{18+i}, s[16:19], s37 offen offset:{off} lds"
            m0 = f"s45+{uu*20480+hi}"
        def fn(txt=txt, i=i, st=st):
            if st >= 15 and i == 0:
                g(f"s_add_u32 s37, s35, {(st-15)*128*1280}")
            g(txt, tag=('w', st))
            nv[0] += 1
        ops.append(Op(('w', st), m0, fn))
    return ops

def xreg(B, s, p):
    b = ((B * 2 + s) * 2 + p) * 4
    return f"a[{b}:{b+3}]"
def xregs(B):
    return {('a', i) for i in range(B * 16, B * 16 + 16)}
def x_ops(B):
    ops = []
    for i in range(4):
        def fn(i=i):
            if i == 0 and B >= 3:
                g._auto_wait(xregs(B - 3))
            g(f"buffer_load_dwordx4 v{40+i}, s[8:11], s{58+B} offen offset:{1024*i} lds", tag=('x', B))
            nv[0] += 1
        ops.append(Op(('x', B), f"s79+{(B%3)*4096}", fn))
    return ops
def x_read(B):
    for s in range(2):
        for p in range(2):
            g(f"ds_read_b128 {xreg(B,s,p)}, v{44+s} offset:{(B%3)*4096+1024*p}")

enqueue(x_ops(0) + dma_ops(0))
while queue:
    pop()
lstamp()
for base, n in ((16, 819200), (20, 5242880), (24, 1 << 24), (40, 256)):
    g(f"s_mov_b32 s{base+2}, {n}")
    g(f"s_mov_b32 s{base+3}, 0x00020000")
g("s_or_b32 s3, s2, s31")
g("s_cmp_lg_u32 s3, 0")
br("s_cbranch_scc1 L_notag")
with g.extra():
    g("s_memrealtime s[4:5]")
    g.wait_lg(0)
    g("s_lshl_b32 s4, s4, 6")
    g("s_or_b32 s4, s4, 1")
    g("v_mov_b32 v6, s4")
    g("v_mov_b32 v7, 0")
    g("s_mov_b64 exec, 1")
    g("buffer_store_dword v6, v7, s[40:43], 0 offen sc1")
    g("s_mov_b64 exec, -1")
g.label("L_notag")
g("s_add_u32 s59, s58, 128")
g(f"s_add_u32 s69, s68, {64*3840}")
for u in range(1, 5):
    g(f"s_bfe_u32 s3, s84, 0x{(3<<16)|(4*u):x}")
    g(f"s_lshl_b32 s{58+2*u}, s3, 8")
    g(f"s_add_u32 s{58+2*u}, s{58+2*u}, s32")
    g(f"s_add_u32 s{59+2*u}, s{58+2*u}, 128")
    g(f"s_mul_i32 s{68+2*u}, s3, 491520")
    g(f"s_add_u32 s{68+2*u}, s{68+2*u}, s34")
    g(f"s_add_u32 s{69+2*u}, s{68+2*u}, {64*3840}")
g("v_and_b32 v3, 15, v0")
g("v_bfe_u32 v49, v0, 2, 2")
g("v_and_b32 v50, 3, v0")
g("v_mul_u32_u24 v6, 320, v49")
g("v_mul_u32_u24 v7, 5120, v4")
g("v_add_u32 v6, v6, v7")
g("v_add_u32 v7, 1, v4")
g("v_lshrrev_b32 v7, 1, v7")
g("v_lshl_add_u32 v6, v7, 5, v6")
g("v_mul_u32_u24 v7, 40, v50")
g("v_add_u32 v26, v6, v7")
g(f"v_add_u32 v27, {3*SLOT}, v26")
g("s_cmp_eq_u32 s28, 0")
g("s_cselect_b32 s3, 40, 8")
g("s_cselect_b32 s4, 8, 40")
g("v_mad_u32_u24 v184, v50, s3, v6")
for t in range(1, 4):
    g(f"v_add_u32 v{184+2*t}, s4, v{182+2*t}")
g("v_add_u32 v192, 32, v26")
for t in range(5):
    g(f"v_add_u32 v{185+2*t}, {3*SLOT}, v{184+2*t}")
g("v_lshrrev_b32 v6, 3, v3")
g("v_lshlrev_b32 v6, 4, v6")
g("v_and_b32 v7, 7, v3")
g("v_add_u32 v6, v6, v7")
g("v_lshlrev_b32 v6, 7, v6")
g("v_lshrrev_b32 v7, 1, v3")
g("v_and_b32 v7, 5, v7")
g("v_lshlrev_b32 v23, 1, v4")
g("v_xor_b32 v7, v7, v23")
g("v_lshl_add_u32 v6, v7, 4, v6")
g("v_add_u32 v44, s79, v6")
g("v_xor_b32 v45, 16, v44")
g("s_lshl_b32 s54, s30, 13")
g("s_lshl_b32 s3, s31, 11")
g("s_add_u32 s54, s54, s3")
g(f"s_add_u32 s54, s54, {WS_K}")
g("s_lshl_b32 s55, s30, 7")
g("s_lshl_b32 s3, s31, 2")
g("s_add_u32 s55, s55, s3")
g(f"s_add_u32 s55, s55, {WS_F+0xA000}")
g("s_xor_b32 s3, s28, 1")
g("s_or_b32 s56, s3, s29")
g("v_lshlrev_b32 v51, 2, v1")
g("s_cmp_lg_u32 s56, 0")
br("s_cbranch_scc1 L_nozero")
with g.extra():
    for r in range(4):
        g(f"v_mov_b32 v{64+r}, 0")
    for k in range(2):
        g(f"buffer_store_dwordx4 v[64:67], v46, s[24:27], s54 offen offset:{k*1024} sc1")
g.label("L_nozero")
g("s_movk_i32 s4, 1120")
g(f"s_mov_b32 s5, {64*3840-160}")
g(f"s_mov_b32 s6, {128*3840-3840}")
for i in range(5):
    g(f"v_mad_u32_u24 v{18+i}, v{52+i}, s4, v46")
    g(f"v_mad_u32_u24 v{13+i}, v{52+i}, s5, v46")
    g(f"v_lshrrev_b32 v7, 1, v{52+i}")
    g(f"v_mul_u32_u24 v7, s6, v7")
    g(f"v_sub_u32 v{13+i}, v{13+i}, v7")
g("v_add_u32 v17, 4096, v17")
g("v_add_u32 v22, 4096, v22")
g("s_mul_i32 s5, s31, 40960")
g("s_mul_i32 s4, s30, 160")
g("s_add_u32 s35, s5, s4")
g("s_lshr_b32 s3, s2, 3")
g("s_lshl_b32 s3, s3, 2")
g("s_add_u32 s3, s3, s31")
g("v_mul_u32_u24 v7, 10, v52")
g("v_sub_u32 v7, v1, v7")
g("v_lshlrev_b32 v7, 7, v7")
g("v_lshl_add_u32 v6, v52, 7, s3")
g("v_mul_u32_u24 v35, 1280, v6")
g("v_add_u32 v35, v35, v7")
g("s_add_u32 s3, s30, 4")
g("s_lshl_b32 s3, s3, 2")
g("s_mov_b32 s6, 0x21043210")
g("s_mov_b32 s7, 0x04321043")
g("s_lshr_b64 s[6:7], s[6:7], s3")
g("s_and_b32 s3, s6, 7")
g("s_lshl_b32 s3, s3, 2")
g("s_add_u32 s3, s3, s78")
g("s_lshl_b32 s3, s3, 2")
g("s_add_u32 s3, s3, s31")
g(f"s_mul_i32 s3, s3, {8*3840}")
g("s_add_u32 s3, s3, s4")
g("s_add_u32 s3, s3, 1280")
g("v_lshrrev_b32 v6, 2, v1")
g("v_mul_u32_u24 v6, 3840, v6")
g("v_bfe_u32 v7, v1, 1, 1")
g("v_mul_u32_u24 v7, 1280, v7")
g("v_and_b32 v23, 1, v1")
g("v_mul_u32_u24 v23, 156, v23")
g("v_add3_u32 v6, v6, v7, v23")
if not opt['tl']:
    g("v_add_u32 v58, s3, v6")
def ptouch(lo=0, hi=41):
    setexec(0, 40)
    tload("buffer_load_dword v32, v252, s[8:11], s44 offen sc1")
    g("s_mov_b64 exec, 1")
    tload("buffer_load_dword v32, v51, s[24:27], s49 offen sc1")
    g("s_mov_b64 exec, -1")
def otouch():
    g("s_mul_i32 s88, s48, 2560")
    g("s_mul_i32 s89, s28, 1280")
    g("s_add_u32 s88, s88, s89")
    g("s_mul_i32 s89, s30, 160")
    g("s_add_u32 s88, s88, s89")
    g("v_lshrrev_b32 v254, 1, v1")
    g("v_mul_u32_u24 v254, 2560, v254")
    g("v_and_b32 v255, 1, v1")
    g("v_mul_u32_u24 v255, 156, v255")
    g("v_add_u32 v254, v254, v255")
    tload("buffer_load_dword v32, v254, s[20:23], s88 offen")
def ptouchA():
    g("s_cmp_eq_u32 s28, 1")
    br("s_cbranch_scc1 L_npt")
    with g.extra():
        ptouch()
        nv[0] -= 1
    g.label("L_npt")
def m2touch(b=0):
    if b == 0 or opt['pb'] == b:
        ptouch()
    if opt['po'] == 4:
        otouch()
def touch(va, base, n):
    setexec(0, n)
    tload(f"global_load_dword v32, {va}, {base}")
    g("s_mov_b64 exec, -1")
g("v_mul_u32_u24 v6, 160, v49")
g("v_mul_u32_u24 v7, 40, v50")
g("v_add_u32 v6, v6, v7")
g("v_mul_u32_u24 v7, 3200, v4")
g("v_add_u32 v28, v6, v7")
g("v_add_u32 v29, 51200, v28")
g("v_lshrrev_b32 v7, 1, v4")
g("v_mul_u32_u24 v7, 12800, v7")
g("v_add_u32 v6, v6, v7")
g("v_and_b32 v7, 1, v4")
g("v_mul_u32_u24 v7, 3200, v7")
g("v_add_u32 v30, v6, v7")
g("v_add_u32 v31, 51200, v30")
g("s_and_b32 s3, s30, 1")
g("s_mul_i32 s3, s3, 5120")
g("s_add_u32 s3, s3, 1024")
g("v_and_b32 v6, 1, v4")
g("v_mul_u32_u24 v6, 2560, v6")
g("v_lshl_add_u32 v6, v3, 4, v6")
g("v_lshrrev_b32 v7, 1, v4")
g("v_lshl_add_u32 v6, v7, 3, v6")
g("v_add_u32 v47, s3, v6")
g("v_mul_u32_u24 v6, 5120, v3")
g("v_mul_u32_u24 v7, 40, v4")
g("v_add_u32 v48, v6, v7")
g("s_lshl_b32 s3, s31, 5")
g(f"s_add_u32 s3, s3, {KVB}")
g(f"v_mul_u32_u24 v6, {HS}, v49")
g("v_mul_u32_u24 v7, 288, v50")
g("v_add_u32 v6, v6, v7")
g("v_lshl_add_u32 v6, v4, 3, v6")
g("v_add_u32 v37, s3, v6")
g("v_add_u32 v37, 16, v37")
g(f"v_mul_u32_u24 v23, {HS}, v4")
g("v_mul_u32_u24 v6, 288, v49")
g("v_add_u32 v6, v6, v23")
g("v_lshl_add_u32 v6, v50, 3, v6")
g("v_add_u32 v38, s3, v6")
g("v_add_u32 v6, v7, v23")
g("v_lshl_add_u32 v6, v49, 3, v6")
g("v_add_u32 v39, s3, v6")
g(f"v_add_u32 v39, {SECS}, v39")
g("s_lshl_b32 s3, s28, 4")
g("s_add_u32 s3, s3, s29")
g("s_lshl_b32 s3, s3, 2")
g("s_add_u32 s3, s3, s31")
g("s_mul_i32 s44, s48, 2560")
g("s_mul_i32 s4, s28, 1280")
g("s_add_u32 s44, s44, s4")
g("s_lshl_b32 s49, s3, 7")
g(f"s_add_u32 s49, s49, {WS_F}")
g("s_lshr_b32 s33, s3, 2")
g("s_lshl_b32 s33, s33, 7")
g(f"s_add_u32 s33, s33, {WS_F+0xC000}")
g("s_getreg_b32 s38, hwreg(HW_REG_XCC_ID, 0, 4)")
g("s_lshl_b32 s38, s38, 1")
g("s_mul_i32 s4, s30, 10240")
g("v_lshrrev_b32 v6, 3, v1")
g("v_mul_u32_u24 v6, 1536, v6")
g("v_lshl_add_u32 v6, v1, 7, v6")
g("v_add_u32 v252, s4, v6")
g("s_lshr_b32 s3, s30, 1")
g("s_mul_i32 s3, s3, 20480")
g("s_and_b32 s5, s30, 1")
g("s_mul_i32 s5, s5, 5120")
g("s_add_u32 s5, s5, s3")
g("s_add_u32 s5, s5, 1024")
g("v_and_b32 v6, 4, v1")
g("v_mul_u32_u24 v6, 2560, v6")
g("v_and_b32 v7, 2, v1")
g("v_mul_u32_u24 v7, 1280, v7")
g("v_add3_u32 v6, v6, v7, s5")
g("v_and_b32 v7, 1, v1")
g("v_lshl_add_u32 v6, v7, 7, v6")
g("v_cmp_gt_u32 vcc, 32, v1")
g("v_cndmask_b32 v252, v6, v252, vcc")
g("s_lshl_b32 s3, s29, 3")
g("s_add_u32 s3, s3, s30")
g("s_lshl_b32 s4, s3, 7")
g(f"s_add_u32 s4, s4, {WS_F+0x4000}")
g("s_mul_i32 s50, s3, 5120")
g(f"s_add_u32 s50, s50, {WS_H}")
g("s_lshl_b32 s5, s30, 8")
g("s_lshl_b32 s6, s31, 6")
g("s_add_u32 s5, s5, s6")
g(f"s_add_u32 s5, s5, {WS_F+0x8000}")
g("s_lshl_b32 s6, s29, 2")
g("s_add_u32 s6, s6, s5")
g("s_sub_u32 s3, s4, 1024")
g("s_cmp_eq_u32 s28, 0")
g("s_cselect_b32 s47, s4, s6")
g("s_cselect_b32 s57, s3, s5")
g("v_lshlrev_b32 v25, 2, v3")
g("v_mul_u32_u24 v25, s28, v25")
g("s_cmp_eq_u32 s31, 3")
g("s_cselect_b32 s51, 1, 0")
g("s_or_b32 s51, s51, s28")
g("s_cmp_eq_u32 s31, 0")
g("s_cselect_b32 s81, 1, 0")
g("s_cmp_lg_u32 s29, 0")
g("s_cselect_b32 s81, s81, 0")
g("s_or_b32 s81, s81, s28")
g(f"s_mov_b32 s52, 0x{LOG2E:08x}")
g(f"s_mov_b32 s53, 0x{EPS:08x}")
g("s_mov_b32 s82, s52")
g("s_mov_b32 s83, s52")
g("s_mov_b32 s86, s53")
g("s_mov_b32 s87, s53")
lstamp()
enqueue(t_ops(1) + x_ops(1) + dma_ops(1))
while queue:
    pop()
if opt['t5']:
    touch("v58", "s[12:13]", 32)
if opt['pts'] == 98:
    ptouch()
if opt['et']:
    setexec(0, opt['et'])
    tload("buffer_load_dword v32, v252, s[20:23], s44 offen")
    g("s_mov_b64 exec, -1")
enqueue(t_ops(2) + x_ops(2) + dma_ops(2) + dma_ops(3) + dma_ops(4))

frags = []
for st in range(15):
    for f in range(20):
        if st < 10:
            s, sec, t = f // 10, (f // 5) % 2, f % 5
            B = st
        else:
            sec, s, t = f // 10, (f // 5) % 2, f % 5
            B = 2 * (st - 10) + sec
        frags.append((st, f, s, sec, t, B))

NB = opt['nbuf']
def wreg(i):
    return 160 + 4 * (i % NB)

def issue_read(i, half=None):
    st, f, s, sec, t, B = frags[i]
    sl = st % 5
    imm = (sl % 3) * SLOT + s * 2560 + sec * 160
    if st < 10:
        va = f"v{184 + 2*t + (sl >= 3)}"
    else:
        va = "v26" if sl < 3 else "v27"
        imm += 8 * t
    b = wreg(i)
    if half in (None, 0):
        g(f"ds_read_b64_tr_b16 a[{b}:{b+1}], {va} offset:{imm}")
    if half in (None, 1):
        g(f"ds_read_b64_tr_b16 a[{b+2}:{b+3}], {va} offset:{imm+1280}")

D = opt['dist']
first = {}
def need(tag):
    while any(o.tag == tag for o in queue):
        pop()
    g.wait_tag(tag)

mark = [0]
lab = [0]
def spin_wait(load, test, what):
    n = lab[0]; lab[0] += 1
    g(f"s_mov_b32 s46, {SPIN}")
    g.label(f"L_spin{n}")
    with g.extra():
        load()
        g.force_wait(vm=0)
        test()
        br(f"s_cbranch_scc1 L_spun{n}")
        g("s_sleep 1")
        g("s_sub_u32 s46, s46, 1")
        g("s_cmp_lg_u32 s46, 0")
        br(f"s_cbranch_scc1 L_spin{n}")
    g.label(f"L_spun{n}")

def mid_test():
    g("v_cmp_eq_u32 vcc, s39, v36")
    g("s_cmp_eq_u64 vcc, -1")
def mid_loads(lbl):
    g("s_cmp_eq_u32 s28, 1")
    br(f"s_cbranch_scc1 L_mlb{lbl}")
    g("s_sub_u32 s3, s50, 40960")
    g("s_add_u32 s4, s3, 2560")
    g("v_subrev_u32 v6, 512, v46")
    g("s_mov_b32 exec_lo, 0")
    g.flush_hazards()
    for idx in range(10):
        d = 64 + idx * 4
        g.raw(f"  buffer_load_dwordx4 v[{d}:{d+3}], v6, s[24:27], {'s3' if idx < 5 else 's4'} offen offset:{(idx%5)*512} sc1")
    g("s_mov_b32 exec_lo, -1")
    br(f"s_branch L_mld{lbl}")
    g.label(f"L_mlb{lbl}")
    for k in range(8):
        g.raw(f"  buffer_load_dword v{64+k}, v51, s[24:27], s54 offen offset:{k*256} sc1")
    g.label(f"L_mld{lbl}")
    g("s_mov_b32 s81, 0")

def publish_mid():
    g.force_wait(vm=min(63, min(len(g.vm), nv[0] - mark[0])))
    g("s_cmp_eq_u32 s51, 0")
    br("s_cbranch_scc1 L_nof1")
    with g.extra():
        g("v_mov_b32 v6, s39")
        g("v_mov_b32 v7, 0")
        g("s_mov_b64 exec, 1")
        g("buffer_store_dword v6, v7, s[24:27], s47 offen sc1")
        g("s_mov_b64 exec, -1")
    g.label("L_nof1")

def run_phase(lo, hi, sid):
    st0 = frags[lo][0]
    if sid == 0:
        lflush()
        stamp()
    need(('w', st0))
    if sid == 0:
        need(('x', 0))
        x_read(0)
        enqueue(x_ops(3))
    g("s_barrier")
    stamp()
    for i in range(lo, lo + D):
        issue_read(i)
    for i in range(lo, hi):
        st, f, s, sec, t, B = frags[i]
        last = (i + 20 - f) >= hi
        if f == opt['barf']:
            if not last:
                need(('w', st + 1))
                if sid == 0:
                    need(('x', st + 1))
            if st == 4:
                g("v_readfirstlane_b32 s39, v36")
                g("s_cmp_lg_u32 s39, 0")
                br("s_cbranch_scc1 L_havetag")
                def _ld():
                    g("v_mov_b32 v7, 0")
                    g("buffer_load_dword v36, v7, s[40:43], 0 offen sc1")
                def _tst():
                    g("v_readfirstlane_b32 s39, v36")
                    g("s_cmp_lg_u32 s39, 0")
                spin_wait(_ld, _tst, "tag")
                g.label("L_havetag")
                g("s_cmp_lg_u32 s56, 0")
                br("s_cbranch_scc1 L_nozf")
                with g.extra():
                    g("v_mov_b32 v6, s39")
                    g("v_mov_b32 v7, 0")
                    g("s_mov_b64 exec, 1")
                    g("buffer_store_dword v6, v7, s[24:27], s55 offen sc1")
                    g("s_mov_b64 exec, -1")
                g.label("L_nozf")
                g("s_or_b32 s38, s38, s39")
                g("s_cmp_lg_u32 s31, 0")
                br("s_cbranch_scc1 L_noxg")
                with g.extra():
                    g("s_lshl_b32 s3, s30, 2")
                    g("v_mov_b32 v6, s38")
                    g("v_mov_b32 v7, s3")
                    g("s_mov_b64 exec, 1")
                    g("buffer_store_dword v6, v7, s[24:27], s33 offen sc1")
                    g("s_mov_b64 exec, -1")
                g.label("L_noxg")
            if st == opt['fst'] and opt['ff'] == opt['barf']:
                publish_mid()
            g("s_barrier")
            if opt['prof'] > 1:
                stamp()
            if sid == 0 and not last:
                x_read(st + 1)
            if st == 1:
                g("v_mov_b32 v7, 0")
                g("buffer_load_dword v36, v7, s[40:43], 0 offen sc1")
                nv[0] += 1
            if st == 8:
                g("v_mov_b32 v7, 0")
                g("buffer_load_dword v36, v7, s[24:27], s55 offen sc1")
                nv[0] += 1
            for s2 in range(5, 19):
                at = s2 - 4
                if 10 <= s2 <= 13:
                    at = max(at, opt['qd'])
                if s2 >= 15:
                    at = 10 + (opt['wat'] // 10 ** (18 - s2)) % 10
                if at == st:
                    enqueue(dma_ops(s2))
            if sid == 0 and st + 4 < 10:
                enqueue(x_ops(st + 4))
        for k in range(opt['ptn']):
            if i == opt['pts'] * 20 + opt['ptf'] + k * opt['ptd']:
                pass
        if st == opt['xst'] and f == 2:
            g("v_min_u32 v7, 28, v51")
            g("buffer_load_dword v33, v7, s[24:27], s33 offen sc1")
            nv[0] += 1
        if st == opt['fst'] and f == opt['ff'] and f != opt['barf']:
            publish_mid()
        if opt['early']:
            if st == opt['pst'] and f == opt['pf']:
                g("buffer_load_dword v36, v25, s[24:27], s57 offen sc1")
                nv[0] += 1
            if st == 14 and f == opt['cf2']:
                mid_test()
                g("s_cselect_b32 s3, s81, 0")
                g("s_cmp_eq_u32 s3, 0")
                br("s_cbranch_scc1 L_noearly")
                mid_loads(0)
                g.label("L_noearly")
        elif st == 14 and f == opt['cf']:
            g("buffer_load_dword v36, v25, s[24:27], s57 offen sc1")
            nv[0] += 1
        b = wreg(i)
        for p in range(2):
            if st < 10:
                acc = 64 + ((sec * 5 + t) * 2 + p) * 4
            else:
                acc = 144 + (t * 2 + p) * 4
            key = (sid, acc)
            c = f"v[{acc}:{acc+3}]" if key in first else "0"
            first[key] = 1
            if st < 10:
                g(f"v_mfma_f32_16x16x32_bf16 v[{acc}:{acc+3}], {xreg(B,s,p)}, a[{b}:{b+3}], {c}")
            else:
                g(f"v_mfma_f32_16x16x32_bf16 v[{acc}:{acc+3}], a[{b}:{b+3}], {xreg(B,s,p)}, {c}")
            if i + D < hi:
                if opt['order']:
                    issue_read(i + D, p)
                elif p == 0:
                    issue_read(i + D)
            if p == 1 and queue and (i % opt['dmagap'] == 0 or len(queue) > 9):
                pop()
    while queue:
        pop()

def phi(regs, tmp):
    n = len(regs)
    for k in range(0, n, 2):
        r, t = regs[k], tmp[k]
        g(f"v_pk_mul_f32 v[{t}:{t+1}], v[{r}:{r+1}], s[82:83]")
        g(f"v_pk_add_f32 v[{r}:{r+1}], v[{r}:{r+1}], 1.0 op_sel_hi:[1,0]")
    for r, t in zip(regs, tmp):
        g(f"v_exp_f32_e64 v{t}, v{t} clamp")
    for r, t in zip(regs, tmp):
        g(f"v_max_f32 v{r}, v{r}, v{t}")
    for k in range(0, n, 2):
        r = regs[k]
        g(f"v_pk_add_f32 v[{r}:{r+1}], v[{r}:{r+1}], s[86:87]")

run_phase(0, 200, 0)
stamp()
if opt['dg']:
    g.force_wait(vm=0)
    bstamp(9)
    if opt['dg'] == 1:
        ptouch()
    elif opt['dg'] == 2:
        touch("v35", "s[16:17]", 50)
    elif opt['dg'] == 3:
        setexec(0, 1)
        tload("buffer_load_dword v32, v59, s[24:27], 0 offen sc1")
        g("s_mov_b64 exec, -1")
    elif opt['dg'] == 4:
        setexec(0, 8)
        tload("buffer_load_dword v32, v59, s[24:27], 0 offen sc1")
        g("s_mov_b64 exec, -1")
    elif opt['dg'] == 5:
        setexec(0, 1)
        tload("buffer_load_dword v32, v59, s[24:27], 0 offen sc1")
        g("s_mov_b64 exec, -1")
        g.force_wait(vm=0)
        bstamp(9)
        ptouch()
    g.force_wait(vm=0)
    bstamp(10)
if opt['pts'] == 99:
    ptouch()
if opt['two']:
    touch("v35", "s[16:17]", 50)
if opt['pts'] == 100:
    ptouch()
if opt['po'] in (1, 2):
    g("s_mul_i32 s3, s48, 2560")
    g("s_mul_i32 s4, s28, 1280")
    g("s_add_u32 s3, s3, s4")
    g("s_mul_i32 s4, s30, 160")
    g("s_add_u32 s3, s3, s4")
    g("v_lshrrev_b32 v6, 1, v1")
    g("v_mul_u32_u24 v6, 2560, v6")
    g("v_and_b32 v7, 1, v1")
    g("v_mul_u32_u24 v7, 156, v7")
    g("v_add_u32 v6, v6, v7")
    if opt['po'] == 2:
        setexec(0, 1)
    tload("buffer_load_dword v32, v6, s[20:23], s3 offen")
    g("s_mov_b64 exec, -1")
g("s_cmp_eq_u32 s28, 1")
br("s_cbranch_scc1 L_m1b")
with g.extra():
    for sec in range(2):
        for t in range(5):
            idx = sec * 5 + t
            for p in range(2):
                a = 64 + (idx * 2 + p) * 4
                d = 184 + idx * 4 + 2 * p
                g(f"v_cvt_pk_bf16_f32 v{d}, v{a}, v{a+1}")
                g(f"v_cvt_pk_bf16_f32 v{d+1}, v{a+2}, v{a+3}")
            for p in range(2):
                d = 184 + idx * 4 + 2 * p
                g(f"ds_write_b64 v37, v[{d}:{d+1}] offset:{sec*SECS+t*1152+p*144}")
    bstamp(6)
    g("s_cmp_lg_u32 s31, 3")
    br("s_cbranch_scc1 L_nohalo")
    g("s_add_u32 s3, s50, 2560")
    g("v_subrev_u32 v6, 512, v46")
    g("s_mov_b32 exec_lo, 0")
    for idx in range(10):
        d = 184 + idx * 4
        g(f"buffer_store_dwordx4 v[{d}:{d+3}], v6, s[24:27], {'s50' if idx < 5 else 's3'} offen offset:{(idx%5)*512} sc1")
    g("s_mov_b32 exec_lo, -1")
    g.label("L_nohalo")
    g.force_wait(lg=0)
    br("s_branch L_m1done")
g.label("L_m1b")
with g.extra():
    g(f"s_mul_i32 s3, s31, {RS}")
    g(f"s_add_u32 s3, s3, {XBASE}")
    g("v_add_u32 v6, s3, v46")
    for idx in list(range(5, 10)) + list(range(5)):
        if idx == 0:
            for r in range(4):
                g(f"v_mov_b32 v{224+r}, 0x3f803f80")
            g("v_mov_b32 v7, s3")
            g("ds_write_b128 v7, v[224:227] offset:10240")
            phi(list(range(64, 104)), list(range(208, 248)))
        d = 184 + (idx % 5) * 4 + (0 if idx >= 5 else 0)
        d = 184 + (idx % 6) * 4
        for p in range(2):
            a = 64 + (idx * 2 + p) * 4
            g(f"v_cvt_pk_bf16_f32 v{d+2*p}, v{a}, v{a+1}")
            g(f"v_cvt_pk_bf16_f32 v{d+2*p+1}, v{a+2}, v{a+3}")
        g(f"ds_write_b128 v6, v[{d}:{d+3}] offset:{idx*1024}")
    bstamp(6)
    g("s_lshl_b32 s3, s31, 10")
    g(f"s_add_u32 s3, s3, {XBASE}")
    g("v_add_u32 v6, s3, v46")
    g("s_lshl_b32 s3, s31, 6")
    g(f"s_add_u32 s3, s3, {XBASE+4096}")
    g("v_lshlrev_b32 v7, 8, v4")
    g("v_lshl_add_u32 v7, v50, 4, v7")
    g("v_add_u32 v7, s3, v7")
    g("v_add_u32 v23, 5120, v7")
    g(f"v_mov_b32 v24, {XBASE+10240}")
    g("v_and_b32 v34, 4, v1")
    g("v_cmp_eq_u32 vcc, 0, v34")
    g("v_cndmask_b32 v23, v24, v23, vcc")
    g.force_wait(lg=0)
    g("s_barrier")
    bstamp(7)
    for w2 in range(4):
        b = 64 + w2 * 16
        g(f"ds_read_b128 v[{b}:{b+3}], v6 offset:{w2*RS}")
        g(f"ds_read_b128 v[{b+4}:{b+7}], v6 offset:{w2*RS+5120}")
        g(f"ds_read_b128 v[{b+8}:{b+11}], v23 offset:{w2*RS}")
        g(f"ds_read_b128 v[{b+12}:{b+15}], v7 offset:{w2*RS}")
    for w2 in range(4):
        b = 64 + w2 * 16
        pk, vh, b2, a2 = (f"v[{b+4*k}:{b+4*k+3}]" for k in range(4))
        for k, (A, Bo) in enumerate(((pk, vh), (pk, b2), (a2, vh), (a2, b2))):
            d = 184 + 4 * k
            c = f"v[{d}:{d+3}]" if w2 else "0"
            g(f"v_mfma_f32_16x16x32_bf16 v[{d}:{d+3}], {A}, {Bo}, {c}")
    g("v_readfirstlane_b32 s3, v36")
    g("s_cmp_eq_u32 s3, s39")
    br("s_cbranch_scc1 L_zok")
    def _ld():
        g("v_mov_b32 v7, 0")
        g("buffer_load_dword v36, v7, s[24:27], s55 offen sc1")
    def _tst():
        g("v_readfirstlane_b32 s3, v36")
        g("s_cmp_eq_u32 s3, s39")
    spin_wait(_ld, _tst, "zero")
    g.label("L_zok")
    bstamp(8)
    g("s_mov_b32 s4, 0x00ffff00")
    g("s_mov_b32 s5, 0")
    g("s_mov_b32 s6, 0")
    g("s_mov_b32 s7, 0xff00ff00")
    for r in range(4):
        g(f"buffer_atomic_add_f32 v{184+r}, v51, s[24:27], s54 offen offset:{r*256} sc1")
    for r in range(4):
        g(f"v_cndmask_b32 v{188+r}, v{188+r}, v{192+r}, s[4:5]")
        g(f"v_cndmask_b32 v{188+r}, v{188+r}, v{196+r}, s[6:7]")
    for r in range(4):
        g(f"buffer_atomic_add_f32 v{188+r}, v51, s[24:27], s54 offen offset:{1024+r*256} sc1")
g.label("L_m1done")
mark[0] = nv[0]
stamp()
run_phase(200, 300, 1)
g("s_barrier")
nlate = [0]
def late_wo():
    n0 = nv[0]
    late_wo2()
    if opt['lw']:
        nlate[0] = nv[0] - n0
def late_wo2():
    for s2 in range(15, 19):
        if (opt['wat'] // 10 ** (18 - s2)) % 10 == 5:
            enqueue(dma_ops(s2))
    enqueue(dma_ops(19))
    while queue:
        pop()
if not opt['lw']:
    late_wo()
stamp()
def xg_test():
    g("v_and_b32 v6, 0xffffffe1, v33")
    g("v_cmp_eq_u32 vcc, s39, v6")
    g("s_cmp_eq_u64 vcc, -1")
xg_test()
br("s_cbranch_scc1 L_xgok")
def _ld():
    g("v_min_u32 v7, 28, v51")
    g("buffer_load_dword v33, v7, s[24:27], s33 offen sc1")
spin_wait(_ld, xg_test, "xg")
g.label("L_xgok")
g("v_cmp_eq_u32 vcc, s38, v33")
g("s_cmp_eq_u64 vcc, -1")
g("s_cselect_b32 s80, 1, 0")
if opt['ob']:
    g("s_cselect_b32 s8, s20, s24")
    g("s_cselect_b32 s9, s21, s25")
else:
    g("s_mov_b32 s8, s24")
    g("s_mov_b32 s9, s25")
g("s_mov_b32 s10, 5242880")
g("s_cmp_eq_u32 s81, 0")
br("s_cbranch_scc1 L_midok")
if not opt['early']:
    mid_test()
    br("s_cbranch_scc1 L_midgo")
def _ld():
    g("buffer_load_dword v36, v25, s[24:27], s57 offen sc1")
spin_wait(_ld, mid_test, "mid")
g.label("L_midgo")
mid_loads(1)
g.label("L_midok")
if opt['lw']:
    late_wo()
bstamp(0)
g("s_cmp_eq_u32 s28, 1")
br("s_cbranch_scc1 L_m2b")
with g.extra():
    g("s_or_b32 s3, s29, s31")
    g("s_cmp_lg_u32 s3, 0")
    br("s_cbranch_scc1 L_halo1")
    for r in range(40):
        g(f"v_mov_b32 v{64+r}, 0")
    g.label("L_halo1")
    for t in range(5):
        for p in range(2):
            a = 144 + (t * 2 + p) * 4
            d = 184 + (p * 5 + t) * 2
            g(f"v_cvt_pk_bf16_f32 v{d}, v{a}, v{a+1}")
            g(f"v_cvt_pk_bf16_f32 v{d+1}, v{a+2}, v{a+3}")
    if opt['pa'] == 1:
        ptouch()
    g("s_cmp_eq_u32 s3, 0")
    g("s_cselect_b32 s4, 0, 64")
    g(f"v_mov_b32 v6, 0x{NEG:08x}")
    g("v_lshlrev_b32 v7, 2, v49")
    g("v_add_u32 v7, s4, v7")
    for c in range(3):
        for r in range(4):
            d = 52 + c * 4 + r
            if c == 0:
                g(f"v_cmp_le_u32 vcc, {r}, v50")
                g(f"v_cndmask_b32 v{d}, v6, 0, vcc")
            elif c == 1:
                g(f"v_cmp_le_u32 vcc, {4-r}, v7")
                g(f"v_cndmask_b32 v{d}, v6, 0, vcc")
            else:
                g(f"v_cmp_le_u32 vcc, {8-r}, v7")
                g(f"v_cndmask_b32 v{d}, v6, 0, vcc")
                g(f"v_cmp_gt_u32 vcc, {r}, v50")
                g(f"v_cndmask_b32 v{d}, v6, v{d}, vcc")
    g("v_mov_b32 v240, 0x3f803f80")
    g("v_mov_b32 v241, 0x3f803f80")
    g(f"s_mov_b32 s4, 0x{SCL:08x}")
    g("s_cmp_lg_u32 s31, 0")
    br("s_cbranch_scc1 L_halodone")
    g("v_subrev_u32 v23, 32, v37")
    g.force_wait(vm=nlate[0] + 2 * (opt['pa'] == 1))
    g("s_mov_b32 exec_lo, 0")
    for sec in range(2):
        for t in range(5):
            idx = sec * 5 + t
            for p in range(2):
                d = 64 + idx * 4 + 2 * p
                g(f"ds_write_b64 v23, v[{d}:{d+1}] offset:{sec*SECS+t*1152+p*144}")
    g("s_mov_b32 exec_lo, -1")
    g.force_wait(lg=0)
    g.label("L_halodone")
    if opt['pa'] == 0:
        m2touch()
    bstamp(1)
    def kreg(p, c, t):
        b = ((p * 3 + c) * 5 + t) * 2
        return f"a[{b}:{b+1}]"
    def vreg(p, c, t):
        b = 60 + ((p * 3 + c) * 5 + t) * 2
        return f"a[{b}:{b+1}]"
    for t in range(5):
        for p in range(2):
            for c in range(3):
                g(f"ds_read_b64_tr_b16 {kreg(p,c,t)}, v38 offset:{t*1152+p*144+16-8*c}")
    for t in range(5):
        for p in range(2):
            for c in range(3):
                g(f"ds_read_b64 {vreg(p,c,t)}, v39 offset:{t*1152+p*144+16-8*c}")
    for t in range(5):
        for p in range(2):
            for c in range(3):
                s = 204 + (p * 3 + c) * 4
                q = 184 + (p * 5 + t) * 2
                cc = f"v[{52+4*c}:{55+4*c}]" if t == 0 else f"v[{s}:{s+3}]"
                g(f"v_mfma_f32_4x4x4_16b_bf16 v[{s}:{s+3}], {kreg(p,c,t)}, v[{q}:{q+1}], {cc}")
    bstamp(2)
    for p in range(2):
        s = 204 + p * 12
        m = 242 + p * 4
        for k in range(4):
            g(f"v_max3_f32 v{m+k}, v{s+3*k}, v{s+3*k+1}, v{s+3*k+2}")
        g(f"v_max3_f32 v{m}, v{m}, v{m+1}, v{m+2}")
        g(f"v_max_f32 v{m}, v{m}, v{m+3}")
        g(f"v_mul_f32 v{m}, s4, v{m}")
    for p in range(2):
        s = 204 + p * 12
        m = 242 + p * 4
        for k in range(12):
            g(f"v_fma_f32 v{s+k}, v{s+k}, s4, -v{m}")
        for k in range(12):
            g(f"v_exp_f32 v{s+k}, v{s+k}")
    for p in range(2):
        s = 204 + p * 12
        for k in range(6):
            g(f"v_cvt_pk_bf16_f32 v{228+p*6+k}, v{s+2*k}, v{s+2*k+1}")
    bstamp(3)
    for c in range(3):
        for p in range(2):
            pr = 228 + (p * 3 + c) * 2
            for t in range(6):
                o = 64 + (p * 6 + t) * 4
                a = vreg(p, c, t) if t < 5 else "v[240:241]"
                cc = "0" if c == 0 else f"v[{o}:{o+3}]"
                g(f"v_mfma_f32_4x4x4_16b_bf16 v[{o}:{o+3}], {a}, v[{pr}:{pr+1}], {cc}")
    if opt['own']:
        g.force_wait(vm=2)
        g("s_barrier")
    br("s_branch L_m2done")
g.label("L_m2b")
with g.extra():
    if opt['pb'] == 3:
        ptouch()
    phi(list(range(144, 184)), list(range(184, 224)))
    if opt['pb'] == 2:
        ptouch()
    for t in range(5):
        for p in range(2):
            a = 144 + (t * 2 + p) * 4
            g(f"v_cvt_pk_bf16_f32 v{a}, v{a}, v{a+1}")
            g(f"v_cvt_pk_bf16_f32 v{a+1}, v{a+2}, v{a+3}")
    g("s_lshl_b32 s3, s31, 5")
    g(f"s_add_u32 s3, s3, {KVF}")
    g("v_lshl_add_u32 v6, v50, 3, s3")
    g("v_mul_u32_u24 v7, 768, v4")
    g("v_lshl_add_u32 v23, v49, 7, v6")
    g("v_add_u32 v23, v23, v7")
    g("s_mov_b32 s4, 0x00ffff00")
    g("s_mov_b32 s5, 0xff00ff00")
    g("v_mov_b32 v24, 3072")
    g("v_cndmask_b32 v7, v7, v24, s[4:5]")
    g("v_and_b32 v24, 1, v49")
    g("v_add_u32 v24, 4, v24")
    g("s_mov_b32 s5, 0")
    g("v_cndmask_b32 v24, v24, v49, s[4:5]")
    g("v_lshl_add_u32 v24, v24, 7, v6")
    g("v_add_u32 v24, v24, v7")
    g("v_lshl_add_u32 v7, v4, 2, v50")
    g("v_lshlrev_b32 v7, 3, v7")
    g(f"v_add_u32 v7, {KVF}, v7")
    bstamp(1)
    g.force_wait(vm=nlate[0] + 2 * (opt['pb'] in (2, 3)))
    if opt['pb'] == 4:
        ptouch()
    bstamp(2)
    for k in range(4):
        g(f"v_cvt_pk_bf16_f32 v{72+k}, v{64+2*k}, v{65+2*k}")
    g("ds_write_b64 v23, v[72:73]")
    g("ds_write_b64 v24, v[74:75]")
    g.force_wait(lg=0)
    g("s_barrier")
    m2touch(1)
    bstamp(3)
    for T in range(30):
        g(f"ds_read_b64 a[{2*T}:{2*T+1}], v7 offset:{T*128}")
    for t in range(5):
        for t2 in range(6):
            T = t * 6 + t2
            for p in range(2):
                o = 64 + (p * 6 + t2) * 4
                q = 144 + (t * 2 + p) * 4
                cc = "0" if t == 0 else f"v[{o}:{o+3}]"
                g(f"v_mfma_f32_4x4x4_16b_bf16 v[{o}:{o+3}], a[{2*T}:{2*T+1}], v[{q}:{q+1}], {cc}")
    for p in range(2):
        o = 64 + (p * 6 + 5) * 4
        g(f"v_add_f32 v{o}, s53, v{o}")
g.label("L_m2done")
bstamp(4)
p3 = []
for i8 in range(8):
    for qq in range(2):
        for t in range(5):
            p3.append((i8, qq, t))
for j in range(4):
    for t in range(5):
        p3.append((8, j, t))
def p3_read(i, half=None):
    i8, qq, t = p3[i]
    b = wreg(i)
    if i8 < 8:
        va = f"v{196+i8}"
        imm = qq * 1280 + 8 * t
        d2 = 640
    else:
        va = "v30" if qq < 2 else "v31"
        imm = (160 * (qq & 1) + 16) * 160 + 8 * t
        d2 = 6400
    if half in (None, 0):
        g(f"ds_read_b64_tr_b16 a[{b}:{b+1}], {va} offset:{imm}")
    if half in (None, 1):
        g(f"ds_read_b64_tr_b16 a[{b+2}:{b+3}], {va} offset:{imm+d2}")
def p3_addr(i8):
    g(f"s_add_u32 s3, s30, {i8}")
    g("s_and_b32 s3, s3, 7")
    g("s_mul_i32 s4, s3, 12800")
    g(f"s_mul_i32 s{58+i8}, s3, 10240")
    g(f"v_add_u32 v{196+i8}, s4, v28")
    g(f"s_add_u32 s{58+i8}, s{58+i8}, s44")
for p in range(2):
    o = 64 + (p * 6 + 5) * 4
    g(f"v_rcp_f32 v{o}, v{o}")
p3_addr(0)
if opt['own'] == 1:
    p3_addr(1)
    for i in range(D):
        p3_read(i)
g("v_add_u32 v253, 5120, v46")
g("s_lshr_b32 s3, s30, 1")
g("s_mul_i32 s3, s3, 20480")
g("s_add_u32 s3, s3, s44")
g("s_add_u32 s4, s3, 10240")
g("s_lshl_b32 s5, s30, 2")
g("s_add_u32 s5, s5, s49")
for p in range(2):
    dn = 64 + (p * 6 + 5) * 4
    for t in range(5):
        o = 64 + (p * 6 + t) * 4
        for r in range(0, 4, 2):
            g(f"v_pk_mul_f32 v[{o+r}:{o+r+1}], v[{o+r}:{o+r+1}], v[{dn}:{dn+1}] op_sel_hi:[1,0]")
        d = 112 + p * 10 + 2 * t
        g(f"v_cvt_pk_bf16_f32 v{d}, v{o}, v{o+1}")
        g(f"v_cvt_pk_bf16_f32 v{d+1}, v{o+2}, v{o+3}")
g("v_mov_b32 v6, s39")
g("v_mov_b32 v7, 0")
nol = [0]
NOL = 36 if opt['own'] else 40
KO = 40 - NOL
def o_load():
    k = nol[0]; nol[0] += 1
    kk = k + KO
    if kk < 32:
        i8, bb = kk // 4, kk % 4
        g(f"buffer_load_dwordx4 a[{4*k}:{4*k+3}], {'v253' if bb >= 2 else 'v46'}, s[8:11], s{58+i8} offen offset:{(bb&1)*2560} sc1")
    else:
        if kk == 32:
            g("s_mov_b32 s3, s44")
        else:
            g("s_add_u32 s3, s3, 10240")
        g(f"buffer_load_dwordx4 a[{4*k}:{4*k+3}], v251, s[8:11], s3 offen sc1")
def p3_step(i):
    i8, qq, t = p3[i]
    ks = i // 5
    b = wreg(i)
    for p in range(2):
        acc = 144 + (t * 2 + p) * 4
        c = "0" if ks == 0 else f"v[{acc}:{acc+3}]"
        if opt['own'] and i8 == 0:
            o = 112 + p * 10 + 4 * qq
            ob_ = f"v[{o}:{o+3}]"
        else:
            k = ks * 2 + p - KO
            assert k < nol[0]
            ob_ = f"a[{4*k}:{4*k+3}]"
        g(f"v_mfma_f32_16x16x32_bf16 v[{acc}:{acc+3}], a[{b}:{b+3}], {ob_}, {c}")
        if i + D < 100 and not (opt['dyn'] and i < 10 <= i + D):
            p3_read(i + D, p)
        if opt['dyn'] and nol[0] >= 4 * opt['n1']:
            if p == 1 and i >= opt['ci'] and nol[0] < NOL:
                o_load()
        elif p == 1 and nol[0] and i % opt['og'] == 0 and nol[0] < NOL:
            o_load()
def o_stores(OSC):
    for p in range(2):
        d = 112 + p * 10
        g(f"buffer_store_dwordx4 v[{d}:{d+3}], v46, s[8:11], s58 offen offset:{p*2560} {OSC}", tag='o')
        g(f"buffer_store_dwordx4 v[{d+4}:{d+7}], v253, s[8:11], s58 offen offset:{p*2560} {OSC}", tag='o')
        g(f"buffer_store_dwordx2 v[{d+8}:{d+9}], v47, s[8:11], {'s4' if p else 's3'} offen {OSC}", tag='o')
def o_flag(OSC):
    g("s_mov_b64 exec, 1")
    g(f"buffer_store_dword v6, v7, s[24:27], s5 offen {OSC}")
    g("s_mov_b64 exec, -1")
def both(fn, n):
    g("s_cmp_eq_u32 s80, 0")
    br(f"s_cbranch_scc1 L_slow{n}")
    with g.extra():
        fn('')
        br(f"s_branch L_pub{n}")
    g.label(f"L_slow{n}")
    fn('sc1')
    g.label(f"L_pub{n}")
def p3_pick(i8):
    g("s_ff1_i32_b32 s3, s68")
    g("s_bitset0_b32 s68, s3")
    g("s_and_b32 s3, s3, 7")
    g("s_mul_i32 s4, s3, 12800")
    g(f"s_mul_i32 s{58+i8}, s3, 10240")
    g(f"v_add_u32 v{196+i8}, s4, v28")
    g(f"s_add_u32 s{58+i8}, s{58+i8}, s44")
def poll_o():
    g("buffer_load_dword v36, v25, s[24:27], s49 offen sc1")
def dyn_test():
    g("v_cmp_eq_u32 vcc, s39, v36")
    g("s_and_b32 s68, vcc_lo, s69")
    g("s_bcnt1_i32_b32 s3, s68")
    g(f"s_cmp_ge_u32 s3, {opt['n1']}")
if opt['dyn']:
    assert opt['own'] == 2
    I0 = 10
    g("v_min_u32 v25, 28, v51")
    g("v_mov_b32 v36, 0")
    g("s_movk_i32 s69, 0xff")
    g("s_bitset0_b32 s69, s30")
    g("s_mov_b32 s70, 0")
    poll_o()
    both(o_stores, 0)
    bstamp(5)
    for i in range(D):
        p3_read(i)
    for i in range(I0):
        p3_step(i)
    dyn_test()
    br("s_cbranch_scc1 L_dgo")
    with g.extra():
        g.force_wait(vm=0)
        both(o_flag, 1)
        g("s_mov_b32 s70, 1")
        spin_wait(poll_o, dyn_test, "some")
    g.label("L_dgo")
    stamp()
    g("s_andn2_b32 s3, s69, s68")
    g("s_lshl_b32 s3, s3, 8")
    g("s_or_b32 s68, s68, s3")
    assert opt['oa'] == 8
    for i8 in (1, 2):
        p3_pick(i8)
        for k in range(4):
            o_load()
    g("s_cmp_lg_u32 s70, 0")
    br("s_cbranch_scc1 L_dfl")
    with g.extra():
        g.force_wait(vm=8)
        both(o_flag, 2)
    g.label("L_dfl")
    for i in range(I0, I0 + D):
        p3_read(i)
    for i8 in range(3, 8):
        p3_pick(i8)
    g("s_mul_i32 s79, s31, 5632")
    g(f"s_add_u32 s79, s79, {XBASE}")
else:
    both(o_stores, 0)
    bstamp(5)
    if opt['own'] != 1:
        if opt['own']:
            for i in range(D):
                p3_read(i)
        p3_addr(1)
    I0 = 10 if opt['own'] else 0
    for i in range(I0):
        p3_step(i)
    g.force_wait(vm=0)
    both(o_flag, 1)
    stamp()
    g("s_barrier")
    for i8 in range(2, 8):
        p3_addr(i8)
    if not opt['own']:
        for i in range(D):
            p3_read(i)
g("v_mul_u32_u24 v251, 2304, v4")
g("v_add_u32 v251, v251, v46")
g("v_add_u32 v251, 1024, v251")
if opt['tr']:
    g("v_mul_u32_u24 v23, 6554, v1")
    g("v_add_u32 v7, s79, v46")
    g("s_movk_i32 s3, 4960")
    g("s_mov_b32 s4, 79360")
    for i in range(5):
        if i:
            g(f"v_add_u32 v195, {64*i*6554}, v23")
        g(f"v_lshrrev_b32 v195, 16, {'v195' if i else 'v23'}")
        g(f"v_lshl_add_u32 v{184+i}, v195, 4, v7")
        g(f"v_mad_u32_u24 v{189+i}, v195, s3, v46")
        if i == 2:
            g("v_lshrrev_b32 v195, 4, v195")
            g("v_mul_u32_u24 v195, s4, v195")
            g(f"v_sub_u32 v{189+i}, v{189+i}, v195")
        elif i > 2:
            g(f"v_subrev_u32 v{189+i}, {79360 - (4096 if i == 4 else 0)}, v{189+i}")
    g("v_mul_u32_u24 v194, 176, v3")
    g("v_mul_u32_u24 v195, 40, v4")
    g("v_add3_u32 v194, v194, v195, s79")
g("v_min_u32 v7, 28, v51")
if not opt['dyn']:
    def _ld():
        g("buffer_load_dword v36, v7, s[24:27], s49 offen sc1")
    spin_wait(_ld, mid_test, "o")
    g.force_wait(vm=0)
    stamp()
    for k in range(opt['oa']):
        o_load()
else:
    stamp()
for i in range(I0, 100):
    if opt['dyn'] and i == opt['p2']:
        poll_o()
    if opt['dyn'] and i == opt['ci']:
        bstamp(12)
        mid_test()
        br("s_cbranch_scc1 L_dall")
        spin_wait(poll_o, mid_test, "all")
        g.label("L_dall")
        bstamp(13)
    if opt['ob'] and i == opt['li']:
        assert nol[0] == NOL
        g.force_wait(vm=0)
        bstamp(9)
        g("s_mov_b64 exec, 1")
        g("buffer_store_dword v6, v51, s[24:27], s5 offen offset:32")
        g("s_mov_b64 exec, -1")
    if opt['ob'] and i == opt['pi']:
        g("buffer_load_dword v36, v7, s[24:27], s49 offen offset:32 sc1")
    p3_step(i)
stamp()
g("s_mul_i32 s3, s48, 2560")
g("s_mul_i32 s4, s28, 1280")
g("s_add_u32 s3, s3, s4")
g("s_mul_i32 s4, s30, 160")
g("s_add_u32 s3, s3, s4")
for p in range(2 if opt['tr'] else 0):
    for t in range(5):
        a = 144 + (t * 2 + p) * 4
        d = 112 + p * 10 + 2 * t
        g(f"v_cvt_pk_bf16_f32 v{d}, v{a}, v{a+1}")
        g(f"v_cvt_pk_bf16_f32 v{d+1}, v{a+2}, v{a+3}")
        g(f"ds_write_b64 v194, v[{d}:{d+1}] offset:{p*2816+8*t}")
    for i in ((0, 1), (2, 3, 4))[p]:
        g(f"ds_read_b128 v[{64+4*i}:{67+4*i}], v{184+i} offset:{1024*i}")
if opt['ob']:
    bstamp(10)
    mid_test()
    g("s_cselect_b32 s4, 0, s80")
    g("s_cmp_eq_u32 s4, 0")
    br("s_cbranch_scc1 L_rdok")
    def _ld():
        g("buffer_load_dword v36, v7, s[24:27], s49 offen offset:32 sc1")
    spin_wait(_ld, mid_test, "read")
    g.label("L_rdok")
    bstamp(11)
FS = {0: '', 1: ' sc1', 2: ' nt', 3: ' sc0 sc1', 4: ' sc1 nt', 5: ' sc0 sc1 nt', 6: ' sc0'}[opt['fs']]
for i in range(5 if opt['tr'] else 0):
    g(f"buffer_store_dwordx4 v[{64+4*i}:{67+4*i}], v{189+i}, s[20:23], s3 offen offset:{1024*(i&3)}{FS}")
for p in range(0 if opt['tr'] else 2):
    for t in range(5):
        a = 144 + (t * 2 + p) * 4
        d = 112 + p * 10 + 2 * t
        g(f"v_cvt_pk_bf16_f32 v{d}, v{a}, v{a+1}")
        g(f"v_cvt_pk_bf16_f32 v{d+1}, v{a+2}, v{a+3}")
    d = 112 + p * 10
    if opt['xo'] == 1:
        continue
    if opt['xo'] == 6:
        if p == 0:
            g("v_mul_u32_u24 v6, 2560, v3")
            g("v_mul_u32_u24 v7, 40, v4")
            g("v_add_u32 v6, v6, v7")
            g("s_add_u32 s3, s44, s4")
        g(f"buffer_store_dwordx4 v[{d}:{d+3}], v6, s[24:27], s3 offen offset:{p*1280}")
        g(f"buffer_store_dwordx4 v[{d+4}:{d+7}], v6, s[24:27], s3 offen offset:{p*1280+16}")
        g(f"buffer_store_dwordx2 v[{d+8}:{d+9}], v6, s[24:27], s3 offen offset:{p*1280+32}")
        continue
    if opt['xo'] in (7, 8):
        if p == 1:
            rs = 2560 if opt['xo'] == 7 else 1280
            g(f"s_movk_i32 s5, {rs-160}")
            if opt['xo'] == 8:
                g("s_add_u32 s3, s44, s4")
            for i in range(5):
                g(f"v_add_u32 v6, {64*i}, v1")
                g("v_mul_u32_u24 v7, 6554, v6")
                g("v_lshrrev_b32 v7, 16, v7")
                g("v_lshlrev_b32 v6, 4, v6")
                g("v_mad_u32_u24 v6, v7, s5, v6")
                g(f"buffer_store_dwordx4 v[{112+4*i}:{115+4*i}], v6, {'s[20:23]' if opt['xo'] == 7 else 's[24:27]'}, s3 offen")
        continue
    OM = {0: '', 2: ' sc1', 3: ' nt', 4: ' sc0 sc1', 5: ' sc1 nt'}[opt['xo']]
    g(f"buffer_store_dwordx4 v[{d}:{d+3}], v48, s[20:23], s3 offen offset:{p*2560}{OM}")
    g(f"buffer_store_dwordx4 v[{d+4}:{d+7}], v48, s[20:23], s3 offen offset:{p*2560+16}{OM}")
    g(f"buffer_store_dwordx2 v[{d+8}:{d+9}], v48, s[20:23], s3 offen offset:{p*2560+32}{OM}")
if opt['prof']:
    g.force_wait(vm=0)
    stamp()
    g("s_memrealtime s[88:89]")
    g.wait_lg(0)
    g("v_writelane_b32 v5, s92, 62")
    g("v_writelane_b32 v5, s88, 63")
    g("s_lshl_b32 s3, s2, 2")
    g("s_add_u32 s3, s3, s31")
    g("s_lshl_b32 s3, s3, 8")
    g(f"s_add_u32 s3, s3, {WS_P}")
    g("buffer_store_dword v5, v51, s[24:27], s3 offen")
g.label("L_end")
g("s_endpgm")
g.raw(f""".section .rodata,"a"
.p2align 6
.amdhsa_kernel {NAME}
  .amdhsa_next_free_vgpr 512
  .amdhsa_next_free_sgpr 102
  .amdhsa_accum_offset 256
  .amdhsa_group_segment_fixed_size 0
  .amdhsa_kernarg_size 72
  .amdhsa_user_sgpr_count 2
  .amdhsa_user_sgpr_kernarg_segment_ptr 1
  .amdhsa_system_sgpr_workgroup_id_x 1
.end_amdhsa_kernel""")
sys.stdout.write(g.text())
sys.stderr.write(f"bytes~{g.nbytes} stats={g.stats}\n")
```

```python
import sys
from asmgen import Asm

opt = dict(dist=6, nbuf=8, dmagap=2, barf=14, prof=0, fst=11, cf=4, brx=1, t5=1, tq=-1, qd=0, two=1,
           order=1, early=0, pst=13, pf=8, cf2=6, ff=14, nb=0, pts=11, ptf=16, ptn=1, ptd=20, po=0, fo=1, xst=12, pa=0, dg=0, wat=1234, lw=0, rot=1, tl=0, t0=0, tmax=14, te=1, sch=3034, qa=5, qn=1, oa=6, og=2, xo=0, tr=1, pb=2, ob=1, own=1, li=84, pi=95, nx=1, fs=0, et=0, dyn=0, n1=4, ci=32, p2=24, e1=0, e2=0, adl=0, ad2=0, ra=0, r2=0)
for a in sys.argv[1:]:
    k, v = a.split('=')
    opt[k] = int(v)

NAME = "concat_heads__sliding_local_dilated__linear_attn_block__prompt_kernel"
SLOT = 20544
XBASE = 5 * SLOT
KVB = XBASE
HS = 5768
SECS = 4 * HS
RS = 10304
KVF = XBASE + 4 * RS
WS_O, WS_H, WS_K, WS_F, WS_P = 0, 0x500000, 0x600000, 0x700000, 0x800000
SPIN = 1 << 14
LOG2E = 0x3FB8AA3B
SCL = 0x3EA52B5C
EPS = 0x358637BD
NEG = 0xF149F2CA

g = Asm()
def br(text):
    g.flush_hazards()
    g(text)
g.raw("; fused kernel: 256 workgroups = 2 branches x 16 row tiles x 8 head groups")
g.raw("; @launch grid=(256,1,1) block=(256,1,1) lds=163840")
g.raw('.amdgcn_target "amdgcn-amd-amdhsa--gfx950"')
g.raw(f".text\n.globl {NAME}\n.p2align 8\n.type {NAME},@function\n{NAME}:")

nstamp = [0]
lst = []
def lstamp():
    if opt['prof'] > 2:
        r = 100 - 2 * len(lst)
        lst.append(r)
        g.raw(f"  s_memtime s[{r}:{r+1}]")
def lflush():
    if opt['prof'] > 2:
        g.raw("  s_waitcnt lgkmcnt(0)")
        for r in lst:
            k = nstamp[0]; nstamp[0] += 1
            g(f"s_sub_u32 s88, s{r}, s90")
            g(f"v_writelane_b32 v5, s88, {k}")
def stamp():
    if opt['prof']:
        k = nstamp[0]; nstamp[0] += 1
        g("s_memtime s[88:89]")
        g.wait_lg(0)
        g("s_sub_u32 s88, s88, s90")
        g(f"v_writelane_b32 v5, s88, {k}")
def bstamp(k):
    if opt['prof'] > 3:
        g("s_memtime s[88:89]")
        g.wait_lg(0)
        g("s_sub_u32 s88, s88, s90")
        g(f"v_writelane_b32 v5, s88, {32+k}")
def tload(text):
    g(text)
    g.vm[-1] = (None, set())
    nv[0] += 1
def setexec(lo, hi):
    m = ((1 << hi) - 1) & ~((1 << lo) - 1)
    g(f"s_mov_b32 exec_lo, 0x{m & 0xffffffff:x}")
    g(f"s_mov_b32 exec_hi, 0x{m >> 32:x}")
nv = [0]

if opt['prof']:
    g("s_memrealtime s[92:93]")
    g("s_memtime s[90:91]")
g("s_cmp_ge_u32 s2, 256")
br("s_cbranch_scc1 L_end")
g("s_bfe_u32 s28, s2, 0x10002")
if opt['brx']:
    g("s_xor_b32 s28, s28, 1")
g("s_mul_i32 s5, s28, 24")
g("s_add_u32 s6, s0, s5")
g("s_addc_u32 s7, s1, 0")
g("s_load_dwordx2 s[8:9], s[6:7], 0")
g("s_load_dwordx2 s[12:13], s[6:7], 8")
g("s_load_dwordx2 s[16:17], s[6:7], 16")
g("s_load_dwordx2 s[20:21], s[0:1], 48")
g("s_load_dwordx2 s[40:41], s[0:1], 56")
g("s_load_dwordx2 s[24:25], s[0:1], 64")
g("s_getpc_b64 s[86:87]")
g.raw("L_pc0:")
g("s_bfe_u32 s30, s2, 0x30003")
g("s_lshl_b32 s3, s30, 12")
g("v_lshlrev_b32 v6, 4, v0")
g("v_add_u32 v6, s3, v6")
g("v_min_u32 v6, L_end-L_pc0-16, v6")
tload("global_load_dwordx4 v[60:63], v6, s[86:87]")
g("v_and_b32 v1, 63, v0")
g("v_lshrrev_b32 v2, 6, v0")
g("s_and_b32 s3, s2, 3")
g("v_readfirstlane_b32 s31, v2")
g("s_lshl_b32 s3, s3, 2")
g("s_lshr_b32 s78, s2, 6")
g("s_add_u32 s29, s3, s78")
if opt['rot'] == 1:
    g("s_add_u32 s3, s30, s78")
elif opt['rot'] == 0:
    g("s_mov_b32 s3, 0")
elif opt['rot'] == 2:
    g("s_mov_b32 s3, s78")
elif opt['rot'] == 3:
    g("s_mov_b32 s3, s30")
elif opt['rot'] == 4:
    g("s_add_u32 s3, s30, s78")
    g("s_and_b32 s3, s3, 1")
g("s_lshl_b32 s3, s3, 2")
g("s_mov_b32 s84, 0x21043210")
g("s_mov_b32 s85, 0x04321043")
g("s_lshr_b64 s[84:85], s[84:85], s3")
def T_kv(lo, n):
    assert n <= 6
    g(f"s_mov_b32 s3, {lo*64*3840}")
    setexec(0, 10 * n)
    tload("buffer_load_dword v32, v57, s[12:15], s3 offen")
    setexec(0, 4 * n)
    tload(f"buffer_load_dword v32, v58, s[8:11], 0 offen offset:{128*lo}")
    g("s_mov_b64 exec, -1")
def T_q(lo, n):
    setexec(10 * lo, 10 * (lo + n))
    tload("buffer_load_dword v32, v34, s[12:15], 0 offen")
    g("s_mov_b64 exec, -1")
tsch = {}
if opt['tl']:
    nxt = 0 if opt['t0'] else 1
    for k, c in enumerate(str(opt['sch'])):
        n = min(int(c), 10 - nxt)
        if n:
            tsch.setdefault(k, []).append(lambda lo=nxt, n=n: T_kv(lo, n))
        nxt += n
    assert nxt == 10
    for b in range(0, 5, opt['qn']):
        tsch.setdefault(opt['qa'] + b // opt['qn'], []).append(lambda b=b: T_q(b, min(opt['qn'], 5 - b)))
    g("s_lshr_b32 s3, s2, 3")
    g("s_lshl_b32 s3, s3, 2")
    g("s_add_u32 s3, s3, s31")
    g("v_mul_u32_u24 v6, 6554, v1")
    g("s_lshr_b32 s4, s3, 1")
    g("s_mul_i32 s4, s4, 3840")
    g("v_lshrrev_b32 v6, 16, v6")
    g("s_and_b32 s5, s3, 1")
    g("s_mul_i32 s5, s5, 1280")
    g("s_add_u32 s4, s4, s5")
    g("s_add_u32 s4, s4, 1280")
    g("v_lshl_add_u32 v57, v1, 7, s4")
    g(f"s_mov_b32 s5, {64*3840-1280}")
    g("v_mad_u32_u24 v57, v6, s5, v57")
    g("s_and_b32 s4, s2, 3")
    g("s_lshl_b32 s4, s4, 7")
    g("s_add_u32 s4, s4, s3")
    g("s_mul_i32 s4, s4, 5120")
    g("v_and_b32 v7, 3, v1")
    g("v_mul_u32_u24 v7, 1248, v7")
    g("v_lshl_add_u32 v58, v1, 5, v7")
    g("v_add_u32 v58, s4, v58")
    g("s_mov_b32 s10, 2621440")
    g("s_mov_b32 s11, 0x00020000")
    g("s_mov_b32 s14, 2457600")
    g("s_mov_b32 s15, 0x00020000")
    g("s_mul_i32 s4, s3, 3840")
    g("v_lshl_add_u32 v34, v1, 7, s4")
    g(f"s_mov_b32 s5, {128*3840-1280}")
    g("v_mad_u32_u24 v34, v6, s5, v34")
    g.wait_lg(0)
    for f in tsch.pop(0, []):
        f()
g("v_bfe_u32 v4, v0, 4, 2")
g("v_lshrrev_b32 v6, 3, v1")
g("v_mul_u32_u24 v6, 2560, v6")
g("v_and_b32 v7, 7, v1")
g("v_and_b32 v23, 1, v4")
g("v_xor_b32 v7, v7, v23")
g("v_lshl_add_u32 v40, v7, 4, v6")
g("v_add_u32 v41, 256, v40")
g("v_xor_b32 v7, 4, v7")
g("v_lshl_add_u32 v42, v7, 4, v6")
g(f"v_add_u32 v42, {16*1280-2048}, v42")
g("v_add_u32 v43, 256, v42")
g("s_lshl_b32 s3, s29, 7")
g("s_lshl_b32 s4, s31, 5")
g("s_add_u32 s48, s3, s4")
g("s_mul_i32 s32, s48, 1280")
g("s_and_b32 s3, s84, 7")
g("s_lshl_b32 s58, s3, 8")
g("s_add_u32 s58, s58, s32")
g("s_mul_i32 s79, s31, 12288")
g(f"s_add_u32 s79, s79, {XBASE}")
g("s_mov_b32 m0, s79")
g("s_mov_b32 s10, 2621440")
g("s_mov_b32 s11, 0x00020000")
g("s_mov_b32 s14, 2457600")
g("s_mov_b32 s15, 0x00020000")
g("v_mul_u32_u24 v24, 6554, v1")
g("v_lshlrev_b32 v46, 4, v1")
g("v_add_u32 v25, 1280, v46")
g("s_movk_i32 s4, 1120")
g("s_movk_i32 s5, 1280")
def wvoff(i):
    if i:
        g(f"v_add_u32 v6, {64*i*6554}, v24")
    src = "v6" if i else "v24"
    g(f"v_lshrrev_b32 v{52+i}, 16, {src}")
    g(f"v_lshrrev_b32 v7, 17, {src}")
    g(f"v_mad_u32_u24 v{8+i}, v{52+i}, s4, v25")
    g(f"v_mad_u32_u24 v{8+i}, v7, s5, v{8+i}")
    if i == 4:
        g(f"v_add_u32 v{8+i}, 4096, v{8+i}")
for i in range(5):
    wvoff(i)
g("s_mul_i32 s4, s30, 160")
g("s_mul_i32 s5, s31, 61440")
g("s_add_u32 s34, s5, s4")
g("s_mul_i32 s68, s3, 491520")
g("s_add_u32 s68, s68, s34")
g("s_add_u32 s5, s31, 1")
g("s_lshr_b32 s5, s5, 1")
g("s_lshl_b32 s5, s5, 5")
g("s_mul_i32 s45, s31, 5120")
g("s_add_u32 s36, s5, s45")
lstamp()
g.wait_lg(0)
lstamp()

cur_m0 = ["s79+0"]
def setm0(key):
    if cur_m0[0] != key:
        r, off = key.split('+')
        if int(off):
            g(f"s_add_u32 m0, {r}, {off}")
        else:
            g(f"s_mov_b32 m0, {r}")
        cur_m0[0] = key

class Op:
    def __init__(self, tag, m0, fn):
        self.tag, self.m0, self.fn = tag, m0, fn
queue = []
def pop():
    op = queue.pop(0)
    if op.m0:
        setm0(op.m0)
    op.fn()
    for o in queue[:1]:
        if o.m0:
            setm0(o.m0)
def enqueue(ops):
    was = bool(queue)
    queue.extend(ops)
    if not was and queue and queue[0].m0:
        setm0(queue[0].m0)

def t_ops(st):
    return [Op(None, None, f) for f in tsch.pop(st, [])]
def dma_ops(st):
    sl = st % 5
    ops = []
    ops += t_ops(st)
    for i in range(5):
        off = 1024 * (i & 3)
        hi = 4096 if i == 4 else 0
        if st < 10:
            txt = f"buffer_load_dwordx4 v{8+i}, s[12:15], s{68+st} offen offset:{off} lds"
            m0 = f"s36+{sl*SLOT+hi}"
        elif st < 15:
            txt = f"buffer_load_dwordx4 v{13+i}, s[12:15], s{68+2*(st-10)} offen offset:{off} lds"
            m0 = f"s36+{sl*SLOT+hi}"
        else:
            uu = st - 15
            txt = f"buffer_load_dwordx4 v{18+i}, s[16:19], s37 offen offset:{off} lds"
            m0 = f"s45+{uu*20480+hi}"
        def fn(txt=txt, i=i, st=st):
            if st >= 15 and i == 0:
                g(f"s_add_u32 s37, s35, {(st-15)*128*1280}")
            g(txt, tag=('w', st))
            nv[0] += 1
        ops.append(Op(('w', st), m0, fn))
    return ops

def xreg(B, s, p):
    b = ((B * 2 + s) * 2 + p) * 4
    return f"a[{b}:{b+3}]"
def xregs(B):
    return {('a', i) for i in range(B * 16, B * 16 + 16)}
def x_ops(B):
    ops = []
    for i in range(4):
        def fn(i=i):
            if i == 0 and B >= 3:
                g._auto_wait(xregs(B - 3))
            g(f"buffer_load_dwordx4 v{40+i}, s[8:11], s{58+B} offen offset:{1024*i} lds", tag=('x', B))
            nv[0] += 1
        ops.append(Op(('x', B), f"s79+{(B%3)*4096}", fn))
    return ops
def x_read(B):
    for s in range(2):
        for p in range(2):
            g(f"ds_read_b128 {xreg(B,s,p)}, v{44+s} offset:{(B%3)*4096+1024*p}")

if opt['adl']:
    g("s_cmp_eq_u32 s28, 1")
    br("s_cbranch_scc1 L_nodl")
    g(f"s_sleep {opt['adl']}")
    g.label("L_nodl")
enqueue(x_ops(0) + dma_ops(0))
while queue:
    pop()
if opt['e1']:
    g(f"s_add_u32 s69, s68, {64*3840}")
    g("s_add_u32 s59, s58, 128")
    enqueue(x_ops(1) + dma_ops(1) if opt['e1'] == 1 else dma_ops(1) + x_ops(1))
    while queue:
        pop()
lstamp()
for base, n in ((16, 819200), (20, 5242880), (24, 1 << 24), (40, 256)):
    g(f"s_mov_b32 s{base+2}, {n}")
    g(f"s_mov_b32 s{base+3}, 0x00020000")
g("s_or_b32 s3, s2, s31")
g("s_cmp_lg_u32 s3, 0")
br("s_cbranch_scc1 L_notag")
with g.extra():
    g("s_memrealtime s[4:5]")
    g.wait_lg(0)
    g("s_lshl_b32 s4, s4, 6")
    g("s_or_b32 s4, s4, 1")
    g("v_mov_b32 v6, s4")
    g("v_mov_b32 v7, 0")
    g("s_mov_b64 exec, 1")
    g("buffer_store_dword v6, v7, s[40:43], 0 offen sc1")
    g("s_mov_b64 exec, -1")
g.label("L_notag")
g("s_add_u32 s59, s58, 128")
g(f"s_add_u32 s69, s68, {64*3840}")
for u in range(1, 5):
    g(f"s_bfe_u32 s3, s84, 0x{(3<<16)|(4*u):x}")
    g(f"s_lshl_b32 s{58+2*u}, s3, 8")
    g(f"s_add_u32 s{58+2*u}, s{58+2*u}, s32")
    g(f"s_add_u32 s{59+2*u}, s{58+2*u}, 128")
    g(f"s_mul_i32 s{68+2*u}, s3, 491520")
    g(f"s_add_u32 s{68+2*u}, s{68+2*u}, s34")
    g(f"s_add_u32 s{69+2*u}, s{68+2*u}, {64*3840}")
g("v_and_b32 v3, 15, v0")
g("v_bfe_u32 v49, v0, 2, 2")
g("v_and_b32 v50, 3, v0")
g("v_mul_u32_u24 v6, 320, v49")
g("v_mul_u32_u24 v7, 5120, v4")
g("v_add_u32 v6, v6, v7")
g("v_add_u32 v7, 1, v4")
g("v_lshrrev_b32 v7, 1, v7")
g("v_lshl_add_u32 v6, v7, 5, v6")
g("v_mul_u32_u24 v7, 40, v50")
g("v_add_u32 v26, v6, v7")
g(f"v_add_u32 v27, {3*SLOT}, v26")
g("s_cmp_eq_u32 s28, 0")
g("s_cselect_b32 s3, 40, 8")
g("s_cselect_b32 s4, 8, 40")
g("v_mad_u32_u24 v184, v50, s3, v6")
for t in range(1, 4):
    g(f"v_add_u32 v{184+2*t}, s4, v{182+2*t}")
g("v_add_u32 v192, 32, v26")
for t in range(5):
    g(f"v_add_u32 v{185+2*t}, {3*SLOT}, v{184+2*t}")
g("v_lshrrev_b32 v6, 3, v3")
g("v_lshlrev_b32 v6, 4, v6")
g("v_and_b32 v7, 7, v3")
g("v_add_u32 v6, v6, v7")
g("v_lshlrev_b32 v6, 7, v6")
g("v_lshrrev_b32 v7, 1, v3")
g("v_and_b32 v7, 5, v7")
g("v_lshlrev_b32 v23, 1, v4")
g("v_xor_b32 v7, v7, v23")
g("v_lshl_add_u32 v6, v7, 4, v6")
g("v_add_u32 v44, s79, v6")
g("v_xor_b32 v45, 16, v44")
g("s_lshl_b32 s54, s30, 13")
g("s_lshl_b32 s3, s31, 11")
g("s_add_u32 s54, s54, s3")
g(f"s_add_u32 s54, s54, {WS_K}")
g("s_lshl_b32 s55, s30, 7")
g("s_lshl_b32 s3, s31, 2")
g("s_add_u32 s55, s55, s3")
g(f"s_add_u32 s55, s55, {WS_F+0xA000}")
g("s_xor_b32 s3, s28, 1")
g("s_or_b32 s56, s3, s29")
g("v_lshlrev_b32 v51, 2, v1")
g("s_cmp_lg_u32 s56, 0")
br("s_cbranch_scc1 L_nozero")
with g.extra():
    for r in range(4):
        g(f"v_mov_b32 v{64+r}, 0")
    for k in range(2):
        g(f"buffer_store_dwordx4 v[64:67], v46, s[24:27], s54 offen offset:{k*1024} sc1")
g.label("L_nozero")
g("s_movk_i32 s4, 1120")
g(f"s_mov_b32 s5, {64*3840-160}")
g(f"s_mov_b32 s6, {128*3840-3840}")
for i in range(5):
    g(f"v_mad_u32_u24 v{18+i}, v{52+i}, s4, v46")
    g(f"v_mad_u32_u24 v{13+i}, v{52+i}, s5, v46")
    g(f"v_lshrrev_b32 v7, 1, v{52+i}")
    g(f"v_mul_u32_u24 v7, s6, v7")
    g(f"v_sub_u32 v{13+i}, v{13+i}, v7")
g("v_add_u32 v17, 4096, v17")
g("v_add_u32 v22, 4096, v22")
g("s_mul_i32 s5, s31, 40960")
g("s_mul_i32 s4, s30, 160")
g("s_add_u32 s35, s5, s4")
g("s_lshr_b32 s3, s2, 3")
g("s_lshl_b32 s3, s3, 2")
g("s_add_u32 s3, s3, s31")
g("v_mul_u32_u24 v7, 10, v52")
g("v_sub_u32 v7, v1, v7")
g("v_lshlrev_b32 v7, 7, v7")
g("v_lshl_add_u32 v6, v52, 7, s3")
g("v_mul_u32_u24 v35, 1280, v6")
g("v_add_u32 v35, v35, v7")
g("s_add_u32 s3, s30, 4")
g("s_lshl_b32 s3, s3, 2")
g("s_mov_b32 s6, 0x21043210")
g("s_mov_b32 s7, 0x04321043")
g("s_lshr_b64 s[6:7], s[6:7], s3")
g("s_and_b32 s3, s6, 7")
g("s_lshl_b32 s3, s3, 2")
g("s_add_u32 s3, s3, s78")
g("s_lshl_b32 s3, s3, 2")
g("s_add_u32 s3, s3, s31")
g(f"s_mul_i32 s3, s3, {8*3840}")
g("s_add_u32 s3, s3, s4")
g("s_add_u32 s3, s3, 1280")
g("v_lshrrev_b32 v6, 2, v1")
g("v_mul_u32_u24 v6, 3840, v6")
g("v_bfe_u32 v7, v1, 1, 1")
g("v_mul_u32_u24 v7, 1280, v7")
g("v_and_b32 v23, 1, v1")
g("v_mul_u32_u24 v23, 156, v23")
g("v_add3_u32 v6, v6, v7, v23")
if not opt['tl']:
    g("v_add_u32 v58, s3, v6")
def ptouch(lo=0, hi=41):
    setexec(0, 40)
    tload("buffer_load_dword v32, v252, s[8:11], s44 offen sc1")
    g("s_mov_b64 exec, 1")
    tload("buffer_load_dword v32, v51, s[24:27], s49 offen sc1")
    g("s_mov_b64 exec, -1")
def otouch():
    g("s_mul_i32 s88, s48, 2560")
    g("s_mul_i32 s89, s28, 1280")
    g("s_add_u32 s88, s88, s89")
    g("s_mul_i32 s89, s30, 160")
    g("s_add_u32 s88, s88, s89")
    g("v_lshrrev_b32 v254, 1, v1")
    g("v_mul_u32_u24 v254, 2560, v254")
    g("v_and_b32 v255, 1, v1")
    g("v_mul_u32_u24 v255, 156, v255")
    g("v_add_u32 v254, v254, v255")
    tload("buffer_load_dword v32, v254, s[20:23], s88 offen")
def ptouchA():
    g("s_cmp_eq_u32 s28, 1")
    br("s_cbranch_scc1 L_npt")
    with g.extra():
        ptouch()
        nv[0] -= 1
    g.label("L_npt")
def m2touch(b=0):
    if b == 0 or opt['pb'] == b:
        ptouch()
    if opt['po'] == 4:
        otouch()
def touch(va, base, n):
    setexec(0, n)
    tload(f"global_load_dword v32, {va}, {base}")
    g("s_mov_b64 exec, -1")
g("v_mul_u32_u24 v6, 160, v49")
g("v_mul_u32_u24 v7, 40, v50")
g("v_add_u32 v6, v6, v7")
g("v_mul_u32_u24 v7, 3200, v4")
g("v_add_u32 v28, v6, v7")
g("v_add_u32 v29, 51200, v28")
g("v_lshrrev_b32 v7, 1, v4")
g("v_mul_u32_u24 v7, 12800, v7")
g("v_add_u32 v6, v6, v7")
g("v_and_b32 v7, 1, v4")
g("v_mul_u32_u24 v7, 3200, v7")
g("v_add_u32 v30, v6, v7")
g("v_add_u32 v31, 51200, v30")
g("s_and_b32 s3, s30, 1")
g("s_mul_i32 s3, s3, 5120")
g("s_add_u32 s3, s3, 1024")
g("v_and_b32 v6, 1, v4")
g("v_mul_u32_u24 v6, 2560, v6")
g("v_lshl_add_u32 v6, v3, 4, v6")
g("v_lshrrev_b32 v7, 1, v4")
g("v_lshl_add_u32 v6, v7, 3, v6")
g("v_add_u32 v47, s3, v6")
g("v_mul_u32_u24 v6, 5120, v3")
g("v_mul_u32_u24 v7, 40, v4")
g("v_add_u32 v48, v6, v7")
g("s_lshl_b32 s3, s31, 5")
g(f"s_add_u32 s3, s3, {KVB}")
g(f"v_mul_u32_u24 v6, {HS}, v49")
g("v_mul_u32_u24 v7, 288, v50")
g("v_add_u32 v6, v6, v7")
g("v_lshl_add_u32 v6, v4, 3, v6")
g("v_add_u32 v37, s3, v6")
g("v_add_u32 v37, 16, v37")
g(f"v_mul_u32_u24 v23, {HS}, v4")
g("v_mul_u32_u24 v6, 288, v49")
g("v_add_u32 v6, v6, v23")
g("v_lshl_add_u32 v6, v50, 3, v6")
g("v_add_u32 v38, s3, v6")
g("v_add_u32 v6, v7, v23")
g("v_lshl_add_u32 v6, v49, 3, v6")
g("v_add_u32 v39, s3, v6")
g(f"v_add_u32 v39, {SECS}, v39")
g("s_lshl_b32 s3, s28, 4")
g("s_add_u32 s3, s3, s29")
g("s_lshl_b32 s3, s3, 2")
g("s_add_u32 s3, s3, s31")
g("s_mul_i32 s44, s48, 2560")
g("s_mul_i32 s4, s28, 1280")
g("s_add_u32 s44, s44, s4")
g("s_lshl_b32 s49, s3, 7")
g(f"s_add_u32 s49, s49, {WS_F}")
g("s_lshr_b32 s33, s3, 2")
g("s_lshl_b32 s33, s33, 7")
g(f"s_add_u32 s33, s33, {WS_F+0xC000}")
g("s_getreg_b32 s38, hwreg(HW_REG_XCC_ID, 0, 4)")
g("s_lshl_b32 s38, s38, 1")
g("s_mul_i32 s4, s30, 10240")
g("v_lshrrev_b32 v6, 3, v1")
g("v_mul_u32_u24 v6, 1536, v6")
g("v_lshl_add_u32 v6, v1, 7, v6")
g("v_add_u32 v252, s4, v6")
g("s_lshr_b32 s3, s30, 1")
g("s_mul_i32 s3, s3, 20480")
g("s_and_b32 s5, s30, 1")
g("s_mul_i32 s5, s5, 5120")
g("s_add_u32 s5, s5, s3")
g("s_add_u32 s5, s5, 1024")
g("v_and_b32 v6, 4, v1")
g("v_mul_u32_u24 v6, 2560, v6")
g("v_and_b32 v7, 2, v1")
g("v_mul_u32_u24 v7, 1280, v7")
g("v_add3_u32 v6, v6, v7, s5")
g("v_and_b32 v7, 1, v1")
g("v_lshl_add_u32 v6, v7, 7, v6")
g("v_cmp_gt_u32 vcc, 32, v1")
g("v_cndmask_b32 v252, v6, v252, vcc")
g("s_lshl_b32 s3, s29, 3")
g("s_add_u32 s3, s3, s30")
g("s_lshl_b32 s4, s3, 7")
g(f"s_add_u32 s4, s4, {WS_F+0x4000}")
g("s_mul_i32 s50, s3, 5120")
g(f"s_add_u32 s50, s50, {WS_H}")
g("s_lshl_b32 s5, s30, 8")
g("s_lshl_b32 s6, s31, 6")
g("s_add_u32 s5, s5, s6")
g(f"s_add_u32 s5, s5, {WS_F+0x8000}")
g("s_lshl_b32 s6, s29, 2")
g("s_add_u32 s6, s6, s5")
g("s_sub_u32 s3, s4, 1024")
g("s_cmp_eq_u32 s28, 0")
g("s_cselect_b32 s47, s4, s6")
g("s_cselect_b32 s57, s3, s5")
g("v_lshlrev_b32 v25, 2, v3")
g("v_mul_u32_u24 v25, s28, v25")
g("s_cmp_eq_u32 s31, 3")
g("s_cselect_b32 s51, 1, 0")
g("s_or_b32 s51, s51, s28")
g("s_cmp_eq_u32 s31, 0")
g("s_cselect_b32 s81, 1, 0")
g("s_cmp_lg_u32 s29, 0")
g("s_cselect_b32 s81, s81, 0")
g("s_or_b32 s81, s81, s28")
g(f"s_mov_b32 s52, 0x{LOG2E:08x}")
g(f"s_mov_b32 s53, 0x{EPS:08x}")
g("s_mov_b32 s82, s52")
g("s_mov_b32 s83, s52")
g("s_mov_b32 s86, s53")
g("s_mov_b32 s87, s53")
lstamp()
if opt['ad2']:
    g("s_cmp_eq_u32 s28, 1")
    br("s_cbranch_scc1 L_nodl2")
    g(f"s_sleep {opt['ad2']}")
    g.label("L_nodl2")
if not opt['e1']:
    enqueue(t_ops(1) + x_ops(1) + dma_ops(1))
while queue:
    pop()
if opt['t5']:
    touch("v58", "s[12:13]", 32)
if opt['pts'] == 98:
    ptouch()
if opt['et']:
    setexec(0, opt['et'])
    tload("buffer_load_dword v32, v252, s[20:23], s44 offen")
    g("s_mov_b64 exec, -1")
enqueue(t_ops(2) + x_ops(2) + dma_ops(2) + dma_ops(3) + dma_ops(4))
for _ in range(opt['e2']):
    pop()

frags = []
for st in range(15):
    for f in range(20):
        if st < 10:
            s, sec, t = f // 10, (f // 5) % 2, f % 5
            B = st
        else:
            sec, s, t = f // 10, (f // 5) % 2, f % 5
            B = 2 * (st - 10) + sec
        frags.append((st, f, s, sec, t, B))

NB = opt['nbuf']
def wreg(i):
    return 160 + 4 * (i % NB)

def issue_read(i, half=None):
    st, f, s, sec, t, B = frags[i]
    sl = st % 5
    imm = (sl % 3) * SLOT + s * 2560 + sec * 160
    if st < 10:
        va = f"v{184 + 2*t + (sl >= 3)}"
    else:
        va = "v26" if sl < 3 else "v27"
        imm += 8 * t
    b = wreg(i)
    if half in (None, 0):
        g(f"ds_read_b64_tr_b16 a[{b}:{b+1}], {va} offset:{imm}")
    if half in (None, 1):
        g(f"ds_read_b64_tr_b16 a[{b+2}:{b+3}], {va} offset:{imm+1280}")

D = opt['dist']
first = {}
def need(tag):
    while any(o.tag == tag for o in queue):
        pop()
    g.wait_tag(tag)

mark = [0]
lab = [0]
def spin_wait(load, test, what):
    n = lab[0]; lab[0] += 1
    g(f"s_mov_b32 s46, {SPIN}")
    g.label(f"L_spin{n}")
    with g.extra():
        load()
        g.force_wait(vm=0)
        test()
        br(f"s_cbranch_scc1 L_spun{n}")
        g("s_sleep 1")
        g("s_sub_u32 s46, s46, 1")
        g("s_cmp_lg_u32 s46, 0")
        br(f"s_cbranch_scc1 L_spin{n}")
    g.label(f"L_spun{n}")

def mid_test():
    g("v_cmp_eq_u32 vcc, s39, v36")
    g("s_cmp_eq_u64 vcc, -1")
def mid_loads(lbl):
    g("s_cmp_eq_u32 s28, 1")
    br(f"s_cbranch_scc1 L_mlb{lbl}")
    g("s_sub_u32 s3, s50, 40960")
    g("s_add_u32 s4, s3, 2560")
    g("v_subrev_u32 v6, 512, v46")
    g("s_mov_b32 exec_lo, 0")
    g.flush_hazards()
    for idx in range(10):
        d = 64 + idx * 4
        g.raw(f"  buffer_load_dwordx4 v[{d}:{d+3}], v6, s[24:27], {'s3' if idx < 5 else 's4'} offen offset:{(idx%5)*512} sc1")
    g("s_mov_b32 exec_lo, -1")
    br(f"s_branch L_mld{lbl}")
    g.label(f"L_mlb{lbl}")
    for k in range(8):
        g.raw(f"  buffer_load_dword v{64+k}, v51, s[24:27], s54 offen offset:{k*256} sc1")
    g.label(f"L_mld{lbl}")
    g("s_mov_b32 s81, 0")

def publish_mid():
    g.force_wait(vm=min(63, min(len(g.vm), nv[0] - mark[0])))
    g("s_cmp_eq_u32 s51, 0")
    br("s_cbranch_scc1 L_nof1")
    with g.extra():
        g("v_mov_b32 v6, s39")
        g("v_mov_b32 v7, 0")
        g("s_mov_b64 exec, 1")
        g("buffer_store_dword v6, v7, s[24:27], s47 offen sc1")
        g("s_mov_b64 exec, -1")
    g.label("L_nof1")

def run_phase(lo, hi, sid):
    st0 = frags[lo][0]
    if sid == 0:
        lflush()
        stamp()
    need(('w', st0))
    if sid == 0:
        need(('x', 0))
        x_read(0)
        enqueue(x_ops(3))
    g("s_barrier")
    stamp()
    for i in range(lo, lo + D):
        issue_read(i)
    for i in range(lo, hi):
        st, f, s, sec, t, B = frags[i]
        last = (i + 20 - f) >= hi
        if f == opt['barf']:
            if not last:
                need(('w', st + 1))
                if sid == 0:
                    need(('x', st + 1))
            if st == 4:
                g("v_readfirstlane_b32 s39, v36")
                g("s_cmp_lg_u32 s39, 0")
                br("s_cbranch_scc1 L_havetag")
                def _ld():
                    g("v_mov_b32 v7, 0")
                    g("buffer_load_dword v36, v7, s[40:43], 0 offen sc1")
                def _tst():
                    g("v_readfirstlane_b32 s39, v36")
                    g("s_cmp_lg_u32 s39, 0")
                spin_wait(_ld, _tst, "tag")
                g.label("L_havetag")
                g("s_cmp_lg_u32 s56, 0")
                br("s_cbranch_scc1 L_nozf")
                with g.extra():
                    g("v_mov_b32 v6, s39")
                    g("v_mov_b32 v7, 0")
                    g("s_mov_b64 exec, 1")
                    g("buffer_store_dword v6, v7, s[24:27], s55 offen sc1")
                    g("s_mov_b64 exec, -1")
                g.label("L_nozf")
                g("s_or_b32 s38, s38, s39")
                g("s_cmp_lg_u32 s31, 0")
                br("s_cbranch_scc1 L_noxg")
                with g.extra():
                    g("s_lshl_b32 s3, s30, 2")
                    g("v_mov_b32 v6, s38")
                    g("v_mov_b32 v7, s3")
                    g("s_mov_b64 exec, 1")
                    g("buffer_store_dword v6, v7, s[24:27], s33 offen sc1")
                    g("s_mov_b64 exec, -1")
                g.label("L_noxg")
            if st == opt['fst'] and opt['ff'] == opt['barf']:
                publish_mid()
            g("s_barrier")
            if opt['prof'] > 1:
                stamp()
            if sid == 0 and not last:
                x_read(st + 1)
            if st == 1:
                g("v_mov_b32 v7, 0")
                g("buffer_load_dword v36, v7, s[40:43], 0 offen sc1")
                nv[0] += 1
            if st == 8:
                g("v_mov_b32 v7, 0")
                g("buffer_load_dword v36, v7, s[24:27], s55 offen sc1")
                nv[0] += 1
            for s2 in range(5, 19):
                at = s2 - 4
                if 10 <= s2 <= 13:
                    at = max(at, opt['qd'])
                if s2 >= 15:
                    at = 10 + (opt['wat'] // 10 ** (18 - s2)) % 10
                if at == st:
                    enqueue(dma_ops(s2))
            if sid == 0 and st + 4 < 10:
                enqueue(x_ops(st + 4))
        for k in range(opt['ptn']):
            if i == opt['pts'] * 20 + opt['ptf'] + k * opt['ptd']:
                pass
        if st == opt['xst'] and f == 2:
            g("v_min_u32 v7, 28, v51")
            g("buffer_load_dword v33, v7, s[24:27], s33 offen sc1")
            nv[0] += 1
        if st == opt['fst'] and f == opt['ff'] and f != opt['barf']:
            publish_mid()
        if opt['early']:
            if st == opt['pst'] and f == opt['pf']:
                g("buffer_load_dword v36, v25, s[24:27], s57 offen sc1")
                nv[0] += 1
            if st == 14 and f == opt['cf2']:
                mid_test()
                g("s_cselect_b32 s3, s81, 0")
                g("s_cmp_eq_u32 s3, 0")
                br("s_cbranch_scc1 L_noearly")
                mid_loads(0)
                g.label("L_noearly")
        elif st == 14 and f == opt['cf']:
            g("buffer_load_dword v36, v25, s[24:27], s57 offen sc1")
            nv[0] += 1
        b = wreg(i)
        for p in range(2):
            if st < 10:
                acc = 64 + ((sec * 5 + t) * 2 + p) * 4
            else:
                acc = 144 + (t * 2 + p) * 4
            key = (sid, acc)
            c = f"v[{acc}:{acc+3}]" if key in first else "0"
            first[key] = 1
            if st < 10:
                g(f"v_mfma_f32_16x16x32_bf16 v[{acc}:{acc+3}], {xreg(B,s,p)}, a[{b}:{b+3}], {c}")
            else:
                g(f"v_mfma_f32_16x16x32_bf16 v[{acc}:{acc+3}], a[{b}:{b+3}], {xreg(B,s,p)}, {c}")
            if i + D < hi:
                if opt['order']:
                    issue_read(i + D, p)
                elif p == 0:
                    issue_read(i + D)
            if p == 1 and queue and (i % opt['dmagap'] == 0 or len(queue) > 9):
                pop()
    while queue:
        pop()

def phi(regs, tmp):
    n = len(regs)
    for k in range(0, n, 2):
        r, t = regs[k], tmp[k]
        g(f"v_pk_mul_f32 v[{t}:{t+1}], v[{r}:{r+1}], s[82:83]")
        g(f"v_pk_add_f32 v[{r}:{r+1}], v[{r}:{r+1}], 1.0 op_sel_hi:[1,0]")
    for r, t in zip(regs, tmp):
        g(f"v_exp_f32_e64 v{t}, v{t} clamp")
    for r, t in zip(regs, tmp):
        g(f"v_max_f32 v{r}, v{r}, v{t}")
    for k in range(0, n, 2):
        r = regs[k]
        g(f"v_pk_add_f32 v[{r}:{r+1}], v[{r}:{r+1}], s[86:87]")

run_phase(0, 200, 0)
stamp()
if opt['dg']:
    g.force_wait(vm=0)
    bstamp(9)
    if opt['dg'] == 1:
        ptouch()
    elif opt['dg'] == 2:
        touch("v35", "s[16:17]", 50)
    elif opt['dg'] == 3:
        setexec(0, 1)
        tload("buffer_load_dword v32, v59, s[24:27], 0 offen sc1")
        g("s_mov_b64 exec, -1")
    elif opt['dg'] == 4:
        setexec(0, 8)
        tload("buffer_load_dword v32, v59, s[24:27], 0 offen sc1")
        g("s_mov_b64 exec, -1")
    elif opt['dg'] == 5:
        setexec(0, 1)
        tload("buffer_load_dword v32, v59, s[24:27], 0 offen sc1")
        g("s_mov_b64 exec, -1")
        g.force_wait(vm=0)
        bstamp(9)
        ptouch()
    g.force_wait(vm=0)
    bstamp(10)
if opt['pts'] == 99:
    ptouch()
if opt['two']:
    touch("v35", "s[16:17]", 50)
if opt['pts'] == 100:
    ptouch()
if opt['po'] in (1, 2):
    g("s_mul_i32 s3, s48, 2560")
    g("s_mul_i32 s4, s28, 1280")
    g("s_add_u32 s3, s3, s4")
    g("s_mul_i32 s4, s30, 160")
    g("s_add_u32 s3, s3, s4")
    g("v_lshrrev_b32 v6, 1, v1")
    g("v_mul_u32_u24 v6, 2560, v6")
    g("v_and_b32 v7, 1, v1")
    g("v_mul_u32_u24 v7, 156, v7")
    g("v_add_u32 v6, v6, v7")
    if opt['po'] == 2:
        setexec(0, 1)
    tload("buffer_load_dword v32, v6, s[20:23], s3 offen")
    g("s_mov_b64 exec, -1")
g("s_cmp_eq_u32 s28, 1")
br("s_cbranch_scc1 L_m1b")
with g.extra():
    for sec in range(2):
        for t in range(5):
            idx = sec * 5 + t
            for p in range(2):
                a = 64 + (idx * 2 + p) * 4
                d = 184 + idx * 4 + 2 * p
                g(f"v_cvt_pk_bf16_f32 v{d}, v{a}, v{a+1}")
                g(f"v_cvt_pk_bf16_f32 v{d+1}, v{a+2}, v{a+3}")
            for p in range(2):
                d = 184 + idx * 4 + 2 * p
                g(f"ds_write_b64 v37, v[{d}:{d+1}] offset:{sec*SECS+t*1152+p*144}")
    bstamp(6)
    g("s_cmp_lg_u32 s31, 3")
    br("s_cbranch_scc1 L_nohalo")
    g("s_add_u32 s3, s50, 2560")
    g("v_subrev_u32 v6, 512, v46")
    g("s_mov_b32 exec_lo, 0")
    for idx in range(10):
        d = 184 + idx * 4
        g(f"buffer_store_dwordx4 v[{d}:{d+3}], v6, s[24:27], {'s50' if idx < 5 else 's3'} offen offset:{(idx%5)*512} sc1")
    g("s_mov_b32 exec_lo, -1")
    g.label("L_nohalo")
    g.force_wait(lg=0)
    br("s_branch L_m1done")
g.label("L_m1b")
with g.extra():
    g(f"s_mul_i32 s3, s31, {RS}")
    g(f"s_add_u32 s3, s3, {XBASE}")
    g("v_add_u32 v6, s3, v46")
    for idx in list(range(5, 10)) + list(range(5)):
        if idx == 0:
            for r in range(4):
                g(f"v_mov_b32 v{224+r}, 0x3f803f80")
            g("v_mov_b32 v7, s3")
            g("ds_write_b128 v7, v[224:227] offset:10240")
            phi(list(range(64, 104)), list(range(208, 248)))
        d = 184 + (idx % 5) * 4 + (0 if idx >= 5 else 0)
        d = 184 + (idx % 6) * 4
        for p in range(2):
            a = 64 + (idx * 2 + p) * 4
            g(f"v_cvt_pk_bf16_f32 v{d+2*p}, v{a}, v{a+1}")
            g(f"v_cvt_pk_bf16_f32 v{d+2*p+1}, v{a+2}, v{a+3}")
        g(f"ds_write_b128 v6, v[{d}:{d+3}] offset:{idx*1024}")
    bstamp(6)
    g("s_lshl_b32 s3, s31, 10")
    g(f"s_add_u32 s3, s3, {XBASE}")
    g("v_add_u32 v6, s3, v46")
    g("s_lshl_b32 s3, s31, 6")
    g(f"s_add_u32 s3, s3, {XBASE+4096}")
    g("v_lshlrev_b32 v7, 8, v4")
    g("v_lshl_add_u32 v7, v50, 4, v7")
    g("v_add_u32 v7, s3, v7")
    g("v_add_u32 v23, 5120, v7")
    g(f"v_mov_b32 v24, {XBASE+10240}")
    g("v_and_b32 v34, 4, v1")
    g("v_cmp_eq_u32 vcc, 0, v34")
    g("v_cndmask_b32 v23, v24, v23, vcc")
    g.force_wait(lg=0)
    g("s_barrier")
    bstamp(7)
    for w2 in range(4):
        b = 64 + w2 * 16
        g(f"ds_read_b128 v[{b}:{b+3}], v6 offset:{w2*RS}")
        g(f"ds_read_b128 v[{b+4}:{b+7}], v6 offset:{w2*RS+5120}")
        g(f"ds_read_b128 v[{b+8}:{b+11}], v23 offset:{w2*RS}")
        g(f"ds_read_b128 v[{b+12}:{b+15}], v7 offset:{w2*RS}")
    for w2 in range(4):
        b = 64 + w2 * 16
        pk, vh, b2, a2 = (f"v[{b+4*k}:{b+4*k+3}]" for k in range(4))
        for k, (A, Bo) in enumerate(((pk, vh), (pk, b2), (a2, vh), (a2, b2))):
            d = 184 + 4 * k
            c = f"v[{d}:{d+3}]" if w2 else "0"
            g(f"v_mfma_f32_16x16x32_bf16 v[{d}:{d+3}], {A}, {Bo}, {c}")
    g("v_readfirstlane_b32 s3, v36")
    g("s_cmp_eq_u32 s3, s39")
    br("s_cbranch_scc1 L_zok")
    def _ld():
        g("v_mov_b32 v7, 0")
        g("buffer_load_dword v36, v7, s[24:27], s55 offen sc1")
    def _tst():
        g("v_readfirstlane_b32 s3, v36")
        g("s_cmp_eq_u32 s3, s39")
    spin_wait(_ld, _tst, "zero")
    g.label("L_zok")
    bstamp(8)
    g("s_mov_b32 s4, 0x00ffff00")
    g("s_mov_b32 s5, 0")
    g("s_mov_b32 s6, 0")
    g("s_mov_b32 s7, 0xff00ff00")
    for r in range(4):
        g(f"buffer_atomic_add_f32 v{184+r}, v51, s[24:27], s54 offen offset:{r*256} sc1")
    for r in range(4):
        g(f"v_cndmask_b32 v{188+r}, v{188+r}, v{192+r}, s[4:5]")
        g(f"v_cndmask_b32 v{188+r}, v{188+r}, v{196+r}, s[6:7]")
    for r in range(4):
        g(f"buffer_atomic_add_f32 v{188+r}, v51, s[24:27], s54 offen offset:{1024+r*256} sc1")
g.label("L_m1done")
mark[0] = nv[0]
stamp()
run_phase(200, 300, 1)
g("s_barrier")
nlate = [0]
def late_wo():
    n0 = nv[0]
    late_wo2()
    if opt['lw']:
        nlate[0] = nv[0] - n0
def late_wo2():
    for s2 in range(15, 19):
        if (opt['wat'] // 10 ** (18 - s2)) % 10 == 5:
            enqueue(dma_ops(s2))
    enqueue(dma_ops(19))
    while queue:
        pop()
if not opt['lw']:
    late_wo()
stamp()
def xg_test():
    g("v_and_b32 v6, 0xffffffe1, v33")
    g("v_cmp_eq_u32 vcc, s39, v6")
    g("s_cmp_eq_u64 vcc, -1")
xg_test()
br("s_cbranch_scc1 L_xgok")
def _ld():
    g("v_min_u32 v7, 28, v51")
    g("buffer_load_dword v33, v7, s[24:27], s33 offen sc1")
spin_wait(_ld, xg_test, "xg")
g.label("L_xgok")
g("v_cmp_eq_u32 vcc, s38, v33")
g("s_cmp_eq_u64 vcc, -1")
g("s_cselect_b32 s80, 1, 0")
if opt['ob']:
    g("s_cselect_b32 s8, s20, s24")
    g("s_cselect_b32 s9, s21, s25")
else:
    g("s_mov_b32 s8, s24")
    g("s_mov_b32 s9, s25")
g("s_mov_b32 s10, 5242880")
g("s_cmp_eq_u32 s81, 0")
br("s_cbranch_scc1 L_midok")
if not opt['early']:
    mid_test()
    br("s_cbranch_scc1 L_midgo")
def _ld():
    g("buffer_load_dword v36, v25, s[24:27], s57 offen sc1")
spin_wait(_ld, mid_test, "mid")
g.label("L_midgo")
mid_loads(1)
g.label("L_midok")
if opt['lw']:
    late_wo()
bstamp(0)
g("s_cmp_eq_u32 s28, 1")
br("s_cbranch_scc1 L_m2b")
with g.extra():
    g("s_or_b32 s3, s29, s31")
    g("s_cmp_lg_u32 s3, 0")
    br("s_cbranch_scc1 L_halo1")
    for r in range(40):
        g(f"v_mov_b32 v{64+r}, 0")
    g.label("L_halo1")
    for t in range(5):
        for p in range(2):
            a = 144 + (t * 2 + p) * 4
            d = 184 + (p * 5 + t) * 2
            g(f"v_cvt_pk_bf16_f32 v{d}, v{a}, v{a+1}")
            g(f"v_cvt_pk_bf16_f32 v{d+1}, v{a+2}, v{a+3}")
    if opt['pa'] == 1:
        ptouch()
    g("s_cmp_eq_u32 s3, 0")
    g("s_cselect_b32 s4, 0, 64")
    g(f"v_mov_b32 v6, 0x{NEG:08x}")
    g("v_lshlrev_b32 v7, 2, v49")
    g("v_add_u32 v7, s4, v7")
    for c in range(3):
        for r in range(4):
            d = 52 + c * 4 + r
            if c == 0:
                g(f"v_cmp_le_u32 vcc, {r}, v50")
                g(f"v_cndmask_b32 v{d}, v6, 0, vcc")
            elif c == 1:
                g(f"v_cmp_le_u32 vcc, {4-r}, v7")
                g(f"v_cndmask_b32 v{d}, v6, 0, vcc")
            else:
                g(f"v_cmp_le_u32 vcc, {8-r}, v7")
                g(f"v_cndmask_b32 v{d}, v6, 0, vcc")
                g(f"v_cmp_gt_u32 vcc, {r}, v50")
                g(f"v_cndmask_b32 v{d}, v6, v{d}, vcc")
    g("v_mov_b32 v240, 0x3f803f80")
    g("v_mov_b32 v241, 0x3f803f80")
    g(f"s_mov_b32 s4, 0x{SCL:08x}")
    g("s_cmp_lg_u32 s31, 0")
    br("s_cbranch_scc1 L_halodone")
    g("v_subrev_u32 v23, 32, v37")
    g.force_wait(vm=nlate[0] + 2 * (opt['pa'] == 1))
    g("s_mov_b32 exec_lo, 0")
    for sec in range(2):
        for t in range(5):
            idx = sec * 5 + t
            for p in range(2):
                d = 64 + idx * 4 + 2 * p
                g(f"ds_write_b64 v23, v[{d}:{d+1}] offset:{sec*SECS+t*1152+p*144}")
    g("s_mov_b32 exec_lo, -1")
    g.force_wait(lg=0)
    g.label("L_halodone")
    if opt['pa'] == 0:
        m2touch()
    bstamp(1)
    def kreg(p, c, t):
        b = ((p * 3 + c) * 5 + t) * 2
        return f"a[{b}:{b+1}]"
    def vreg(p, c, t):
        b = 60 + ((p * 3 + c) * 5 + t) * 2
        return f"a[{b}:{b+1}]"
    for t in range(5):
        for p in range(2):
            for c in range(3):
                g(f"ds_read_b64_tr_b16 {kreg(p,c,t)}, v38 offset:{t*1152+p*144+16-8*c}")
    for t in range(5):
        for p in range(2):
            for c in range(3):
                g(f"ds_read_b64 {vreg(p,c,t)}, v39 offset:{t*1152+p*144+16-8*c}")
    for t in range(5):
        for p in range(2):
            for c in range(3):
                s = 204 + (p * 3 + c) * 4
                q = 184 + (p * 5 + t) * 2
                cc = f"v[{52+4*c}:{55+4*c}]" if t == 0 else f"v[{s}:{s+3}]"
                g(f"v_mfma_f32_4x4x4_16b_bf16 v[{s}:{s+3}], {kreg(p,c,t)}, v[{q}:{q+1}], {cc}")
    bstamp(2)
    for p in range(2):
        s = 204 + p * 12
        m = 242 + p * 4
        for k in range(4):
            g(f"v_max3_f32 v{m+k}, v{s+3*k}, v{s+3*k+1}, v{s+3*k+2}")
        g(f"v_max3_f32 v{m}, v{m}, v{m+1}, v{m+2}")
        g(f"v_max_f32 v{m}, v{m}, v{m+3}")
        g(f"v_mul_f32 v{m}, s4, v{m}")
    for p in range(2):
        s = 204 + p * 12
        m = 242 + p * 4
        for k in range(12):
            g(f"v_fma_f32 v{s+k}, v{s+k}, s4, -v{m}")
        for k in range(12):
            g(f"v_exp_f32 v{s+k}, v{s+k}")
    for p in range(2):
        s = 204 + p * 12
        for k in range(6):
            g(f"v_cvt_pk_bf16_f32 v{228+p*6+k}, v{s+2*k}, v{s+2*k+1}")
    bstamp(3)
    for c in range(3):
        for p in range(2):
            pr = 228 + (p * 3 + c) * 2
            for t in range(6):
                o = 64 + (p * 6 + t) * 4
                a = vreg(p, c, t) if t < 5 else "v[240:241]"
                cc = "0" if c == 0 else f"v[{o}:{o+3}]"
                g(f"v_mfma_f32_4x4x4_16b_bf16 v[{o}:{o+3}], {a}, v[{pr}:{pr+1}], {cc}")
    if opt['own']:
        g.force_wait(vm=2)
        g("s_barrier")
    br("s_branch L_m2done")
g.label("L_m2b")
with g.extra():
    if opt['pb'] == 3:
        ptouch()
    phi(list(range(144, 184)), list(range(184, 224)))
    if opt['pb'] == 2:
        ptouch()
    for t in range(5):
        for p in range(2):
            a = 144 + (t * 2 + p) * 4
            g(f"v_cvt_pk_bf16_f32 v{a}, v{a}, v{a+1}")
            g(f"v_cvt_pk_bf16_f32 v{a+1}, v{a+2}, v{a+3}")
    g("s_lshl_b32 s3, s31, 5")
    g(f"s_add_u32 s3, s3, {KVF}")
    g("v_lshl_add_u32 v6, v50, 3, s3")
    g("v_mul_u32_u24 v7, 768, v4")
    g("v_lshl_add_u32 v23, v49, 7, v6")
    g("v_add_u32 v23, v23, v7")
    g("s_mov_b32 s4, 0x00ffff00")
    g("s_mov_b32 s5, 0xff00ff00")
    g("v_mov_b32 v24, 3072")
    g("v_cndmask_b32 v7, v7, v24, s[4:5]")
    g("v_and_b32 v24, 1, v49")
    g("v_add_u32 v24, 4, v24")
    g("s_mov_b32 s5, 0")
    g("v_cndmask_b32 v24, v24, v49, s[4:5]")
    g("v_lshl_add_u32 v24, v24, 7, v6")
    g("v_add_u32 v24, v24, v7")
    g("v_lshl_add_u32 v7, v4, 2, v50")
    g("v_lshlrev_b32 v7, 3, v7")
    g(f"v_add_u32 v7, {KVF}, v7")
    bstamp(1)
    g.force_wait(vm=nlate[0] + 2 * (opt['pb'] in (2, 3)))
    if opt['pb'] == 4:
        ptouch()
    bstamp(2)
    for k in range(4):
        g(f"v_cvt_pk_bf16_f32 v{72+k}, v{64+2*k}, v{65+2*k}")
    g("ds_write_b64 v23, v[72:73]")
    g("ds_write_b64 v24, v[74:75]")
    g.force_wait(lg=0)
    g("s_barrier")
    m2touch(1)
    if opt['r2']:
        assert opt['ra'] and opt['ra'] <= 14 and opt['ra'] % 2 == 0
        g("v_add_u32 v24, 1792, v7")
    bstamp(3)
    RA = opt['ra'] or 30
    if opt['r2']:
        for T in range(0, RA, 2):
            g(f"ds_read2_b64 a[{2*T}:{2*T+3}], v7 offset0:{T*16} offset1:{T*16+16}")
    else:
        for T in range(RA):
            g(f"ds_read_b64 a[{2*T}:{2*T+1}], v7 offset:{T*128}")
    for t in range(5):
        for t2 in range(6):
            T = t * 6 + t2
            for p in range(2):
                if p == 1 and T + RA < 30:
                    U = T + RA
                    if opt['r2']:
                        if U % 2 == 0:
                            g(f"ds_read2_b64 a[{2*U}:{2*U+3}], v24 offset0:{(U-14)*16} offset1:{(U-14)*16+16}" if U >= 14 else
                              f"ds_read2_b64 a[{2*U}:{2*U+3}], v7 offset0:{U*16} offset1:{U*16+16}")
                    else:
                        g(f"ds_read_b64 a[{2*U}:{2*U+1}], v7 offset:{U*128}")
                o = 64 + (p * 6 + t2) * 4
                q = 144 + (t * 2 + p) * 4
                cc = "0" if t == 0 else f"v[{o}:{o+3}]"
                g(f"v_mfma_f32_4x4x4_16b_bf16 v[{o}:{o+3}], a[{2*T}:{2*T+1}], v[{q}:{q+1}], {cc}")
    for p in range(2):
        o = 64 + (p * 6 + 5) * 4
        g(f"v_add_f32 v{o}, s53, v{o}")
g.label("L_m2done")
bstamp(4)
p3 = []
for i8 in range(8):
    for qq in range(2):
        for t in range(5):
            p3.append((i8, qq, t))
for j in range(4):
    for t in range(5):
        p3.append((8, j, t))
def p3_read(i, half=None):
    i8, qq, t = p3[i]
    b = wreg(i)
    if i8 < 8:
        va = f"v{196+i8}"
        imm = qq * 1280 + 8 * t
        d2 = 640
    else:
        va = "v30" if qq < 2 else "v31"
        imm = (160 * (qq & 1) + 16) * 160 + 8 * t
        d2 = 6400
    if half in (None, 0):
        g(f"ds_read_b64_tr_b16 a[{b}:{b+1}], {va} offset:{imm}")
    if half in (None, 1):
        g(f"ds_read_b64_tr_b16 a[{b+2}:{b+3}], {va} offset:{imm+d2}")
def p3_addr(i8):
    g(f"s_add_u32 s3, s30, {i8}")
    g("s_and_b32 s3, s3, 7")
    g("s_mul_i32 s4, s3, 12800")
    g(f"s_mul_i32 s{58+i8}, s3, 10240")
    g(f"v_add_u32 v{196+i8}, s4, v28")
    g(f"s_add_u32 s{58+i8}, s{58+i8}, s44")
for p in range(2):
    o = 64 + (p * 6 + 5) * 4
    g(f"v_rcp_f32 v{o}, v{o}")
p3_addr(0)
if opt['own'] == 1:
    p3_addr(1)
    for i in range(D):
        p3_read(i)
g("v_add_u32 v253, 5120, v46")
g("s_lshr_b32 s3, s30, 1")
g("s_mul_i32 s3, s3, 20480")
g("s_add_u32 s3, s3, s44")
g("s_add_u32 s4, s3, 10240")
g("s_lshl_b32 s5, s30, 2")
g("s_add_u32 s5, s5, s49")
for p in range(2):
    dn = 64 + (p * 6 + 5) * 4
    for t in range(5):
        o = 64 + (p * 6 + t) * 4
        for r in range(0, 4, 2):
            g(f"v_pk_mul_f32 v[{o+r}:{o+r+1}], v[{o+r}:{o+r+1}], v[{dn}:{dn+1}] op_sel_hi:[1,0]")
        d = 112 + p * 10 + 2 * t
        g(f"v_cvt_pk_bf16_f32 v{d}, v{o}, v{o+1}")
        g(f"v_cvt_pk_bf16_f32 v{d+1}, v{o+2}, v{o+3}")
g("v_mov_b32 v6, s39")
g("v_mov_b32 v7, 0")
nol = [0]
NOL = 36 if opt['own'] else 40
KO = 40 - NOL
def o_load():
    k = nol[0]; nol[0] += 1
    kk = k + KO
    if kk < 32:
        i8, bb = kk // 4, kk % 4
        g(f"buffer_load_dwordx4 a[{4*k}:{4*k+3}], {'v253' if bb >= 2 else 'v46'}, s[8:11], s{58+i8} offen offset:{(bb&1)*2560} sc1")
    else:
        if kk == 32:
            g("s_mov_b32 s3, s44")
        else:
            g("s_add_u32 s3, s3, 10240")
        g(f"buffer_load_dwordx4 a[{4*k}:{4*k+3}], v251, s[8:11], s3 offen sc1")
def p3_step(i):
    i8, qq, t = p3[i]
    ks = i // 5
    b = wreg(i)
    for p in range(2):
        acc = 144 + (t * 2 + p) * 4
        c = "0" if ks == 0 else f"v[{acc}:{acc+3}]"
        if opt['own'] and i8 == 0:
            o = 112 + p * 10 + 4 * qq
            ob_ = f"v[{o}:{o+3}]"
        else:
            k = ks * 2 + p - KO
            assert k < nol[0]
            ob_ = f"a[{4*k}:{4*k+3}]"
        g(f"v_mfma_f32_16x16x32_bf16 v[{acc}:{acc+3}], a[{b}:{b+3}], {ob_}, {c}")
        if i + D < 100 and not (opt['dyn'] and i < 10 <= i + D):
            p3_read(i + D, p)
        if opt['dyn'] and nol[0] >= 4 * opt['n1']:
            if p == 1 and i >= opt['ci'] and nol[0] < NOL:
                o_load()
        elif p == 1 and nol[0] and i % opt['og'] == 0 and nol[0] < NOL:
            o_load()
def o_stores(OSC):
    for p in range(2):
        d = 112 + p * 10
        g(f"buffer_store_dwordx4 v[{d}:{d+3}], v46, s[8:11], s58 offen offset:{p*2560} {OSC}", tag='o')
        g(f"buffer_store_dwordx4 v[{d+4}:{d+7}], v253, s[8:11], s58 offen offset:{p*2560} {OSC}", tag='o')
        g(f"buffer_store_dwordx2 v[{d+8}:{d+9}], v47, s[8:11], {'s4' if p else 's3'} offen {OSC}", tag='o')
def o_flag(OSC):
    g("s_mov_b64 exec, 1")
    g(f"buffer_store_dword v6, v7, s[24:27], s5 offen {OSC}")
    g("s_mov_b64 exec, -1")
def both(fn, n):
    g("s_cmp_eq_u32 s80, 0")
    br(f"s_cbranch_scc1 L_slow{n}")
    with g.extra():
        fn('')
        br(f"s_branch L_pub{n}")
    g.label(f"L_slow{n}")
    fn('sc1')
    g.label(f"L_pub{n}")
def p3_pick(i8):
    g("s_ff1_i32_b32 s3, s68")
    g("s_bitset0_b32 s68, s3")
    g("s_and_b32 s3, s3, 7")
    g("s_mul_i32 s4, s3, 12800")
    g(f"s_mul_i32 s{58+i8}, s3, 10240")
    g(f"v_add_u32 v{196+i8}, s4, v28")
    g(f"s_add_u32 s{58+i8}, s{58+i8}, s44")
def poll_o():
    g("buffer_load_dword v36, v25, s[24:27], s49 offen sc1")
def dyn_test():
    g("v_cmp_eq_u32 vcc, s39, v36")
    g("s_and_b32 s68, vcc_lo, s69")
    g("s_bcnt1_i32_b32 s3, s68")
    g(f"s_cmp_ge_u32 s3, {opt['n1']}")
if opt['dyn']:
    assert opt['own'] == 2
    I0 = 10
    g("v_min_u32 v25, 28, v51")
    g("v_mov_b32 v36, 0")
    g("s_movk_i32 s69, 0xff")
    g("s_bitset0_b32 s69, s30")
    g("s_mov_b32 s70, 0")
    poll_o()
    both(o_stores, 0)
    bstamp(5)
    for i in range(D):
        p3_read(i)
    for i in range(I0):
        p3_step(i)
    dyn_test()
    br("s_cbranch_scc1 L_dgo")
    with g.extra():
        g.force_wait(vm=0)
        both(o_flag, 1)
        g("s_mov_b32 s70, 1")
        spin_wait(poll_o, dyn_test, "some")
    g.label("L_dgo")
    stamp()
    g("s_andn2_b32 s3, s69, s68")
    g("s_lshl_b32 s3, s3, 8")
    g("s_or_b32 s68, s68, s3")
    assert opt['oa'] == 8
    for i8 in (1, 2):
        p3_pick(i8)
        for k in range(4):
            o_load()
    g("s_cmp_lg_u32 s70, 0")
    br("s_cbranch_scc1 L_dfl")
    with g.extra():
        g.force_wait(vm=8)
        both(o_flag, 2)
    g.label("L_dfl")
    for i in range(I0, I0 + D):
        p3_read(i)
    for i8 in range(3, 8):
        p3_pick(i8)
    g("s_mul_i32 s79, s31, 5632")
    g(f"s_add_u32 s79, s79, {XBASE}")
else:
    both(o_stores, 0)
    bstamp(5)
    if opt['own'] != 1:
        if opt['own']:
            for i in range(D):
                p3_read(i)
        p3_addr(1)
    I0 = 10 if opt['own'] else 0
    for i in range(I0):
        p3_step(i)
    g.force_wait(vm=0)
    both(o_flag, 1)
    stamp()
    g("s_barrier")
    for i8 in range(2, 8):
        p3_addr(i8)
    if not opt['own']:
        for i in range(D):
            p3_read(i)
g("v_mul_u32_u24 v251, 2304, v4")
g("v_add_u32 v251, v251, v46")
g("v_add_u32 v251, 1024, v251")
if opt['tr']:
    g("v_mul_u32_u24 v23, 6554, v1")
    g("v_add_u32 v7, s79, v46")
    g("s_movk_i32 s3, 4960")
    g("s_mov_b32 s4, 79360")
    for i in range(5):
        if i:
            g(f"v_add_u32 v195, {64*i*6554}, v23")
        g(f"v_lshrrev_b32 v195, 16, {'v195' if i else 'v23'}")
        g(f"v_lshl_add_u32 v{184+i}, v195, 4, v7")
        g(f"v_mad_u32_u24 v{189+i}, v195, s3, v46")
        if i == 2:
            g("v_lshrrev_b32 v195, 4, v195")
            g("v_mul_u32_u24 v195, s4, v195")
            g(f"v_sub_u32 v{189+i}, v{189+i}, v195")
        elif i > 2:
            g(f"v_subrev_u32 v{189+i}, {79360 - (4096 if i == 4 else 0)}, v{189+i}")
    g("v_mul_u32_u24 v194, 176, v3")
    g("v_mul_u32_u24 v195, 40, v4")
    g("v_add3_u32 v194, v194, v195, s79")
g("v_min_u32 v7, 28, v51")
if not opt['dyn']:
    def _ld():
        g("buffer_load_dword v36, v7, s[24:27], s49 offen sc1")
    spin_wait(_ld, mid_test, "o")
    g.force_wait(vm=0)
    stamp()
    for k in range(opt['oa']):
        o_load()
else:
    stamp()
for i in range(I0, 100):
    if opt['dyn'] and i == opt['p2']:
        poll_o()
    if opt['dyn'] and i == opt['ci']:
        bstamp(12)
        mid_test()
        br("s_cbranch_scc1 L_dall")
        spin_wait(poll_o, mid_test, "all")
        g.label("L_dall")
        bstamp(13)
    if opt['ob'] and i == opt['li']:
        assert nol[0] == NOL
        g.force_wait(vm=0)
        bstamp(9)
        g("s_mov_b64 exec, 1")
        g("buffer_store_dword v6, v51, s[24:27], s5 offen offset:32")
        g("s_mov_b64 exec, -1")
    if opt['ob'] and i == opt['pi']:
        g("buffer_load_dword v36, v7, s[24:27], s49 offen offset:32 sc1")
    p3_step(i)
stamp()
g("s_mul_i32 s3, s48, 2560")
g("s_mul_i32 s4, s28, 1280")
g("s_add_u32 s3, s3, s4")
g("s_mul_i32 s4, s30, 160")
g("s_add_u32 s3, s3, s4")
for p in range(2 if opt['tr'] else 0):
    for t in range(5):
        a = 144 + (t * 2 + p) * 4
        d = 112 + p * 10 + 2 * t
        g(f"v_cvt_pk_bf16_f32 v{d}, v{a}, v{a+1}")
        g(f"v_cvt_pk_bf16_f32 v{d+1}, v{a+2}, v{a+3}")
        g(f"ds_write_b64 v194, v[{d}:{d+1}] offset:{p*2816+8*t}")
    for i in ((0, 1), (2, 3, 4))[p]:
        g(f"ds_read_b128 v[{64+4*i}:{67+4*i}], v{184+i} offset:{1024*i}")
if opt['ob']:
    bstamp(10)
    mid_test()
    g("s_cselect_b32 s4, 0, s80")
    g("s_cmp_eq_u32 s4, 0")
    br("s_cbranch_scc1 L_rdok")
    def _ld():
        g("buffer_load_dword v36, v7, s[24:27], s49 offen offset:32 sc1")
    spin_wait(_ld, mid_test, "read")
    g.label("L_rdok")
    bstamp(11)
FS = {0: '', 1: ' sc1', 2: ' nt', 3: ' sc0 sc1', 4: ' sc1 nt', 5: ' sc0 sc1 nt', 6: ' sc0'}[opt['fs']]
for i in range(5 if opt['tr'] else 0):
    g(f"buffer_store_dwordx4 v[{64+4*i}:{67+4*i}], v{189+i}, s[20:23], s3 offen offset:{1024*(i&3)}{FS}")
for p in range(0 if opt['tr'] else 2):
    for t in range(5):
        a = 144 + (t * 2 + p) * 4
        d = 112 + p * 10 + 2 * t
        g(f"v_cvt_pk_bf16_f32 v{d}, v{a}, v{a+1}")
        g(f"v_cvt_pk_bf16_f32 v{d+1}, v{a+2}, v{a+3}")
    d = 112 + p * 10
    if opt['xo'] == 1:
        continue
    if opt['xo'] == 6:
        if p == 0:
            g("v_mul_u32_u24 v6, 2560, v3")
            g("v_mul_u32_u24 v7, 40, v4")
            g("v_add_u32 v6, v6, v7")
            g("s_add_u32 s3, s44, s4")
        g(f"buffer_store_dwordx4 v[{d}:{d+3}], v6, s[24:27], s3 offen offset:{p*1280}")
        g(f"buffer_store_dwordx4 v[{d+4}:{d+7}], v6, s[24:27], s3 offen offset:{p*1280+16}")
        g(f"buffer_store_dwordx2 v[{d+8}:{d+9}], v6, s[24:27], s3 offen offset:{p*1280+32}")
        continue
    if opt['xo'] in (7, 8):
        if p == 1:
            rs = 2560 if opt['xo'] == 7 else 1280
            g(f"s_movk_i32 s5, {rs-160}")
            if opt['xo'] == 8:
                g("s_add_u32 s3, s44, s4")
            for i in range(5):
                g(f"v_add_u32 v6, {64*i}, v1")
                g("v_mul_u32_u24 v7, 6554, v6")
                g("v_lshrrev_b32 v7, 16, v7")
                g("v_lshlrev_b32 v6, 4, v6")
                g("v_mad_u32_u24 v6, v7, s5, v6")
                g(f"buffer_store_dwordx4 v[{112+4*i}:{115+4*i}], v6, {'s[20:23]' if opt['xo'] == 7 else 's[24:27]'}, s3 offen")
        continue
    OM = {0: '', 2: ' sc1', 3: ' nt', 4: ' sc0 sc1', 5: ' sc1 nt'}[opt['xo']]
    g(f"buffer_store_dwordx4 v[{d}:{d+3}], v48, s[20:23], s3 offen offset:{p*2560}{OM}")
    g(f"buffer_store_dwordx4 v[{d+4}:{d+7}], v48, s[20:23], s3 offen offset:{p*2560+16}{OM}")
    g(f"buffer_store_dwordx2 v[{d+8}:{d+9}], v48, s[20:23], s3 offen offset:{p*2560+32}{OM}")
if opt['prof']:
    g.force_wait(vm=0)
    stamp()
    g("s_memrealtime s[88:89]")
    g.wait_lg(0)
    g("v_writelane_b32 v5, s92, 62")
    g("v_writelane_b32 v5, s88, 63")
    g("s_lshl_b32 s3, s2, 2")
    g("s_add_u32 s3, s3, s31")
    g("s_lshl_b32 s3, s3, 8")
    g(f"s_add_u32 s3, s3, {WS_P}")
    g("buffer_store_dword v5, v51, s[24:27], s3 offen")
g.label("L_end")
g("s_endpgm")
g.raw(f""".section .rodata,"a"
.p2align 6
.amdhsa_kernel {NAME}
  .amdhsa_next_free_vgpr 512
  .amdhsa_next_free_sgpr 102
  .amdhsa_accum_offset 256
  .amdhsa_group_segment_fixed_size 0
  .amdhsa_kernarg_size 72
  .amdhsa_user_sgpr_count 2
  .amdhsa_user_sgpr_kernarg_segment_ptr 1
  .amdhsa_system_sgpr_workgroup_id_x 1
.end_amdhsa_kernel""")
sys.stdout.write(g.text())
sys.stderr.write(f"bytes~{g.nbytes} stats={g.stats}\n")
```
